```python
import torch

def _softmax(x, axis=-1):
    return torch.softmax(x, dim=axis)
def _gelu(x):
    return torch.nn.functional.gelu(x, approximate="tanh")
def _silu(x):
    return torch.nn.functional.silu(x)
def _sigmoid(x):
    return torch.sigmoid(x)
def _layernorm(x, axis=-1, eps=1e-5):
    m = x.mean(dim=axis, keepdim=True)
    v = x.var(dim=axis, keepdim=True, unbiased=False)
    return (x - m) / torch.sqrt(v + eps)
def _scatter_add(tgt, idx, src, axis=0):
    return tgt.clone().index_add_(axis, idx, src)
def _segment_sum(src, seg, n):
    out = torch.zeros((n,) + src.shape[1:], dtype=src.dtype)
    return out.index_add_(0, seg, src)
def _pad(x, pw):
    flat = tuple(v for pair in reversed(pw) for v in pair)
    return torch.nn.functional.pad(x, flat)

kernel_name = 'recurrent_scan__compressed_kv_cla__dense_activation_squared_relu__prompt'

def setup_inputs():

    _w = (lambda a: (lambda t: t.to(torch.bfloat16) if t.is_floating_point() else t)(torch.as_tensor(a)))
    def _A_setup():
        B, H, Sq, Sk, D, M = 1, 32, 2048, 2048, 128, 512
        Dc = 4 * D
        return {
            "x": _w((lambda *s: torch.randn(*s, dtype=torch.bfloat16) * 0.05)(B, Sq, M)),
            "c_kv": _w((lambda *s: torch.randn(*s, dtype=torch.bfloat16) * 0.2)(B, Sk, Dc)),
            "w_q": _w((lambda *s: torch.randn(*s, dtype=torch.bfloat16) * 3.2)(M, H, D) * (M ** -0.5)),
            "w_uk": _w((lambda *s: torch.randn(*s, dtype=torch.bfloat16) * 3.2)(Dc, H, D) * (Dc ** -0.5)),
            "w_uv": _w((lambda *s: torch.randn(*s, dtype=torch.bfloat16) * 0.2)(Dc, H, D) * (Dc ** -0.5)),
            "w_o": _w((lambda *s: torch.randn(*s, dtype=torch.bfloat16) * 0.2)(H, D, M) * ((H * D) ** -0.5)),
        }
    _A_in = _A_setup()

    def _B_setup():
        B, S, D, F = 1, 2048, 512, 1792
        return {
            "x": _w((lambda *s: torch.randn(*s, dtype=torch.bfloat16) * 0.05)(B, S, D)),
            "w1": _w((lambda *s: torch.randn(*s, dtype=torch.bfloat16) * 0.1)(D, F)),
            "b1": _w((lambda *s: torch.randn(*s, dtype=torch.bfloat16) * 0.8)(F)),
            "w2": _w((lambda *s: torch.randn(*s, dtype=torch.bfloat16) * 0.1)(F, D)),
            "b2": _w((lambda *s: torch.randn(*s, dtype=torch.bfloat16) * 6.4)(D)),
        }
    _B_in = _B_setup()

    return {
        "A_x": _A_in["x"],
        "A_c_kv": _A_in["c_kv"],
        "A_w_q": _A_in["w_q"],
        "A_w_uk": _A_in["w_uk"],
        "A_w_uv": _A_in["w_uv"],
        "A_w_o": _A_in["w_o"],
        "B_x": _B_in["x"],
        "B_w1": _B_in["w1"],
        "B_b1": _B_in["b1"],
        "B_w2": _B_in["w2"],
        "B_b2": _B_in["b2"],
    }

def reference(A_x, A_c_kv, A_w_q, A_w_uk, A_w_uv, A_w_o, B_x, B_w1, B_b1, B_w2, B_b2):
    def _A_ref(x, c_kv, w_q, w_uk, w_uv, w_o):
        B, Sq, M = x.shape[0], x.shape[1], x.shape[2]
        Sk = c_kv.shape[1]
        H, D = w_q.shape[1], w_q.shape[2]
        q = torch.einsum("bqm,mhd->bhqd", x, w_q)
        k = torch.einsum("bkc,chd->bhkd", c_kv, w_uk)
        v = torch.einsum("bkc,chd->bhkd", c_kv, w_uv)
        scores = torch.einsum("bhqd,bhkd->bhqk", q, k) * (D ** -0.5)
        off = Sk - Sq
        qi = torch.arange(Sq)[:, None]
        kj = torch.arange(Sk)[None, :]
        cmask = kj <= (qi + off)
        scores = torch.where(cmask[None, None], scores, -1e9)
        p = _softmax(scores, axis=-1)
        ctx = torch.einsum("bhqk,bhkd->bhqd", p, v)
        return torch.einsum("bhqd,hdm->bqm", ctx, w_o)

    def _B_ref(x, w1, b1, w2, b2):
        h = torch.einsum("bsd,df->bsf", x, w1) + b1
        zero = torch.zeros_like(h)
        r = torch.where(h > zero, h, zero)
        h = r * r
        out = torch.einsum("bsf,fd->bsd", h, w2) + b2
        return out

    x = A_x
    xn = _layernorm(x, axis=-1)
    s = _A_ref(xn, A_c_kv, A_w_q, A_w_uk, A_w_uv, A_w_o)
    g = _silu(_B_ref(xn, B_w1, B_b1, B_w2, B_b2))
    return x + s * g
```

```python
import re

TRANS = ("v_exp_f32", "v_log_f32", "v_rcp_f32", "v_rsq_f32", "v_sqrt_f32", "v_sin_f32", "v_cos_f32")
_reg_re = re.compile(r"^(-|abs\()?([vsa])(?:\[(\d+):(\d+)\]|(\d+))\)?$")


def regs_of(tok):
    tok = tok.strip()
    if tok in ("vcc", "exec"):
        return {(tok, 0)}
    if tok in ("vcc_lo", "vcc_hi"):
        return {("vcc", 0)}
    if tok in ("exec_lo", "exec_hi"):
        return {("exec", 0)}
    if tok == "m0":
        return {("m0", 0)}
    m = _reg_re.match(tok)
    if not m:
        return set()
    c = m.group(2)
    if m.group(3) is not None:
        return {(c, i) for i in range(int(m.group(3)), int(m.group(4)) + 1)}
    return {(c, int(m.group(5)))}


class I:
    def __init__(self, text, tag=None):
        self.t = text.strip()
        self.tag = tag
        self.rd = set()
        self.wr = set()
        self.passes = 0
        self.cregs = set()
        self.abregs = set()
        self.wide_store = set()
        t = self.t
        if t.endswith(":"):
            self.k = "label"
            return
        if t.startswith(".") or t.startswith(";"):
            self.k = "dir"
            return
        parts = t.split(None, 1)
        op = parts[0]
        self.op = op
        rest = parts[1] if len(parts) > 1 else ""
        ops = []
        cur = ""
        depth = 0
        for ch in rest:
            if ch in "[(":
                depth += 1
            if ch in "])":
                depth -= 1
            if ch == "," and depth == 0:
                ops.append(cur.strip())
                cur = ""
            else:
                cur += ch
        if cur.strip():
            ops.append(cur.strip())
        mods = ""
        if ops:
            last = ops[-1].split(None, 1)
            ops[-1] = last[0]
            mods = last[1] if len(last) > 1 else ""
        self.mods = mods
        R = [regs_of(o) for o in ops]
        allr = set().union(*R) if R else set()
        if op.startswith("v_mfma"):
            self.k = "mfma"
            self.passes = 8 if "32x32" in op else 4
            self.wr = R[0]
            self.abregs = R[1] | R[2]
            self.cregs = R[3]
            self.rd = self.abregs | self.cregs
        elif op.startswith("v_cmp"):
            self.k = "valu"
            self.wr = R[0]
            self.rd = set().union(*R[1:])
        elif op.startswith("v_permlane"):
            self.k = "valu"
            self.wr = allr
            self.rd = allr
        elif op.startswith("v_"):
            self.k = "trans" if op.replace("_e32", "").replace("_e64", "") in TRANS else "valu"
            self.wr = set(R[0])
            self.rd = set().union(*R[1:]) if len(R) > 1 else set()
            if op.startswith(("v_fmac", "v_mac")) or "dpp" in op or "row_" in mods or "quad_perm" in mods or "sdwa" in op or "_sel:" in mods:
                self.rd |= R[0]
            if op.startswith(("v_add_co", "v_sub_co", "v_addc_co", "v_subb_co")):
                self.wr |= R[1]
        elif op.startswith("ds_read") or op.startswith(("ds_bpermute", "ds_permute", "ds_swizzle")):
            self.k = "dsr"
            self.wr = R[0]
            self.rd = set().union(*R[1:])
        elif op.startswith("ds_"):
            self.k = "dsw"
            self.rd = allr
        elif op.startswith("buffer_load"):
            if re.search(r"\blds\b", mods):
                self.k = "dma"
                self.rd = allr | {("m0", 0)}
            else:
                self.k = "vld"
                self.wr = R[0]
                if R[0] == {("v", 31)}:
                    self.wr = set()
                self.rd = set().union(*R[1:])
        elif op.startswith("global_load"):
            self.k = "vld"
            self.wr = set() if R[0] == {("v", 31)} else R[0]
            self.rd = set().union(*R[1:])
        elif op.startswith("buffer_store"):
            self.k = "vst"
            self.rd = allr
            if "x4" in op or "x3" in op:
                self.wide_store = R[0]
        elif op.startswith("buffer_atomic"):
            self.k = "vst"
            self.rd = allr
            if re.search(r"\bsc0\b", mods):
                self.k = "vld"
                self.wr = R[0]
        elif op.startswith(("buffer_inv", "buffer_wbl2")):
            self.k = "vst"
        elif op.startswith(("s_load", "s_memtime", "s_memrealtime")):
            self.k = "smem"
            self.wr = R[0]
            self.rd = set().union(*R[1:]) if len(R) > 1 else set()
        elif op == "s_waitcnt":
            self.k = "wait"
        elif op == "s_barrier":
            self.k = "barrier"
        elif op == "s_nop":
            self.k = "nop"
            self.n = int(ops[0])
        elif op.startswith(("s_branch", "s_cbranch", "s_endpgm")):
            self.k = "branch"
        elif op.startswith(("s_cmp", "s_sleep", "s_setprio", "s_bitcmp")):
            self.k = "salu"
            self.rd = allr
        elif op.startswith("s_"):
            self.k = "salu"
            self.wr = set(R[0])
            self.rd = set().union(*R[1:]) if len(R) > 1 else set()
            if "saveexec" in op:
                self.wr |= {("exec", 0)}
            if op.startswith(("s_addk", "s_mulk")):
                self.rd |= R[0]
        else:
            raise ValueError("unknown op: " + t)

    def states(self):
        if self.k in ("label", "dir", "need", "waitvm", "waitlg"):
            return 0
        if self.k == "nop":
            return self.n + 1
        return 1


class Need(I):
    def __init__(self, toks):
        self.t = "; need"
        self.k = "need"
        self.tag = None
        self.rd = set()
        for tk in toks:
            self.rd |= regs_of(tk)
        self.wr = set()
        self.passes = 0
        self.cregs = set()
        self.abregs = set()
        self.wide_store = set()


class WaitTag(I):
    def __init__(self, pred, lg0=False):
        self.t = "; waitvm"
        self.k = "waitvm"
        self.tag = None
        self.pred = pred
        self.lg0 = lg0
        self.rd = set()
        self.wr = set()
        self.passes = 0
        self.cregs = set()
        self.abregs = set()
        self.wide_store = set()


class WState:
    def __init__(self):
        self.lg = []
        self.vm = []

    def copy(self):
        w = WState()
        w.lg = list(self.lg)
        w.vm = list(self.vm)
        return w

    def key(self):
        return ([(sorted(r), s) for r, s in self.lg], [(sorted(r), t) for r, t in self.vm])


def insert_waits(ins, st):
    out = []
    for x in ins:
        need_lg = None
        need_vm = None
        touch = x.rd | x.wr
        if x.k == "wait":
            m = re.search(r"vmcnt\((\d+)\)", x.t)
            if m:
                n = int(m.group(1))
                st.vm = st.vm[len(st.vm) - n:] if n < len(st.vm) else st.vm
                if n == 0:
                    st.vm = []
            m = re.search(r"lgkmcnt\((\d+)\)", x.t)
            if m:
                n = int(m.group(1))
                if n == 0:
                    st.lg = []
                else:
                    assert not any(s for _, s in st.lg), "counted lgkmcnt with SMEM outstanding"
                    st.lg = st.lg[len(st.lg) - n:] if n < len(st.lg) else st.lg
            out.append(x)
            continue
        if touch:
            for i, (r, s) in enumerate(st.lg):
                if r & touch:
                    n = len(st.lg) - 1 - i
                    if any(s2 for _, s2 in st.lg):
                        n = 0
                    need_lg = n if need_lg is None else min(need_lg, n)
            for i, (r, tg) in enumerate(st.vm):
                if r & touch:
                    n = len(st.vm) - 1 - i
                    need_vm = n if need_vm is None else min(need_vm, n)
        if x.k == "waitvm":
            for i, (r, tg) in enumerate(st.vm):
                if x.pred(tg):
                    n = len(st.vm) - 1 - i
                    need_vm = n if need_vm is None else min(need_vm, n)
            if x.lg0 and st.lg:
                need_lg = 0
        w = []
        if need_vm is not None:
            need_vm = min(need_vm, 63)
            w.append(f"vmcnt({need_vm})")
            st.vm = st.vm[len(st.vm) - need_vm:] if need_vm else []
        if need_lg is not None:
            need_lg = min(need_lg, 15)
            w.append(f"lgkmcnt({need_lg})")
            st.lg = st.lg[len(st.lg) - need_lg:] if need_lg else []
        if w:
            out.append(I("s_waitcnt " + " ".join(w)))
        if x.k in ("need", "waitvm"):
            out.append(x)
            continue
        if x.k in ("dsr", "dsw"):
            st.lg.append((set(x.wr), False))
            assert len(st.lg) <= 15 or True
        elif x.k == "smem":
            st.lg.append((set(x.wr), True))
        elif x.k in ("vld", "dma", "vst"):
            st.vm.append((set(x.wr), x.tag))
            assert len(st.vm) <= 63, "too many VMEM in flight"
        out.append(x)
    return out


def merge_waits(ins):
    out = []
    last = None
    for x in ins:
        if x.k in ("need", "waitvm"):
            out.append(x)
            continue
        if x.k == "wait" and last is not None and out[last].k == "wait":
            c = {}
            for y in (out[last], x):
                for nm, n in re.findall(r"(vmcnt|lgkmcnt)\((\d+)\)", y.t):
                    c[nm] = min(int(n), c.get(nm, 99))
            out[last] = I("s_waitcnt " + " ".join(f"{k}({c[k]})" for k in ("vmcnt", "lgkmcnt") if k in c))
            continue
        out.append(x)
        last = len(out) - 1
    return out


def _need_states(p, c):
    n = 0
    isvalu = lambda x: x.k in ("valu", "trans")
    vw = {r for r in p.wr if r[0] in "va"}
    sw = {r for r in p.wr if r[0] in ("s", "vcc")}
    if isvalu(p):
        if c.k == "mfma" and vw & c.rd:
            n = max(n, 2)
        if isvalu(c):
            if p.k == "trans" and c.k != "trans" and vw & (c.rd | c.wr):
                n = max(n, 1)
            if sw & c.rd:
                n = max(n, 2)
            if c.op.startswith(("v_readfirstlane", "v_readlane")) and vw & c.rd:
                n = max(n, 1)
            if c.op.startswith("v_permlane") and vw & c.rd:
                n = max(n, 2)
            if ("dpp" in c.op or "row_" in c.mods or "quad_perm" in c.mods) and vw & c.rd:
                n = max(n, 2)
            if ("sdwa" in p.op or "_sel:" in p.mods) and vw & (c.rd | c.wr):
                n = max(n, 1)
        if c.k in ("vld", "vst", "dma") and sw & c.rd:
            n = max(n, 5)
        if ("exec", 0) in p.wr and c.k == "mfma":
            n = max(n, 4)
    if p.k == "mfma":
        big = {4: 8, 8: 12}[p.passes]
        ovl = {4: 6, 8: 10}[p.passes]
        war = {4: 3, 8: 7}[p.passes]
        if c.k == "mfma":
            if p.wr & c.abregs:
                n = max(n, big)
            if p.wr & c.cregs and not (p.wr == c.cregs and p.passes == c.passes):
                n = max(n, ovl)
            if p.wr & c.wr and not (p.wr & c.cregs) :
                n = max(n, 0)
        elif isvalu(c):
            if p.wr & (c.rd | c.wr):
                n = max(n, big)
            if p.cregs & c.wr:
                n = max(n, war)
        elif c.k in ("dsr", "dsw", "vld", "vst", "dma"):
            if p.wr & (c.rd | c.wr):
                n = max(n, big)
            if p.cregs & c.wr:
                n = max(n, war)
    if p.k == "salu" and ("m0", 0) in p.wr and c.k == "dma":
        n = max(n, 1)
    if p.k == "vst" and p.wide_store:
        if isvalu(c) and p.wide_store & c.wr:
            n = max(n, 2)
        elif p.wide_store & c.wr:
            n = max(n, 1)
    return n


def pad_hazards(ins, prev=None):
    hist = list(prev[-24:]) if prev else []
    out = []
    for x in ins:
        if x.k not in ("label", "dir", "need", "waitvm"):
            dist = 0
            need = 0
            for p in reversed(hist):
                if p.k in ("label", "dir", "need", "waitvm"):
                    continue
                req = _need_states(p, x)
                if req > dist:
                    need = max(need, req - dist)
                dist += p.states()
                if dist >= 13:
                    break
            if need:
                nop = I(f"s_nop {need - 1}")
                out.append(nop)
                hist.append(nop)
        out.append(x)
        hist.append(x)
        if len(hist) > 40:
            hist = hist[-30:]
    return out


class Asm:
    def __init__(self):
        self.out = []
        self.cur = []
        self.st = WState()
        self.nops = 0

    def e(self, text, tag=None):
        for ln in text.split("\n"):
            ln = ln.strip()
            if ln:
                self.cur.append(I(ln, tag))

    def add(self, x):
        if isinstance(x, str):
            self.e(x)
        elif isinstance(x, I):
            self.cur.append(x)
        else:
            for y in x:
                self.add(y)

    def flush(self):
        blk = merge_waits(insert_waits(self.cur, self.st))
        blk = pad_hazards(blk, self.out)
        self.out += blk
        self.cur = []

    def hard_fence(self):
        self.e("s_nop 7")
        self.e("s_nop 3")
        self.flush()

    def loop(self, label, body_fn, tail):
        self.flush()
        entry = self.st.copy()
        mk = lambda: [x if isinstance(x, I) else I(x) for x in _flat(body_fn())] + [I(t) for t in tail]
        s1 = entry.copy()
        b1 = insert_waits(mk(), s1)
        s2 = s1.copy()
        b2 = insert_waits(mk(), s2)
        assert s1.key() == s2.key(), f"loop {label}: wait state not stationary\n{s1.key()}\n{s2.key()}"
        t1 = [x.t for x in b1]
        t2 = [x.t for x in b2]
        if t1 != t2:
            s3 = entry.copy()
            b3 = insert_waits(list(b2), s3)
            assert [x.t for x in b3] == t2, f"loop {label}: entry state needs more waits than steady state"
            assert s3.key() == s2.key(), f"loop {label}: state after first pass differs"
        body = pad_hazards(merge_waits(b2), self.out)
        body2 = pad_hazards(list(body), body)
        if [x.t for x in body2] != [x.t for x in body]:
            body = body2
            body3 = pad_hazards(list(body), body)
            assert [x.t for x in body3] == [x.t for x in body]
        self.out.append(I(label + ":"))
        self.out += body
        self.st = s2

    def text(self):
        self.flush()
        s = []
        for x in self.out:
            if x.k in ("need", "waitvm"):
                continue
            if x.k == "label":
                s.append(x.t)
            else:
                s.append("  " + x.t)
        return "\n".join(s) + "\n"


def _flat(l):
    for x in l:
        if isinstance(x, (list, tuple)):
            yield from _flat(x)
        elif isinstance(x, str):
            for ln in x.split("\n"):
                if ln.strip():
                    yield ln.strip()
        else:
            yield x


def weave(primary, fillers):
    n = len(primary)
    gaps = {}
    for idx, (pos, prio, x) in enumerate(fillers):
        assert -1 <= pos < n, (pos, n)
        gaps.setdefault(pos, []).append((prio, idx, x))
    out = []
    for _, _, x in sorted(gaps.get(-1, []), key=lambda z: z[:2]):
        out.append(x)
    for i, p in enumerate(primary):
        out.append(p)
        for _, _, x in sorted(gaps.get(i, []), key=lambda z: z[:2]):
            out.append(x)
    return list(_flat(out))


def v(a, n=1):
    return f"v{a}" if n == 1 else f"v[{a}:{a + n - 1}]"


def s(a, n=1):
    return f"s{a}" if n == 1 else f"s[{a}:{a + n - 1}]"
```

```python
from asmlib import *

NAME = "recurrent_scan__compressed_kv_cla__dense_activation_squared_relu__prompt"

WS_XN = 0x0000000
WS_KV = 0x0200000
WS_H = 0x2200000
WS_CTX = 0x2900000
WS_GP = 0x3900000
WS_SP = 0x4900000
WS_FLAG = 0x5900000
WS_SIZE = 268435456

P_X, P_CKV, P_WQ, P_WUK, P_WUV, P_WO, P_BX, P_W1 = 4, 6, 8, 10, 12, 14, 16, 18
P_B1, P_W2, P_B2, P_OUT, P_DBG, P_WS = 20, 22, 24, 26, 28, 30
SRD0, SRD1, SRD2, SRD3, SRD4, SRD5 = 32, 36, 40, 44, 48, 52
S_WAVE, S_H, S_P, S_W3 = 56, 57, 58, 59

MFMA = "v_mfma_f32_16x16x32_bf16"


def mfma(d, a, b, c):
    cs = "0" if c is None else v(c, 4)
    return f"{MFMA} {v(d,4)}, {v(a,4)}, {v(b,4)}, {cs}"


def srd(a, dst, ptr, size, off=0):
    if off:
        a.e(f"s_add_u32 s{dst}, s{ptr}, {hex(off)}")
        a.e(f"s_addc_u32 s{dst+1}, s{ptr+1}, 0")
    else:
        a.e(f"s_mov_b32 s{dst}, s{ptr}")
        a.e(f"s_mov_b32 s{dst+1}, s{ptr+1}")
    a.e(f"s_mov_b32 s{dst+2}, {hex(size)}")
    a.e(f"s_mov_b32 s{dst+3}, 0x20000")


def kernel_head(a, label, nwg, code_lines=0):
    a.e(f".globl {label}")
    a.e(".p2align 8")
    a.e(f".type {label},@function")
    a.e(f"{label}:")
    a.e(f"s_cmp_ge_u32 s2, {nwg}")
    a.e(f"s_cbranch_scc1 L_{label}_end")
    a.e("s_load_dwordx16 s[4:19], s[0:1], 0")
    a.e("s_load_dwordx8 s[20:27], s[0:1], 64")
    a.e("s_load_dwordx4 s[28:31], s[0:1], 96")
    if code_lines:
        a.e("s_getpc_b64 s[60:61]")
        a.e("s_lshr_b32 s62, s2, 3")
        a.e("v_lshl_add_u32 v2, s62, 9, v0")
        a.e("v_lshrrev_b32 v2, 5, v2")
        a.e(f"v_min_u32 v2, {code_lines - 1}, v2")
        a.e("v_lshlrev_b32 v2, 7, v2")
        a.e("global_load_dword v31, v2, s[60:61]")
    a.e("v_lshrrev_b32 v2, 6, v0")
    a.e("v_and_b32 v1, 63, v0")
    a.e(f"v_readfirstlane_b32 s{S_WAVE}, v2")
    a.e(f"s_and_b32 s{S_H}, s2, 7")
    a.e(f"s_lshl_b32 s{S_H}, s{S_H}, 2")
    a.e("s_lshr_b32 s60, s2, 3")
    a.e("s_and_b32 s60, s60, 3")
    a.e(f"s_add_u32 s{S_H}, s{S_H}, s60")
    a.e(f"s_lshr_b32 s{S_P}, s2, 5")
    a.e(f"s_and_b32 s{S_W3}, s{S_WAVE}, 3")
    a.e("s_waitcnt lgkmcnt(0)")


def kernel_tail(a, label):
    a.flush()
    a.e(f"L_{label}_end:")
    a.e("s_endpgm")
    a.flush()


def descriptor(label, nv=256):
    return f""".p2align 6
.amdhsa_kernel {label}
  .amdhsa_next_free_vgpr {nv}
  .amdhsa_next_free_sgpr 102
  .amdhsa_accum_offset {(nv+3)//4*4}
  .amdhsa_group_segment_fixed_size 0
  .amdhsa_kernarg_size 112
  .amdhsa_user_sgpr_count 2
  .amdhsa_user_sgpr_kernarg_segment_ptr 1
  .amdhsa_system_sgpr_workgroup_id_x 1
.end_amdhsa_kernel
"""


def wave_sum(a, r, t):
    for rot in (8, 4, 2, 1):
        a.e(f"v_add_f32_dpp v{r}, v{r}, v{r} row_ror:{rot} row_mask:0xf bank_mask:0xf")
    a.e(f"v_mov_b32 v{t}, v{r}")
    a.e(f"v_permlane16_swap_b32 v{r}, v{t}")
    a.e(f"v_add_f32 v{r}, v{r}, v{t}")
    a.e(f"v_mov_b32 v{t}, v{r}")
    a.e(f"v_permlane32_swap_b32 v{r}, v{t}")
    a.e(f"v_add_f32 v{r}, v{r}, v{t}")


def round_bf16(a, r):
    a.e(f"v_cvt_pk_bf16_f32 v{r}, v{r}, v{r}")
    a.e(f"v_lshlrev_b32 v{r}, 16, v{r}")


import os
STAMP = bool(os.environ.get("STAMP"))
WS_STAMP = 0x5A00000


def stamp_init(a, kidx):
    if not STAMP:
        return
    srd(a, 92, P_WS, 0x100000, WS_STAMP + kidx * 0x40000)
    a.e(f"s_lshl_b32 s97, s2, 3")
    a.e(f"s_add_u32 s97, s97, s{S_WAVE}")
    a.e(f"s_lshl_b32 s97, s97, 7")


def stamp(a, idx):
    if not STAMP:
        return
    a.e("s_memtime s[98:99]")
    a.e("s_memrealtime s[100:101]")
    a.e("s_waitcnt lgkmcnt(0)")
    a.e("v_mov_b32 v15, s98")
    a.e(f"buffer_store_dword v15, off, s[92:95], s97 offset:{idx*8}")
    a.e("v_mov_b32 v15, s100")
    a.e(f"buffer_store_dword v15, off, s[92:95], s97 offset:{idx*8+4}")
```

```python
from common import *
import p1, p3, p5, os
OPT = os.environ.get('OPT', '')
from p1 import V_LANE, V_L16

SC = " sc1"
SRD_F = 88
F_KV, F_H, F_CTX, F_G, F_S = 0, 128, 256, 384, 512
V_DUM = 31
CODE_LINES = int(os.environ.get('CODE_LINES', '0'))
LDS_H = 131072
S_SPIN = 3
_uid = [0]


_stamp = stamp
def stamp(a, idx, grp=None):
    sel = [c for c in "STU" if c in OPT]
    if grp in (True, 'S'):
        grp = 'S'
    if grp:
        if grp in OPT:
            _stamp(a, idx)
        return
    if sel and idx >= (8 if 'S' in sel or 'U' in sel else 10):
        return
    _stamp(a, idx)


def cap(fn, *args):
    t = Asm()
    fn(t, *args)
    return t.cur


def spread(lst, lo, hi, prio=5):
    n = len(lst)
    return [(lo + (i * (hi - lo + 1)) // n, prio, x) for i, x in enumerate(lst)]


def poll_load(dst, addr, srd_, soff="0"):
    return f"buffer_load_dword v{dst}, v{addr}, s[{srd_}:{srd_+3}], {soff} offen sc1"


def poll_check(a, dst, addr, srd_, expect, soff="0"):
    _uid[0] += 1
    L = f"L_poll{_uid[0]}"
    a.add(Need([v(dst)]))
    a.e(f"v_cmp_gt_u32 vcc, {expect}, v{dst}")
    a.e("s_nop 0")
    a.e(f"s_cbranch_vccz {L}_ok")
    a.flush()
    st = a.st.copy()
    a.e(f"s_mov_b32 s{S_SPIN}, 0x10000")
    a.e(f"{L}:")
    a.e("s_sleep 2")
    a.e(poll_load(dst, addr, srd_, soff))
    a.e("s_waitcnt vmcnt(0)")
    a.e(f"v_cmp_gt_u32 vcc, {expect}, v{dst}")
    a.e(f"s_sub_u32 s{S_SPIN}, s{S_SPIN}, 1")
    a.e(f"s_cbranch_scc1 {L}_ok")
    a.e(f"s_cbranch_vccnz {L}")
    a.flush()
    a.st = st
    a.e(f"{L}_ok:")


def set_flag(ftype, t0, cond_wave, ts=60):
    return [f"v_mov_b32 v{t0}, 1", f"s_lshl_b32 s{ts}, s2, 10", f"s_cmp_eq_u32 s{S_WAVE}, {cond_wave}",
            f"s_cselect_b32 s{ts}, s{ts}, 0x40000",
            f"buffer_store_dword v{t0}, off, s[{SRD_F}:{SRD_F+3}], s{ts} offset:{ftype} sc1"]


V_CD, V_WD1 = 2, 3
S_CSO, S_WSO1, S_CM0, S_WM01 = 64, 72, 80, 81
WSO1 = [72, 73, 78, 79]
SRD_WK, SRD_WV = SRD2, SRD4
S_TC, S_TW = 64, 65


def k_dma_setup(a):
    L = V_LANE
    a.e(f"s_and_b32 s62, s{S_WAVE}, 1")
    a.e(f"s_lshl_b32 s63, s62, 2")
    a.e(f"v_and_b32 v20, 7, v{L}")
    a.e(f"v_lshrrev_b32 v21, 4, v{L}")
    a.e(f"v_xor_b32 v20, v20, v21")
    a.e(f"v_xor_b32 v20, s63, v20")
    a.e(f"v_lshlrev_b32 v20, 4, v20")
    a.e(f"v_lshrrev_b32 v22, 3, v{L}")
    a.e(f"v_lshl_add_u32 v{V_CD}, v22, 10, v20")
    a.e(f"s_lshl_b32 s63, s{S_P}, 18")
    a.e(f"v_add_u32 v{V_CD}, s63, v{V_CD}")
    a.e(f"s_lshr_b32 s63, s{S_WAVE}, 1")
    a.e(f"s_lshl_b32 s74, s63, 4")
    a.e(f"s_add_u32 s74, s74, s62")
    a.e(f"s_lshl_b32 s{S_CM0}, s74, 10")
    a.e(f"s_lshl_b32 s{S_CSO}, s74, 13")
    for j in range(1, 8):
        a.e(f"s_add_u32 s{S_CSO+j}, s{S_CSO}, {j*16384}")
    a.e(f"s_lshl_b32 s74, s62, 3")
    a.e(f"v_lshlrev_b32 v22, 1, v21")
    a.e(f"v_and_b32 v20, 15, v{L}")
    a.e(f"v_xor_b32 v20, v20, v22")
    a.e(f"v_xor_b32 v20, s74, v20")
    a.e(f"v_lshlrev_b32 v20, 4, v20")
    a.e(f"v_lshl_add_u32 v{V_WD1}, v21, 13, v20")
    a.e(f"s_lshl_b32 s74, s{S_H}, 8")
    a.e(f"v_add_u32 v{V_WD1}, s74, v{V_WD1}")
    a.e(f"s_lshl_b32 s63, s63, 3")
    a.e(f"s_lshl_b32 s74, s62, 1")
    a.e(f"s_add_u32 s63, s63, s74")
    a.e(f"s_lshl_b32 s{WSO1[0]}, s63, 15")
    for j in range(1, 4):
        a.e(f"s_add_u32 s{WSO1[j]}, s{WSO1[0]}, {((j&1)+4*(j>>1))*32768}")
    a.e(f"s_lshl_b32 s{S_WM01}, s63, 10")
    a.e(f"s_add_u32 s{S_WM01}, s{S_WM01}, {p1.LDS_W}")


def k_dma(stage):
    par = stage & 1
    g = []
    for j in range(8):
        g.append([f"s_add_u32 m0, s{S_CM0}, {par*32768 + j*2048}",
                  I(f"buffer_load_dwordx4 v{V_CD}, s[{SRD1}:{SRD1+3}], s{S_CSO+j} offen lds", tag=("p1", stage))])
    for mat in range(2):
        sr = SRD_WV if mat else SRD_WK
        for j in range(4):
            g.append([f"s_add_u32 m0, s{S_WM01}, {par*32768 + mat*16384 + ((j&1)+4*(j>>1))*1024}",
                      I(f"buffer_load_dwordx4 v{V_WD1}, s[{sr}:{sr+3}], s{WSO1[j]} offen lds", tag=("p1", stage))])
    g = [x for pair in zip(g[:8], g[8:]) for x in pair]
    adv = [f"v_add_u32 v{V_CD}, 128, v{V_CD}", f"v_add_u32 v{V_WD1}, 0x80000, v{V_WD1}"]
    return g, adv


def touch_setup(a):
    L = V_LANE
    a.e(f"v_lshrrev_b32 v{V_CD}, 2, v{L}")
    a.e(f"v_lshlrev_b32 v{V_CD}, 10, v{V_CD}")
    a.e(f"s_and_b32 s62, s{S_H}, 3")
    a.e(f"s_lshl_b32 s62, s62, 2")
    a.e(f"s_add_u32 s62, s62, s{S_W3}")
    a.e(f"s_lshl_b32 s62, s62, 14")
    a.e(f"s_lshl_b32 s63, s{S_P}, 18")
    a.e(f"s_add_u32 s{S_TC}, s62, s63")
    a.e(f"v_and_b32 v{V_WD1}, 32, v{L}")
    a.e(f"v_lshlrev_b32 v{V_WD1}, 8, v{V_WD1}")
    a.e(f"v_and_b32 v20, 16, v{L}")
    a.e(f"v_lshl_add_u32 v{V_WD1}, v20, 3, v{V_WD1}")
    a.e(f"s_lshl_b32 s62, s{S_P}, 2")
    a.e(f"s_add_u32 s62, s62, s{S_W3}")
    a.e(f"s_lshl_b32 s62, s62, 14")
    a.e(f"s_lshl_b32 s63, s{S_H}, 8")
    a.e(f"s_add_u32 s{S_TW}, s62, s63")


def touch_p1(stage):
    return [f"s_add_u32 s62, s{S_TC}, {stage*128}",
            f"buffer_load_dword v{V_DUM}, v{V_CD}, s[{SRD1}:{SRD1+3}], s62 offen",
            f"s_add_u32 s62, s{S_TW}, {stage*0x80000}",
            f"buffer_load_dword v{V_DUM}, v{V_WD1}, s[{SRD_WK}:{SRD_WK+3}], s62 offen",
            f"buffer_load_dword v{V_DUM}, v{V_WD1}, s[{SRD_WV}:{SRD_WV+3}], s62 offen"]


S_ROW = 77


LNB = (128, 144)


def ln_issue(a):
    srd(a, SRD0, P_X, 2097152)
    a.e(f"s_lshl_b32 s{S_ROW}, s2, 3")
    a.e(f"s_lshl_b32 s61, s{S_W3}, 1")
    a.e(f"s_add_u32 s{S_ROW}, s{S_ROW}, s61")
    a.e(f"s_lshl_b32 s61, s{S_ROW}, 10")
    for r, b in enumerate(LNB):
        a.e(f"buffer_load_dwordx4 {v(b,4)}, v{V_L16}, s[{SRD0}:{SRD0+3}], s61 offen offset:{r*1024}")


def ln_row(a, b, r):
    F, M, T, V_ = b + 4, b + 12, b + 13, b + 14
    for i in range(4):
        a.e(f"v_lshlrev_b32 v{F+2*i}, 16, v{b+i}")
        a.e(f"v_and_b32 v{F+1+2*i}, 0xffff0000, v{b+i}")
    for i in range(4):
        a.e(f"v_add_f32 v{b+i}, v{F+2*i}, v{F+1+2*i}")
    a.e(f"v_add_f32 v{b}, v{b}, v{b+1}")
    a.e(f"v_add_f32 v{b+2}, v{b+2}, v{b+3}")
    a.e(f"v_add_f32 v{M}, v{b}, v{b+2}")
    wave_sum(a, M, T)
    a.e(f"v_mul_f32 v{M}, 0x3b000000, v{M}")
    for h in range(2):
        for i in range(4):
            a.e(f"v_sub_f32 v{b+i}, v{F+4*h+i}, v{M}")
        if h == 0:
            a.e(f"v_mul_f32 v{V_}, v{b}, v{b}")
            a.e(f"v_mul_f32 v{V_+1}, v{b+1}, v{b+1}")
        else:
            a.e(f"v_fmac_f32 v{V_}, v{b}, v{b}")
            a.e(f"v_fmac_f32 v{V_+1}, v{b+1}, v{b+1}")
        a.e(f"v_fmac_f32 v{V_}, v{b+2}, v{b+2}")
        a.e(f"v_fmac_f32 v{V_+1}, v{b+3}, v{b+3}")
    a.e(f"v_add_f32 v{V_}, v{V_}, v{V_+1}")
    wave_sum(a, V_, T)
    a.e(f"v_mul_f32 v{V_}, 0x3b000000, v{V_}")
    round_bf16(a, M)
    round_bf16(a, V_)
    a.e(f"v_add_f32 v{V_}, 0x3727c5ac, v{V_}")
    round_bf16(a, V_)
    a.e(f"v_sqrt_f32 v{V_}, v{V_}")
    round_bf16(a, V_)
    a.e(f"v_rcp_f32 v{V_}, v{V_}")
    for i in range(8):
        a.e(f"v_sub_f32 v{F+i}, v{F+i}, v{M}")
    for i in range(4):
        a.e(f"v_cvt_pk_bf16_f32 v{b+i}, v{F+2*i}, v{F+1+2*i}")
    for i in range(4):
        a.e(f"v_lshlrev_b32 v{F+2*i}, 16, v{b+i}")
        a.e(f"v_and_b32 v{F+1+2*i}, 0xffff0000, v{b+i}")
    for i in range(8):
        a.e(f"v_mul_f32 v{F+i}, v{F+i}, v{V_}")
    for i in range(4):
        a.e(f"v_cvt_pk_bf16_f32 v{b+i}, v{F+2*i}, v{F+1+2*i}")
    a.e(f"ds_write_b128 v30, {v(b,4)} offset:{16*r}")


def ln_compute(a):
    a.e(f"s_lshl_b32 s60, s{S_W3}, 5")
    a.e(f"s_add_u32 s60, s60, {LDS_H}")
    a.e(f"v_lshlrev_b32 v30, 7, v{V_LANE}")
    a.e("v_add_u32 v30, s60, v30")
    r0, r1 = cap(ln_row, LNB[0], 0), cap(ln_row, LNB[1], 1)
    for x, y in zip(r0, r1):
        a.add([x, y])


def ln_store(a):
    L = V_LANE
    a.e(f"s_lshl_b32 s60, s{S_WAVE}, 10")
    a.e(f"s_add_u32 s60, s60, {LDS_H}")
    a.e(f"v_add_u32 v20, s60, v{V_L16}")
    a.e("ds_read_b128 v[16:19], v20")
    a.e(f"v_lshrrev_b32 v21, 3, v{L}")
    a.e(f"v_lshlrev_b32 v21, 8, v21")
    a.e(f"v_and_b32 v22, 7, v{L}")
    a.e(f"v_lshl_add_u32 v21, v22, 4, v21")
    a.e(f"s_lshr_b32 s61, s2, 1")
    a.e("s_lshl_b32 s61, s61, 14")
    a.e(f"s_and_b32 s60, s2, 1")
    a.e("s_lshl_b32 s60, s60, 7")
    a.e("s_add_u32 s61, s61, s60")
    a.e(f"s_lshl_b32 s60, s{S_WAVE}, 11")
    a.e("s_add_u32 s61, s61, s60")
    a.e(f"buffer_store_dwordx4 v[16:19], v21, s[{SRD3}:{SRD3+3}], s61 offen{SC}", tag="xn")


def setup_reads(a):
    L = V_LANE
    V_CA, V_WA_ = p1.V_CA, p1.V_WA
    a.e(f"v_and_b32 v20, 15, v{L}")
    a.e(f"v_lshrrev_b32 v21, 4, v{L}")
    a.e(f"v_lshrrev_b32 v22, 1, v20")
    a.e(f"v_xor_b32 v22, v22, v21")
    a.e(f"v_lshlrev_b32 v22, 4, v22")
    a.e(f"v_lshl_add_u32 v22, v20, 7, v22")
    a.e(f"s_lshl_b32 s63, s{S_W3}, 13")
    a.e(f"v_add_u32 v{V_CA}, s63, v22")
    a.e(f"v_xor_b32 v{V_CA+1}, 64, v{V_CA}")
    a.e(f"v_lshrrev_b32 v22, 2, v20")
    a.e(f"v_and_b32 v23, 1, v21")
    a.e(f"v_lshl_add_u32 v23, v23, 2, v22")
    a.e(f"v_lshl_add_u32 v22, v21, 3, v22")
    a.e(f"v_lshlrev_b32 v22, 8, v22")
    a.e(f"v_and_b32 v24, 3, v{L}")
    a.e(f"v_lshl_add_u32 v22, v24, 3, v22")
    a.e(f"s_lshr_b32 s74, s{S_WAVE}, 2")
    a.e(f"s_lshl_b32 s74, s74, 14")
    a.e(f"s_add_u32 s74, s74, {p1.LDS_W}")
    a.e(f"v_add_u32 v22, s74, v22")
    for d in range(8):
        a.e(f"v_xor_b32 v24, {d}, v23")
        a.e(f"v_lshl_add_u32 v{V_WA_+d}, v24, 5, v22")


def late_touch(a, which):
    L = V_LANE
    if which == 0:
        srd(a, SRD0, P_WQ, 0x400000)
        a.e(f"v_lshrrev_b32 v21, 2, v{L}")
        a.e(f"v_lshlrev_b32 v21, 13, v21")
        a.e(f"v_and_b32 v20, 2, v{L}")
        a.e(f"v_lshl_add_u32 v20, v20, 6, v21")
        a.e(f"s_lshl_b32 s62, s{S_P}, 19")
        a.e(f"s_lshl_b32 s63, s{S_W3}, 17")
        a.e(f"s_add_u32 s62, s62, s63")
        a.e(f"s_lshl_b32 s63, s{S_H}, 8")
        a.e(f"s_add_u32 s62, s62, s63")
        a.e(f"buffer_load_dword v{V_DUM}, v20, s[{SRD0}:{SRD0+3}], s62 offen")
    elif which == 1:
        srd(a, SRD0, P_W1, 512 * 3584)
        a.e(f"v_lshrrev_b32 v20, 2, v{L}")
        a.e(f"v_mul_u32_u24 v20, 3584, v20")
        a.e(f"s_lshl_b32 s62, s{S_P}, 2")
        a.e(f"s_add_u32 s62, s62, s{S_W3}")
        a.e(f"s_mul_i32 s62, s62, {16*3584}")
        a.e(f"s_lshl_b32 s63, s{S_H}, 7")
        a.e(f"s_add_u32 s62, s62, s63")
        a.e(f"buffer_load_dword v{V_DUM}, v20, s[{SRD0}:{SRD0+3}], s62 offen")
        srd(a, SRD0, P_B1, 3584)
        a.e(f"buffer_load_dword v{V_DUM}, off, s[{SRD0}:{SRD0+3}], s63")
    elif which == 2:
        srd(a, SRD0, P_WO, 0x400000)
        a.e(f"v_lshrrev_b32 v20, 1, v{L}")
        a.e(f"v_lshlrev_b32 v20, 7, v20")
        a.e(f"s_lshl_b32 s62, s2, 2")
        a.e(f"s_add_u32 s62, s62, s{S_W3}")
        a.e(f"s_lshl_b32 s63, s62, 12")
        a.e(f"buffer_load_dword v{V_DUM}, v20, s[{SRD0}:{SRD0+3}], s63 offen")
    else:
        srd(a, SRD0, P_W2, 1792 * 1024)
        a.e(f"v_lshrrev_b32 v20, 2, v{L}")
        a.e(f"v_min_u32 v20, 13, v20")
        a.e(f"v_lshlrev_b32 v20, 7, v20")
        a.e(f"s_lshl_b32 s62, s2, 2")
        a.e(f"s_add_u32 s62, s62, s{S_W3}")
        a.e(f"s_mul_i32 s63, s62, 1792")
        a.e(f"buffer_load_dword v{V_DUM}, v20, s[{SRD0}:{SRD0+3}], s63 offen")


def p1_stage(a, isv, st, fl1=(), pre_bar=None, fl2=(), wait=None):
    par = st & 1
    FA, FB = p1.F0, p1.F0 + 48
    a.add(Need([v(FA, 48)]))
    rd = p1.p1_reads(par, 1, FB)
    a.add(weave(p1.p1_mfmas(isv, FA, st == 0), [(i + i // 4, 0, x) for i, x in enumerate(rd)] + list(fl1)))
    if pre_bar:
        pre_bar()
    a.add([WaitTag(lambda t: t == ("p1", st + 1) or (wait is not None and t == wait), lg0=True), "s_barrier"])
    fl = list(fl2)
    if st < 7:
        rd = p1.p1_reads(1 - par, 0, FA)
        fl += [(i + i // 4, 0, x) for i, x in enumerate(rd)]
    if st < 6 and not isv:
        g, adv = k_dma(st + 2)
        for j, (m0, ld) in enumerate(g):
            fl.append(((3 * j) // 2, 2, m0))
            fl.append(((3 * j) // 2 + 1, 1, ld))
        fl.append((26, 2, adv[0]))
        fl.append((27, 2, adv[1]))
    a.add(weave(p1.p1_mfmas(isv, FB, False), fl))


S_KVS = 80
KVST = [0, 0, 1, 1, 2, 2, 3, 3, 4, 4, 5, 5] if 'p' not in OPT else [0, 0, 0, 1, 1, 1, 2, 2, 3, 3, 4, 4]
KVFLAG = 6
PK = 112


def p1_pack(a, isv):
    ACC = p1.ACC
    a.e(f"s_lshl_b32 s60, s{S_H}, 20")
    a.e(f"s_lshl_b32 s61, s{S_P}, 2")
    a.e(f"s_add_u32 s61, s61, s{S_W3}")
    a.e(f"s_lshl_b32 s61, s61, 15")
    a.e(f"s_add_u32 s60, s60, s61")
    a.e(f"s_add_u32 s{S_KVS}, s60, {WS_KV + (16384 if isv else 0)}")
    for k in range(1, 4):
        a.e(f"s_add_u32 s{S_KVS+k}, s{S_KVS}, {4096*k}")

    def src(k, t):
        if not isv:
            return ACC + 4 * ((2 * t) * 4 + k), ACC + 4 * ((2 * t + 1) * 4 + k)
        u, d = k >> 1, 2 * t + (k & 1)
        return ACC + 4 * (d * 4 + 2 * u), ACC + 4 * (d * 4 + 2 * u + 1)

    def pk(dst, b0, b1):
        a.e(f"v_cvt_pk_bf16_f32 v{dst}, v{b0}, v{b0+1}")
        a.e(f"v_cvt_pk_bf16_f32 v{dst+1}, v{b0+2}, v{b0+3}")
        a.e(f"v_cvt_pk_bf16_f32 v{dst+2}, v{b1}, v{b1+1}")
        a.e(f"v_cvt_pk_bf16_f32 v{dst+3}, v{b1+2}, v{b1+3}")
    for k in range(4):
        pk(80 + 4 * k, *src(k, 0))
        a.e(f"buffer_store_dwordx4 {v(80+4*k,4)}, v{V_L16}, s[{SRD3}:{SRD3+3}], s{S_KVS+k} offen{SC}", tag="kvst")
    for t in range(1, 4):
        for k in range(4):
            pk(PK + 4 * ((t - 1) * 4 + k), *src(k, t))


def kv_deferred(i):
    t, k = 1 + i // 4, i % 4
    return I(f"buffer_store_dwordx4 {v(PK+4*i,4)}, v{V_L16}, s[{SRD3}:{SRD3+3}], s{S_KVS+k} offen offset:{t*1024}{SC}", tag="kvst")


V_QA2 = 20
AF = 64
QSLOT = [0, 16384, 65536, 81920]


def p2_dma(stage):
    sl = stage & 3
    r = []
    for j in range(2):
        r.append(f"s_add_u32 m0, s{p3.S_QM0}, {QSLOT[sl] + j*1024}")
        r.append(I(f"buffer_load_dwordx4 v{p3.V_QD}, s[{SRD0}:{SRD0+3}], s{p3.S_QSO+j} offen lds", tag=("p2", stage)))
    r.append(f"s_add_u32 m0, s{p3.S_HM0}, {sl*8192}")
    r.append(I(f"buffer_load_dwordx4 v{p3.V_HD}, s[{SRD1}:{SRD1+3}], s{p3.S_HSO} offen lds", tag=("p2", stage)))
    r += [f"v_add_u32 v{p3.V_QD}, 0x80000, v{p3.V_QD}", f"v_add_u32 v{p3.V_HD}, {64*3584}, v{p3.V_HD}"]
    return r


def p2_read(stage, ks, d):
    sl = stage & 3
    r = []
    for e in range(2):
        if d < 8:
            base = (p3.V_QA if sl < 2 else V_QA2) + d
            r.append(f"ds_read_b64_tr_b16 {v(AF+4*d+2*e,2)}, v{base} offset:{(sl&1)*16384 + ks*8192 + e*1024}")
        else:
            r.append(f"ds_read_b64_tr_b16 {v(AF+4*d+2*e,2)}, v{p3.V_HA+d-8} offset:{sl*8192 + ks*4096 + e*512}")
    return r


def p2_part(k, nxt, extra):
    fl = list(extra)
    fl.append((-1, 0, Need([v(AF, 24), v(p3.BR + 8 * (k & 3), 8)])))
    fl.append((11, 9, Need([v(AF + 24, 24)])))
    if nxt:
        for d in range(12):
            r = p2_read(nxt[0], nxt[1], d)
            fl.append((2 * d + 1, 0, r[0]))
            fl.append((min(2 * d + 2, 23), 0, r[1]))
    return weave(p3.p2_mfmas(k, AF), fl)


def p2_setup_reads(a):
    L = V_LANE
    t = 72
    a.e(f"v_and_b32 v{t}, 15, v{L}")
    a.e(f"v_lshrrev_b32 v{t+1}, 4, v{L}")
    a.e(f"v_lshrrev_b32 v{t+2}, 2, v{t}")
    a.e(f"v_and_b32 v{t+3}, 1, v{t+1}")
    a.e(f"v_lshl_add_u32 v{t+4}, v{t+3}, 2, v{t+2}")
    a.e(f"v_lshrrev_b32 v{t+5}, 1, v{t+2}")
    a.e(f"v_lshl_add_u32 v{t+5}, v{t+3}, 1, v{t+5}")
    a.e(f"v_lshl_add_u32 v{t+2}, v{t+1}, 3, v{t+2}")
    a.e(f"v_and_b32 v{t+6}, 3, v{L}")
    a.e(f"v_lshlrev_b32 v{t+6}, 3, v{t+6}")
    a.e(f"v_lshl_add_u32 v{t+7}, v{t+2}, 8, v{t+6}")
    a.e(f"v_lshl_add_u32 v13, v{t+2}, 7, v{t+6}")
    a.e(f"v_add_u32 v13, {LDS_H}, v13")
    for d in range(8):
        a.e(f"v_xor_b32 v{t}, {d}, v{t+4}")
        a.e(f"v_lshl_add_u32 v{p3.V_QA+d}, v{t}, 5, v{t+7}")
        a.e(f"v_add_u32 v{V_QA2+d}, 0x10000, v{p3.V_QA+d}")
    for f in range(4):
        a.e(f"v_xor_b32 v{t}, {f}, v{t+5}")
        a.e(f"v_lshl_add_u32 v{p3.V_HA+f}, v{t}, 5, v13")


BIAS = 64


def bias_load(a):
    L = V_LANE
    srd(a, SRD2, P_B1, 1792 * 2)
    a.e(f"v_lshrrev_b32 v30, 4, v{L}")
    a.e(f"v_lshlrev_b32 v30, 3, v30")
    a.e(f"s_lshl_b32 s63, s{S_H}, 7")
    for f in range(4):
        a.e(f"buffer_load_dwordx2 {v(BIAS+2*f,2)}, v30, s[{SRD2}:{SRD2+3}], s63 offen offset:{f*32}")


def bias_apply(a):
    for f in range(4):
        for qb in range(2):
            b = p3.HACC + 4 * (f * 2 + qb)
            a.e(f"v_lshlrev_b32 v{b}, 16, v{BIAS+2*f}")
            a.e(f"v_and_b32 v{b+1}, 0xffff0000, v{BIAS+2*f}")
            a.e(f"v_lshlrev_b32 v{b+2}, 16, v{BIAS+2*f+1}")
            a.e(f"v_and_b32 v{b+3}, 0xffff0000, v{BIAS+2*f+1}")


def xload(k):
    r = []
    for qb in range(2):
        dst = p3.BR + 4 * ((k & 3) * 2 + qb)
        so = f"s{p3.S_16K}" if qb else "0"
        r.append(f"buffer_load_dwordx4 {v(dst,4)}, v{p3.V_XO}, s[{SRD3}:{SRD3+3}], {so} offen offset:{(k&1)*1024}{SC}")
    if k & 1:
        r.append(f"v_add_u32 v{p3.V_XO}, 2048, v{p3.V_XO}")
    return r


def xn_setup(a):
    a.e(f"s_lshl_b32 s63, s{p3.S_Q0}, 10")
    a.e(f"v_add_u32 v{p3.V_XO}, s63, v{V_L16}")
    a.e(f"s_mov_b32 s{p3.S_16K}, 16384")


def xn_touch(a):
    a.e(f"s_and_b32 s62, s{S_H}, 3")
    a.e(f"s_lshl_b32 s62, s62, 3")
    a.e(f"s_add_u32 s62, s62, s{S_WAVE}")
    a.e(f"s_sub_u32 s63, 15, s{S_P}")
    a.e(f"s_cmp_lt_u32 s62, 16")
    a.e(f"s_cselect_b32 s63, s{S_P}, s63")
    a.e(f"s_lshl_b32 s63, s63, 4")
    a.e(f"s_and_b32 s62, s62, 15")
    a.e(f"s_add_u32 s62, s62, s63")
    a.e(f"s_lshl_b32 s62, s62, 13")
    a.e(f"v_lshlrev_b32 v30, 7, v{V_LANE}")
    a.e(f"buffer_load_dword v{V_DUM}, v30, s[{SRD3}:{SRD3+3}], s62 offen sc1")


V_WD, V_AD, V_PD, V_PA = 8, 9, 11, 12
V_WA, V_BA = 22, 26
V_GA, V_GB = 27, 29
V_XA, V_BB = 10, 13
S_J, S_RB, S_CB, S_TILE = 6, 7, 8, 9
S_WSO, S_ASO, S_WM0, S_AM0 = 10, 16, 18, 19
S_PP, S_XO = 20, 21
FR, GACC, SACC, XR, BR2 = 32, 128, 192, 144, 152
NG, NS = 14, 16
NT = NG + NS
SRD_W2, SRD_WO, SRD_H, SRD_C = SRD0, SRD1, SRD2, SRD5
LDS_OWN = 131072
CTXFLAG = 6


def smask(stage):
    return 0x10000 if stage % 2 == 0 else 0x8000


def p5_ids(a):
    a.e(f"s_and_b32 s60, s2, 7")
    a.e(f"s_lshr_b32 s61, s2, 3")
    a.e(f"s_and_b32 s{S_J}, s60, 3")
    a.e(f"s_lshr_b32 s60, s60, 2")
    a.e(f"s_lshl_b32 s60, s60, 3")
    a.e(f"s_lshr_b32 s{S_RB}, s61, 2")
    a.e(f"s_add_u32 s{S_RB}, s{S_RB}, s60")
    a.e(f"s_and_b32 s{S_CB}, s61, 3")
    a.e(f"s_lshl_b32 s{S_TILE}, s{S_RB}, 2")
    a.e(f"s_add_u32 s{S_TILE}, s{S_TILE}, s{S_CB}")
    a.e(f"s_sub_u32 s60, 15, s{S_RB}")
    a.e(f"s_min_u32 s{S_PP}, s60, s{S_RB}")
    srd(a, SRD_W2, P_W2, 1792 * 1024)
    srd(a, SRD_WO, P_WO, 0x400000)
    srd(a, SRD_H, P_WS, 0x700000, WS_H)


def ring0(a, dst):
    a.e(f"s_and_b32 s{dst}, s{p3.S_T}, 2")
    a.e(f"s_cmp_eq_u32 s{dst}, 0")
    a.e(f"s_mov_b32 s61, 0x10000")
    a.e(f"s_cselect_b32 s{dst}, 0x8000, s61")


def mbase2(a, dst):
    a.e(f"s_and_b32 s{dst}, s{S_J}, 1")
    a.e(f"s_lshl_b32 s{dst}, s{dst}, 7")
    a.e(f"s_lshl_b32 s61, s{S_CB}, 8")
    a.e(f"s_add_u32 s{dst}, s{dst}, s61")


def qbase16(a, dst):
    a.e(f"s_lshr_b32 s{dst}, s{S_J}, 1")
    a.e(f"s_lshl_b32 s{dst}, s{dst}, 2")
    a.e(f"s_lshl_b32 s61, s{S_RB}, 3")
    a.e(f"s_add_u32 s{dst}, s{dst}, s61")


def loader_setup(a, skip):
    L = V_LANE
    a.e(f"v_lshrrev_b32 v17, 4, v{L}")
    a.e(f"v_lshlrev_b32 v17, 1, v17")
    a.e(f"v_and_b32 v16, 7, v{L}")
    a.e(f"v_xor_b32 v16, v16, v17")
    a.e(f"v_lshlrev_b32 v16, 4, v16")
    a.e(f"v_lshrrev_b32 v17, 3, v{L}")
    a.e(f"v_lshl_add_u32 v16, v17, 10, v16")
    mbase2(a, 62)
    if skip:
        a.e(f"s_add_u32 s62, s62, {skip*0x20000}")
    a.e(f"v_add_u32 v{V_WD}, s62, v16")
    a.e(f"s_lshl_b32 s{S_WSO}, s{S_W3}, 15")
    for j in range(1, 4):
        a.e(f"s_add_u32 s{S_WSO+j}, s{S_WSO}, {j*8192}")
    ring0(a, 60)
    if skip:
        assert skip == 2
        a.e("s_xor_b32 s60, s60, 0x18000")
    a.e(f"s_lshl_b32 s{S_WM0}, s{S_W3}, 12")
    a.e(f"s_add_u32 s{S_WM0}, s{S_WM0}, s60")
    a.e(f"s_add_u32 s{S_AM0}, s{S_WM0}, 16384")
    qbase16(a, 62)
    a.e(f"s_add_u32 s62, s62, s{S_W3}")
    a.e(f"s_mul_i32 s62, s62, {56*1024}")
    if skip:
        a.e(f"s_add_u32 s62, s62, {skip*4096}")
    a.e(f"v_add_u32 v{V_AD}, s62, v{V_L16}")


def s_phase_w(a):
    L = V_LANE
    a.e(f"s_and_b32 s62, s{S_W3}, 1")
    a.e(f"s_lshl_b32 s63, s62, 2")
    a.e(f"v_lshrrev_b32 v17, 4, v{L}")
    a.e(f"v_or_b32 v18, s63, v17")
    a.e(f"v_lshlrev_b32 v18, 1, v18")
    a.e(f"v_and_b32 v16, 15, v{L}")
    a.e(f"v_xor_b32 v16, v16, v18")
    a.e(f"v_lshlrev_b32 v16, 4, v16")
    a.e(f"v_lshl_add_u32 v16, v17, 10, v16")
    a.e(f"s_lshl_b32 s63, s{S_CB}, 8")
    a.e(f"s_lshl_b32 s61, s{S_J}, 20")
    a.e(f"s_add_u32 s63, s63, s61")
    a.e(f"v_add_u32 v{V_WD}, s63, v16")
    a.e(f"s_lshr_b32 s63, s{S_W3}, 1")
    a.e(f"s_lshl_b32 s63, s63, 3")
    a.e(f"s_add_u32 s63, s63, s62")
    a.e(f"s_lshl_b32 s{S_WSO}, s63, 12")
    for j in range(1, 4):
        a.e(f"s_add_u32 s{S_WSO+j}, s{S_WSO}, {j*8192}")
    a.e(f"s_and_b32 s{S_WM0}, s{S_WM0}, 0x18000")
    a.e(f"s_lshl_b32 s63, s63, 10")
    a.e(f"s_add_u32 s{S_WM0}, s{S_WM0}, s63")


def s_phase_a(a):
    a.e(f"s_lshl_b32 s63, s{S_RB}, 3")
    a.e(f"s_lshl_b32 s62, s{S_W3}, 1")
    a.e(f"s_add_u32 s63, s63, s62")
    a.e(f"s_lshl_b32 s{S_ASO}, s63, 17")
    a.e(f"s_add_u32 s{S_ASO+1}, s{S_ASO}, 0x20000")
    a.e(f"s_lshl_b32 s63, s{S_J}, 15")
    a.e(f"v_add_u32 v{V_AD}, s63, v{V_L16}")


def dma_w(stage):
    if 'm' in OPT and stage > 3:
        return []
    isg = stage < NG
    ws = SRD_W2 if isg else SRD_WO
    r = cap(s_phase_w) if stage == NG else []
    for j in range(4):
        r.append(f"s_add_u32 m0, s{S_WM0}, {j*(1024 if isg else 2048)}")
        r.append(I(f"buffer_load_dwordx4 v{V_WD}, s[{ws}:{ws+3}], s{S_WSO+j} offen lds", tag=("p5", stage)))
    r.append(f"v_add_u32 v{V_WD}, {hex(0x20000 if isg else 0x10000)}, v{V_WD}")
    r.append(f"s_xor_b32 s{S_WM0}, s{S_WM0}, {hex(smask(stage))}")
    return r


def dma_a(stage):
    if 'm' in OPT and stage > 3:
        return []
    r = []
    if stage < NG:
        r.append(f"s_mov_b32 m0, s{S_AM0}")
        for ks in range(4):
            r.append(I(f"buffer_load_dwordx4 v{V_AD}, s[{SRD_H}:{SRD_H+3}], 0 offen offset:{ks*1024}{SC} lds", tag=("p5", stage)))
        r.append(f"v_add_u32 v{V_AD}, 4096, v{V_AD}")
    else:
        if stage == NG:
            r += cap(s_phase_a)
        for i in range(2):
            r.append(f"s_add_u32 m0, s{S_AM0}, {i*2048}")
            for ks in range(2):
                r.append(I(f"buffer_load_dwordx4 v{V_AD}, s[{SRD_C}:{SRD_C+3}], s{S_ASO+i} offen offset:{ks*1024}{SC} lds", tag=("p5", stage)))
        r.append(f"v_add_u32 v{V_AD}, 2048, v{V_AD}")
    r.append(f"s_xor_b32 s{S_AM0}, s{S_AM0}, {hex(smask(stage))}")
    return r


def flag_addr(a, first, n, ftype):
    L = V_LANE
    a.e(f"v_min_u32 v16, {n-1}, v{L}")
    if first is not None:
        a.e(f"v_add_u32 v16, s{first}, v16")
    a.e(f"v_lshrrev_b32 v17, 2, v16")
    a.e(f"v_and_b32 v16, 3, v16")
    a.e(f"v_lshl_add_u32 v16, v16, 3, v17")
    a.e(f"s_lshl_b32 s62, s{S_PP}, 5")
    a.e(f"v_add_u32 v16, s62, v16")
    a.e(f"v_lshlrev_b32 v16, 10, v16")
    a.e(f"v_add_u32 v{V_PA}, {ftype}, v16")


def compute_setup(a):
    L = V_LANE
    ring0(a, 60)
    if NG % 4 == 2:
        a.e("s_xor_b32 s74, s60, 0x18000")
    else:
        assert NG % 4 == 0
        a.e("s_mov_b32 s74, s60")
    a.e(f"v_and_b32 v16, 15, v{L}")
    a.e(f"v_lshrrev_b32 v17, 4, v{L}")
    a.e(f"v_lshrrev_b32 v18, 2, v16")
    a.e(f"v_lshl_add_u32 v18, v17, 2, v18")
    a.e(f"v_and_b32 v19, 7, v18")
    a.e(f"v_and_b32 v20, 3, v{L}")
    a.e(f"v_lshlrev_b32 v20, 3, v20")
    a.e(f"v_lshl_add_u32 v21, v18, 7, v20")
    a.e(f"v_lshl_add_u32 v18, v18, 8, v20")
    a.e(f"v_add_u32 v18, s74, v18")
    a.e(f"v_add_u32 v21, s60, v21")
    a.e(f"v_lshrrev_b32 v30, 1, v19")
    a.e(f"s_and_b32 s62, s{S_W3}, 1")
    a.e(f"s_lshl_b32 s63, s62, 1")
    a.e(f"s_lshl_b32 s62, s62, 2")
    a.e(f"v_xor_b32 v19, s62, v19")
    a.e(f"v_xor_b32 v30, s63, v30")
    for m in range(4):
        a.e(f"v_xor_b32 v20, {m}, v19")
        a.e(f"v_lshl_add_u32 v{V_WA+m}, v20, 5, v18")
    for m in range(2):
        a.e(f"v_xor_b32 v20, {m}, v30")
        a.e(f"v_lshl_add_u32 v{V_GA+m}, v20, 5, v21")
    a.e(f"s_lshr_b32 s62, s{S_W3}, 1")
    a.e(f"s_lshl_b32 s62, s62, 13")
    a.e(f"s_add_u32 s62, s62, 16384")
    a.e(f"s_add_u32 s63, s62, s74")
    a.e(f"v_add_u32 v{V_BA}, s63, v{V_L16}")
    a.e(f"s_add_u32 s63, s62, s60")
    a.e(f"v_add_u32 v{V_GB}, s63, v{V_L16}")
    a.e(f"v_lshlrev_b32 v{V_BB}, 3, v17")
    a.e(f"v_lshl_add_u32 v{V_XA}, v16, 10, v{V_BB}")
    mbase2(a, 62)
    a.e(f"s_and_b32 s63, s{S_W3}, 1")
    a.e(f"s_lshl_b32 s63, s63, 6")
    a.e(f"s_add_u32 s62, s62, s63")
    a.e(f"v_add_u32 v{V_BB}, s62, v{V_BB}")
    qbase16(a, 63)
    a.e(f"s_lshr_b32 s61, s{S_W3}, 1")
    a.e(f"s_lshl_b32 s61, s61, 1")
    a.e(f"s_add_u32 s63, s63, s61")
    a.e(f"s_lshl_b32 s63, s63, 14")
    a.e(f"s_add_u32 s{S_XO}, s63, s62")


def p4_touch(a):
    L = V_LANE
    qbase16(a, 60)
    a.e(f"s_add_u32 s60, s60, s{S_CB}")
    a.e(f"s_lshl_b32 s60, s60, 2")
    a.e(f"s_add_u32 s60, s60, s{S_W3}")
    a.e(f"s_mul_i32 s60, s60, {14*1024}")
    a.e(f"v_lshlrev_b32 v16, 7, v{L}")
    a.e(f"buffer_load_dword v{V_DUM}, v16, s[{SRD_H}:{SRD_H+3}], s60 offen sc1")
    a.e(f"v_min_u32 v16, 47, v{L}")
    a.e(f"v_lshlrev_b32 v16, 7, v16")
    a.e(f"s_add_u32 s60, s60, 8192")
    a.e(f"buffer_load_dword v{V_DUM}, v16, s[{SRD_H}:{SRD_H+3}], s60 offen sc1")
    a.e(f"s_and_b32 s60, s{S_RB}, 7")
    a.e(f"s_lshl_b32 s60, s60, 2")
    a.e(f"s_add_u32 s60, s60, s{S_W3}")
    mbase2(a, 62)
    a.e(f"s_mul_i32 s61, s60, {56*1024}")
    a.e(f"s_add_u32 s61, s61, s62")
    a.e(f"v_min_u32 v16, 55, v{L}")
    a.e(f"v_lshlrev_b32 v16, 10, v16")
    a.e(f"buffer_load_dword v{V_DUM}, v16, s[{SRD_W2}:{SRD_W2+3}], s61 offen")
    a.e(f"v_lshrrev_b32 v17, 1, v{L}")
    a.e(f"v_and_b32 v18, 1, v{L}")
    a.e(f"v_lshlrev_b32 v18, 7, v18")
    a.e(f"v_lshl_add_u32 v17, v17, 10, v18")
    a.e(f"s_lshl_b32 s61, s{S_J}, 5")
    a.e(f"s_add_u32 s60, s60, s61")
    a.e(f"s_lshl_b32 s61, s60, 15")
    a.e(f"s_lshl_b32 s62, s{S_CB}, 8")
    a.e(f"s_add_u32 s61, s61, s62")
    a.e(f"buffer_load_dword v{V_DUM}, v17, s[{SRD_WO}:{SRD_WO+3}], s61 offen")


NTOUCH = 0 if 'f' in OPT else 8


def ctx_touch(a):
    a.e(f"s_lshl_b32 s60, s{S_RB}, 3")
    a.e(f"s_lshl_b32 s61, s{S_CB}, 1")
    a.e(f"s_add_u32 s60, s60, s61")
    a.e(f"s_lshr_b32 s61, s{S_W3}, 1")
    a.e(f"s_add_u32 s60, s60, s61")
    a.e(f"s_lshl_b32 s60, s60, 17")
    a.e(f"s_lshl_b32 s61, s{S_J}, 15")
    a.e(f"s_add_u32 s60, s60, s61")
    a.e(f"s_and_b32 s61, s{S_W3}, 1")
    a.e(f"s_lshl_b32 s61, s61, 14")
    a.e(f"s_add_u32 s60, s60, s61")
    a.e(f"v_lshlrev_b32 v16, 7, v{V_LANE}")
    a.e(f"buffer_load_dword v{V_DUM}, v16, s[{SRD_C}:{SRD_C+3}], s60 offen sc1")
    a.e(f"s_add_u32 s60, s60, 8192")
    a.e(f"buffer_load_dword v{V_DUM}, v16, s[{SRD_C}:{SRD_C+3}], s60 offen sc1")


V_P8, V_PG, V_PS = 5, 6, 21
S_TA, S_TG, S_TX, S_TO_ = 78, 79, 68, 69


def ltouch_setup(a, nw):
    L = V_LANE
    lg = 2 if nw == 4 else 1
    k = 3 - (2 - lg)
    a.e(f"s_and_b32 s74, s{S_W3}, {nw-1}")
    a.e(f"v_lshrrev_b32 v{V_P8}, {k}, v{L}")
    a.e(f"v_lshlrev_b32 v{V_P8}, 7, v{V_P8}")
    a.e(f"v_lshrrev_b32 v{V_PG}, {k+1}, v{L}")
    a.e(f"v_lshlrev_b32 v{V_PG}, 10, v{V_PG}")
    a.e(f"v_lshrrev_b32 v{V_PS}, {k+2}, v{L}")
    a.e(f"v_lshlrev_b32 v{V_PS}, 10, v{V_PS}")
    a.e(f"v_and_b32 v16, {1 << (k+1)}, v{L}")
    a.e(f"v_lshl_add_u32 v{V_PS}, v16, {7-(k+1)}, v{V_PS}")
    qbase16(a, 60)
    a.e(f"s_add_u32 s60, s60, s{S_CB}")
    a.e(f"s_mul_i32 s60, s60, {56*1024}")
    a.e(f"s_lshl_b32 s62, s74, {12-lg}")
    a.e(f"s_add_u32 s{S_TA}, s60, s62")
    a.e(f"s_and_b32 s63, s{S_RB}, 7")
    a.e(f"s_lshl_b32 s63, s63, {lg}")
    a.e(f"s_add_u32 s63, s63, s74")
    mbase2(a, 60)
    a.e(f"s_lshl_b32 s62, s63, {14-lg}")
    a.e(f"s_add_u32 s{S_TG}, s60, s62")
    if nw == 4:
        return
    a.e(f"s_lshl_b32 s62, s63, {13-lg}")
    a.e(f"s_lshl_b32 s60, s{S_J}, 20")
    a.e(f"s_add_u32 s62, s62, s60")
    a.e(f"s_lshl_b32 s60, s{S_CB}, 8")
    a.e(f"s_add_u32 s{S_TO_}, s62, s60")
    a.e(f"s_lshl_b32 s60, s{S_RB}, 3")
    a.e(f"s_lshl_b32 s61, s{S_CB}, 1")
    a.e(f"s_add_u32 s60, s60, s61")
    a.e(f"s_add_u32 s60, s60, s74")
    a.e(f"s_lshl_b32 s60, s60, 17")
    a.e(f"s_lshl_b32 s61, s{S_J}, 15")
    a.e(f"s_add_u32 s{S_TX}, s60, s61")


def ltouch_w(m):
    if m >= NT:
        return []
    if m < NG:
        return [f"s_add_u32 s60, s{S_TG}, {m*0x20000}", f"buffer_load_dword v{V_DUM}, v{V_PG}, s[{SRD_W2}:{SRD_W2+3}], s60 offen"]
    return [f"s_add_u32 s60, s{S_TO_}, {(m-NG)*0x10000}", f"buffer_load_dword v{V_DUM}, v{V_PS}, s[{SRD_WO}:{SRD_WO+3}], s60 offen"]


def ltouch_a(m):
    if m >= NT:
        return []
    if m < NG:
        return [f"s_add_u32 s60, s{S_TA}, {m*4096}", f"buffer_load_dword v{V_DUM}, v{V_P8}, s[{SRD_H}:{SRD_H+3}], s60 offen sc1"]
    return [f"s_add_u32 s60, s{S_TX}, {(m-NG)*2048}", f"buffer_load_dword v{V_DUM}, v{V_P8}, s[{SRD_C}:{SRD_C+3}], s60 offen sc1"]


def dma2_setup(a):
    L = V_LANE
    a.e(f"v_lshrrev_b32 v17, 4, v{L}")
    a.e(f"v_lshlrev_b32 v17, 1, v17")
    a.e(f"v_and_b32 v16, 7, v{L}")
    a.e(f"v_xor_b32 v16, v16, v17")
    a.e(f"v_lshlrev_b32 v16, 4, v16")
    a.e(f"v_lshrrev_b32 v17, 3, v{L}")
    a.e(f"v_lshl_add_u32 v16, v17, 10, v16")
    mbase2(a, 62)
    a.e(f"s_lshl_b32 s63, s{S_W3}, 16")
    a.e(f"s_add_u32 s62, s62, s63")
    a.e(f"s_add_u32 s62, s62, {4*0x20000}")
    a.e(f"v_add_u32 v{V_WD}, s62, v16")
    ring0(a, 60)
    a.e(f"s_lshl_b32 s{S_WM0}, s{S_W3}, 13")
    a.e(f"s_add_u32 s{S_WM0}, s{S_WM0}, s60")
    a.e(f"s_add_u32 s{S_AM0}, s{S_WM0}, 16384")
    qbase16(a, 62)
    a.e(f"s_lshl_b32 s63, s{S_W3}, 1")
    a.e(f"s_add_u32 s62, s62, s63")
    a.e(f"s_mul_i32 s62, s62, {56*1024}")
    a.e(f"s_add_u32 s62, s62, {4*4096}")
    a.e(f"v_add_u32 v{V_AD}, s62, v{V_L16}")
    for i in range(1, 8):
        a.e(f"s_mov_b32 s{SO[i]}, {i*8192}")
    a.e(f"s_mov_b32 s{S_ASO}, {56*1024}")


SO = [None, 10, 11, 12, 13, 21, 78, 79]


def so(i):
    return "0" if i == 0 else f"s{SO[i]}"


def dma2_w(stage):
    if 'm' in OPT and stage > 3:
        return []
    L = V_LANE
    isg = stage < NG
    ws = SRD_W2 if isg else SRD_WO
    r = []
    if stage == NG:
        r += [f"s_lshl_b32 s63, s{S_W3}, 2", f"v_lshrrev_b32 v17, 4, v{L}", f"v_or_b32 v18, s63, v17", f"v_lshlrev_b32 v18, 1, v18",
              f"v_and_b32 v16, 15, v{L}", f"v_xor_b32 v16, v16, v18", f"v_lshlrev_b32 v16, 4, v16", f"v_lshl_add_u32 v16, v17, 10, v16",
              f"s_lshl_b32 s63, s{S_CB}, 8", f"s_lshl_b32 s61, s{S_J}, 20", f"s_add_u32 s63, s63, s61",
              f"s_lshl_b32 s61, s{S_W3}, 12", f"s_add_u32 s63, s63, s61", f"v_add_u32 v{V_WD}, s63, v16",
              f"s_and_b32 s{S_WM0}, s{S_WM0}, 0x18000", f"s_lshl_b32 s63, s{S_W3}, 10", f"s_add_u32 s{S_WM0}, s{S_WM0}, s63"]
    for i in range(8):
        r.append(f"s_add_u32 m0, s{S_WM0}, {i*(1024 if isg else 2048)}")
        r.append(I(f"buffer_load_dwordx4 v{V_WD}, s[{ws}:{ws+3}], {so(i)} offen lds", tag=("p5", stage)))
    r.append(f"v_add_u32 v{V_WD}, {hex(0x20000 if isg else 0x10000)}, v{V_WD}")
    r.append(f"s_xor_b32 s{S_WM0}, s{S_WM0}, {hex(smask(stage))}")
    return r


def dma2_a(stage):
    if 'm' in OPT and stage > 3:
        return []
    r = []
    if stage < NG:
        for i in range(2):
            r.append(f"s_add_u32 m0, s{S_AM0}, {i*4096}")
            for ks in range(4):
                r.append(I(f"buffer_load_dwordx4 v{V_AD}, s[{SRD_H}:{SRD_H+3}], {'0' if i == 0 else 's%d' % S_ASO} offen offset:{ks*1024}{SC} lds", tag=("p5", stage)))
        r.append(f"v_add_u32 v{V_AD}, 4096, v{V_AD}")
    else:
        if stage == NG:
            r += [f"s_lshl_b32 s63, s{S_RB}, 3", f"s_lshl_b32 s62, s{S_W3}, 2", f"s_add_u32 s63, s63, s62", f"s_lshl_b32 s63, s63, 17",
                  f"s_lshl_b32 s62, s{S_J}, 15", f"s_add_u32 s63, s63, s62", f"v_add_u32 v{V_AD}, s63, v{V_L16}",
                  f"s_mov_b32 s{S_ASO}, 0x20000", f"s_mov_b32 s{S_ASO+1}, 0x40000", f"s_mov_b32 s64, 0x60000"]
        for i in range(4):
            r.append(f"s_add_u32 m0, s{S_AM0}, {i*2048}")
            sreg = ["0", f"s{S_ASO}", f"s{S_ASO+1}", "s64"][i]
            for ks in range(2):
                r.append(I(f"buffer_load_dwordx4 v{V_AD}, s[{SRD_C}:{SRD_C+3}], {sreg} offen offset:{ks*1024}{SC} lds", tag=("p5", stage)))
        r.append(f"v_add_u32 v{V_AD}, 2048, v{V_AD}")
    r.append(f"s_xor_b32 s{S_AM0}, s{S_AM0}, {hex(smask(stage))}")
    return r


def a_last_hook(a):
    p5_ids(a)
    flag_addr(a, None, 28, F_H)
    a.e(poll_load(V_PD, V_PA, SRD_F))
    loader_setup(a, 0)
    a.add(dma_w(0))
    a.add(dma_w(1))
    compute_setup(a)
    poll_check(a, V_PD, V_PA, SRD_F, 1)
    a.add(dma_a(0))
    a.add(dma_a(1))
    if NTOUCH:
        ltouch_setup(a, 4)
        for m in range(2, 2 + NTOUCH // 2):
            a.add(ltouch_w(m) + ltouch_a(m))


def b_pre_join(a):
    a.e(f"s_cmp_ge_u32 s{S_WAVE}, 6")
    a.e("s_cbranch_scc1 LF_bpre")
    a.flush()
    st = a.st.copy()
    p3.ctx_store(a, 0, SC)
    p3.ctx_store(a, 1, SC)
    p5_ids(a)
    dma2_setup(a)
    a.flush()
    a.st = st
    a.e("LF_bpre:")


def h_flag_hook(a):
    a.flush()
    st = a.st.copy()
    a.e(f"v_mov_b32 v{p3.T0}, 1")
    a.e(f"s_lshl_b32 s60, s2, 10")
    a.e(f"buffer_store_dword v{p3.T0}, off, s[{SRD_F}:{SRD_F+3}], s60 offset:{F_H} sc1")
    a.e(f"s_mov_b32 s{p3.S_TODO}, 0")
    a.flush()
    a.st = st


def c_reads(ks, fb):
    r = []
    for q in range(4):
        r.append(f"ds_read_b128 {v(fb+16+4*q,4)}, v{V_BA} offset:{q*2048 + ks*1024}")
    for m in range(4):
        for e in range(2):
            r.append(f"ds_read_b64_tr_b16 {v(fb+4*m+2*e,2)}, v{V_WA+m} offset:{ks*8192 + e*4096}")
    return r


def g_reads(half, fb):
    r = []
    for k in range(2):
        ks = 2 * half + k
        for q in range(2):
            r.append(f"ds_read_b128 {v(fb+16+4*(2*k+q),4)}, v{V_GB} offset:{q*4096 + ks*1024}")
        for m in range(2):
            for e in range(2):
                r.append(f"ds_read_b64_tr_b16 {v(fb+4*(2*k+m)+2*e,2)}, v{V_GA+m} offset:{ks*4096 + e*2048}")
    return r


def g_mfmas(fb, first):
    m = []
    for k in range(2):
        for mb, q in ((0, 0), (0, 1), (1, 1), (1, 0)):
            d = GACC + 4 * (q * 2 + mb)
            m.append(mfma(d, fb + 4 * (2 * k + mb), fb + 16 + 4 * (2 * k + q), None if (first and k == 0) else d))
    return m


def barw(vm0):
    return [f"s_waitcnt vmcnt({vm0}) lgkmcnt(0)" if vm0 is not None else "s_waitcnt lgkmcnt(0)", "s_barrier"]


def gstage(stage, first=False, vm0=None):
    if 'n' in OPT:
        return barw(vm0)
    FA, FB = FR, FR + 32
    fl = [(i // 2, 0, x) for i, x in enumerate(g_reads(1, FB))]
    for i, r in enumerate([V_GB, V_GA, V_GA + 1]):
        fl.append((6 + i // 2, 1, f"v_xor_b32 v{r}, {hex(smask(stage))}, v{r}"))
    out = weave(g_mfmas(FA, first), fl)
    out += barw(vm0)
    nx = g_reads(0, FA) if stage + 1 < NG else c_reads(0, FA)
    fl = [(i // 2, 0, x) for i, x in enumerate(nx)]
    fl.append((7, 1, Need([v(FA, 32)])))
    out += weave(g_mfmas(FB, False), fl)
    return out


def cstage(stage, first=False, vm0=None):
    if 'n' in OPT:
        return barw(vm0)
    FA, FB = FR, FR + 32
    pos = lambda i: i // 2 if i < 4 else i - 2
    fl = [(pos(i), 0, x) for i, x in enumerate(c_reads(1, FB))]
    for i, r in enumerate([V_BA, V_WA, V_WA + 1, V_WA + 2, V_WA + 3]):
        fl.append((10 + i, 1, f"v_xor_b32 v{r}, {hex(smask(stage))}, v{r}"))
    out = weave(p5.mfmas(SACC, FA, first), fl)
    out += barw(vm0)
    fl = [(pos(i), 0, x) for i, x in enumerate(c_reads(0, FA))]
    fl.append((15, 1, Need([v(FA, 32)])))
    out += weave(p5.mfmas(SACC, FB, False), fl)
    return out


def gate_math(a):
    G, T = GACC, GACC + 32
    for i in range(16):
        mb, r = (i >> 2) & 1, i & 3
        src = BR2 + 2 * mb + r // 2
        a.e(f"v_lshlrev_b32 v{T+i}, 16, v{src}" if r % 2 == 0 else f"v_and_b32 v{T+i}, 0xffff0000, v{src}")
        a.e(f"v_add_f32 v{G+i}, v{G+i}, v{T+i}")
        a.e(f"v_mul_f32 v{T+i}, 0xbfb8aa3b, v{G+i}")
        a.e(f"v_exp_f32 v{T+i}, v{T+i}")
    for i in range(16):
        a.e(f"v_add_f32 v{T+i}, 1.0, v{T+i}")
        a.e(f"v_rcp_f32 v{T+i}, v{T+i}")
    for i in range(16):
        a.e(f"v_mul_f32 v{G+i}, v{G+i}, v{T+i}")
        src = XR + i // 2
        a.e(f"v_lshlrev_b32 v{T+i}, 16, v{src}" if i % 2 == 0 else f"v_and_b32 v{T+i}, 0xffff0000, v{src}")


def slot_addr(a):
    a.e(f"s_lshl_b32 s60, s{S_TILE}, 2")
    a.e(f"s_add_u32 s60, s60, s{S_J}")
    a.e(f"s_lshl_b32 s60, s60, 2")
    a.e(f"s_add_u32 s60, s60, s{S_W3}")
    a.e(f"s_lshl_b32 s60, s60, 13")
    a.e(f"s_add_u32 s61, s60, 4096")


def arm_slot(a):
    p5_ids(a)
    srd(a, SRD3, P_WS, 0x800000, WS_SP)
    slot_addr(a)
    for i in range(4):
        a.e(f"v_mov_b32 v{136+i}, -1")
    for h in range(2):
        for i in range(4):
            a.e(f"buffer_store_dwordx4 v[136:139], v{V_L16}, s[{SRD3}:{SRD3+3}], s{60+h} offen offset:{i*1024}{SC}")


def p45(a):
    a.e(f"s_cmp_lt_u32 s{S_WAVE}, 4")
    a.e("s_cbranch_scc1 LF_comp")
    a.flush()
    a.st = WState()
    a.e(f"s_cmp_ge_u32 s{S_WAVE}, 6")
    a.e("s_cbranch_scc1 LF_touch")
    a.flush()
    LEAD = 4
    for st in range(NT):
        a.add([WaitTag(lambda t, st=st: t == ("p5", st + 1)), "s_barrier"])
        if st == CTXFLAG:
            a.add(set_flag(F_CTX, 16, 4))
        n = st + LEAD
        if n < NG or NG + LEAD - 1 <= n < NT:
            a.add(dma2_w(n))
            a.add(dma2_a(n))
        elif n < NG + LEAD - 1:
            a.add(dma2_w(n))
        if st == NG - 5:
            a.e(f"s_lshl_b32 s63, s{S_J}, 3")
            flag_addr(a, 63, 8, F_CTX)
            a.e(f"v_and_b32 v16, 3, v{V_LANE}")
            a.e("s_andn2_b32 s62, s2, 3")
            a.e("v_add_u32 v16, s62, v16")
            a.e("v_lshlrev_b32 v16, 10, v16")
            a.e(f"v_add_u32 v16, {F_CTX}, v16")
            a.e(f"v_cmp_lt_u32 vcc, 31, v{V_LANE}")
            a.e(f"v_cndmask_b32 v{V_PA}, v{V_PA}, v16, vcc")
            a.e(poll_load(V_PD, V_PA, SRD_F))
        if st == NG - 2:
            stamp(a, 10)
            poll_check(a, V_PD, V_PA, SRD_F, 1)
            stamp(a, 11)
            for k in range(LEAD - 1):
                a.add(dma2_a(NG + k))
    for i in (12, 13, 14, 15):
        stamp(a, i)
    a.e("s_endpgm")
    a.flush()
    a.st = WState()
    a.e("LF_touch:")
    DT = 10
    LT = 'h' in OPT
    first = 4
    quarters = []
    for qb in range(2):
        x = cap(p3.ctx_store, qb, SC)
        cut = [i for i, y in enumerate(x) if y.k == "vst"][1] + 1
        quarters += [x[:cut], x[cut:]]
    a.add(quarters[0])
    early = [NG - 7, NG - 5]
    a.e("s_mov_b32 s77, 0")
    for st in range(NT):
        a.add([WaitTag(lambda t, st=st: st == CTXFLAG and t == "ctx"), "s_barrier"])
        if st < 3:
            a.add(quarters[st + 1])
        if not LT:
            if st == CTXFLAG:
                break
            continue
        if st == 3:
            p5_ids(a)
            a.e(f"s_lshl_b32 s63, s{S_J}, 3")
            flag_addr(a, 63, 8, F_CTX)
            ltouch_setup(a, 2)
            for m in range(8, DT + 3):
                a.add(ltouch_w(m) + ltouch_a(m))
        if st < 3:
            continue
        if st in early:
            a.add(Need([v(V_PD)]))
            a.e(f"v_cmp_ne_u32 vcc, 1, v{V_PD}")
            a.e("s_cmp_lg_u32 s77, 0")
            a.e(f"s_cbranch_scc1 LF_te{st}")
            a.e(f"s_cbranch_vccnz LF_te{st}")
            a.flush()
            stt = a.st.copy()
            for m in range(NG, NG + 8):
                a.add(ltouch_a(m))
            a.e("s_mov_b32 s77, 1")
            a.flush()
            a.st = stt
            a.e(f"LF_te{st}:")
        if st == NG - 2:
            poll_check(a, V_PD, V_PA, SRD_F, 1)
            a.e("s_cmp_lg_u32 s77, 0")
            a.e(f"s_cbranch_scc1 LF_te{st}")
            a.flush()
            stt = a.st.copy()
            for m in range(NG + 2, NG + 8):
                a.add(ltouch_a(m))
            a.flush()
            a.st = stt
            a.e(f"LF_te{st}:")
        if st + 2 in early or st + 2 == NG - 2:
            a.e(poll_load(V_PD, V_PA, SRD_F))
        a.add(ltouch_w(st + DT))
        if st + DT < NG or st + DT >= NG + 8:
            a.add(ltouch_a(st + DT))
        if len(a.st.vm) > 40:
            a.flush()
            a.st.vm = a.st.vm[-20:]
    for i in (10, 11, 12, 13, 14, 15):
        stamp(a, i)
    a.e("s_endpgm")
    a.flush()
    a.st = WState()
    a.e("LF_comp:")
    a.add(g_reads(0, FR))
    for st in (2, 3):
        a.add(dma_w(st))
        a.add(dma_a(st))
    srd(a, SRD3, P_X, 0x200000)
    srd(a, SRD4, P_B2, 1024)
    a.add(Need([v(FR, 32)]))
    stamp(a, 10, 'T')
    a.flush()
    ns = 2 if (STAMP and 'T' in OPT) else 0
    a.add(gstage(0, True, 16 + ns))
    stamp(a, 11, 'T')
    a.e(f"s_add_u32 s60, s{S_XO}, 16384")
    for q in range(2):
        for mb in range(2):
            a.e(f"buffer_load_dwordx2 {v(XR+2*(2*q+mb),2)}, v{V_XA}, s[{SRD3}:{SRD3+3}], s{60 if q else S_XO} offen offset:{mb*32}")
    for mb in range(2):
        a.e(f"buffer_load_dwordx2 {v(BR2+2*mb,2)}, v{V_BB}, s[{SRD4}:{SRD4+3}], 0 offen offset:{mb*32}")
    a.add(gstage(1, vm0=14 + 2 * ns))
    a.add(gstage(2, vm0=6 + 2 * ns))
    stamp(a, 12, 'T')
    a.add(gstage(3))
    stamp(a, 13, 'T')
    a.add(gstage(4))
    a.add(gstage(5))
    stamp(a, 14, 'T')
    a.e("s_mov_b32 s75, 3")
    a.e("s_waitcnt vmcnt(0)")
    a.loop("LF_gloop", lambda: [gstage(4), gstage(5)],
           ["s_sub_u32 s75, s75, 1", "s_cmp_lg_u32 s75, 0", "s_cbranch_scc1 LF_gloop"])
    a.add(gstage(12))
    FA, FB = FR, FR + 32
    a.add(weave(g_mfmas(FA, False), [(i // 2, 0, x) for i, x in enumerate(g_reads(1, FB))]))
    a.add(g_mfmas(FB, False))
    stamp(a, 15, 'T')
    stamp(a, 10)
    gate_math(a)
    srd(a, SRD3, P_WS, 0x800000, WS_SP)
    srd(a, SRD4, P_OUT, 0x200000)
    a.e("s_barrier")
    a.add(c_reads(0, FA))
    a.add(Need([v(FA, 32)]))
    stamp(a, 11)
    a.add(cstage(NG, True))
    a.add(cstage(NG + 1))
    a.e("s_mov_b32 s75, 7")
    a.loop("LF_loop", lambda: [cstage(NG + 2), cstage(NG + 3)],
           ["s_sub_u32 s75, s75, 1", "s_cmp_lg_u32 s75, 0", "s_cbranch_scc1 LF_loop"])
    stamp(a, 12)
    a.e("s_waitcnt lgkmcnt(0)")
    a.e(f"s_cmp_eq_u32 s{S_W3}, s{S_J}")
    a.e("s_cbranch_scc1 LF_own")
    slot_addr(a)
    for cw in range(4):
        for q in range(2):
            d = FR + 4 * (2 * cw + q)
            for mb in range(2):
                b = SACC + 4 * ((2 * (cw >> 1) + q) * 4 + 2 * (cw & 1) + mb)
                a.e(f"v_cvt_pk_bf16_f32 v{d+2*mb}, v{b}, v{b+1}")
                a.e(f"v_cvt_pk_bf16_f32 v{d+2*mb+1}, v{b+2}, v{b+3}")
            a.e(f"buffer_store_dwordx4 {v(d,4)}, v{V_L16}, s[{SRD3}:{SRD3+3}], s{60 + (cw >> 1)} offen offset:{((cw&1)*2+q)*1024}{SC}")
    a.e("s_branch LF_sent")
    a.flush()
    a.st = WState()
    a.e("LF_own:")
    a.e(f"v_add_u32 v16, {LDS_OWN}, v{V_L16}")
    a.e("s_nop 7")
    for i in range(16):
        a.e(f"ds_write_b128 v16, {v(SACC+4*i,4)} offset:{i*1024}")
    a.e("s_waitcnt lgkmcnt(0)")
    a.flush()
    a.e("LF_sent:")
    PR = 96
    for k in range(1, 4):
        a.e(f"s_add_u32 s60, s{S_J}, {k}")
        a.e(f"s_and_b32 s60, s60, 3")
        a.e(f"s_lshl_b32 s61, s{S_TILE}, 2")
        a.e(f"s_add_u32 s60, s60, s61")
        a.e(f"s_lshl_b32 s60, s60, 2")
        a.e(f"s_add_u32 s60, s60, s{S_J}")
        a.e(f"s_lshl_b32 s60, s60, 2")
        a.e(f"s_add_u32 s60, s60, s{S_W3}")
        a.e(f"s_lshl_b32 s{64+k}, s60, 11")

    def fetch():
        for k in range(1, 4):
            for q in range(2):
                a.e(f"buffer_load_dwordx4 {v(PR+8*(k-1)+4*q,4)}, v{V_L16}, s[{SRD3}:{SRD3+3}], s{64+k} offen offset:{q*1024}{SC}")
    fetch()
    a.e(f"s_lshr_b32 s62, s{S_W3}, 1")
    a.e(f"s_lshl_b32 s62, s62, 13")
    a.e(f"s_and_b32 s63, s{S_W3}, 1")
    a.e(f"s_lshl_b32 s63, s63, 11")
    a.e(f"s_add_u32 s62, s62, s63")
    a.e(f"s_add_u32 s62, s62, {LDS_OWN}")
    a.e(f"v_add_u32 v18, s62, v{V_L16}")
    a.e(f"s_mov_b32 s{S_SPIN}, 0x10000")
    a.e("s_barrier")
    stamp(a, 13)
    S_ = 64
    for q in range(2):
        for mb in range(2):
            a.e(f"ds_read_b128 {v(S_+4*(2*q+mb),4)}, v18 offset:{q*4096+mb*1024}")
    a.flush()
    a.e("LF_xchk:")
    a.e("s_waitcnt vmcnt(0)")
    a.e(f"v_max3_u32 v16, v{PR}, v{PR+1}, v{PR+2}")
    a.e(f"v_max3_u32 v17, v{PR+3}, v{PR+4}, v{PR+5}")
    for i in range(6, 24, 4):
        a.e(f"v_max3_u32 v16, v16, v{PR+i}, v{PR+i+1}")
        if i + 2 < 24:
            a.e(f"v_max3_u32 v17, v17, v{PR+i+2}, v{PR+i+3}")
    a.e("v_max_u32 v16, v16, v17")
    a.e("v_cmp_eq_u32 vcc, -1, v16")
    a.e(f"s_sub_u32 s{S_SPIN}, s{S_SPIN}, 1")
    a.e("s_cbranch_scc1 LF_xok")
    a.e("s_cbranch_vccz LF_xok")
    fetch()
    a.e("s_branch LF_xchk")
    a.flush()
    a.st.vm = []
    a.e("LF_xok:")
    stamp(a, 14)
    for k in range(3):
        for i in range(16):
            src = PR + 8 * k + i // 2
            t = 80 + i
            a.e(f"v_lshlrev_b32 v{t}, 16, v{src}" if i % 2 == 0 else f"v_and_b32 v{t}, 0xffff0000, v{src}")
        for i in range(16):
            a.e(f"v_add_f32 v{S_+i}, v{S_+i}, v{80+i}")
    a.e(f"s_add_u32 s60, s{S_XO}, 16384")
    for b in range(4):
        for i in range(4):
            a.e(f"v_fma_f32 v{S_+4*b+i}, v{S_+4*b+i}, v{GACC+4*b+i}, v{GACC+32+4*b+i}")
        a.e(f"v_cvt_pk_bf16_f32 v{XR+2*b}, v{S_+4*b}, v{S_+4*b+1}")
        a.e(f"v_cvt_pk_bf16_f32 v{XR+2*b+1}, v{S_+4*b+2}, v{S_+4*b+3}")
        a.e(f"buffer_store_dwordx2 {v(XR+2*b,2)}, v{V_XA}, s[{SRD4}:{SRD4+3}], s{60 if b >= 2 else S_XO} offen offset:{(b&1)*32}")
    if STAMP:
        a.e("s_waitcnt vmcnt(0)")
    stamp(a, 15)


def kernel_f(a, label):
    p3.KVSC = SC
    p3.TODO_HOOK = h_flag_hook
    p3.STB = 4
    p3.stamp = stamp
    p3.LDS_H = LDS_H
    a.st = WState()
    kernel_head(a, label, 256, 0 if 'q' in OPT else CODE_LINES)
    stamp_init(a, 0)
    stamp(a, 0)
    a.e(f"v_lshlrev_b32 v{V_L16}, 4, v{V_LANE}")
    srd(a, SRD1, P_CKV, 2097152)
    srd(a, SRD_WK, P_WUK, 0x400000)
    srd(a, SRD_WV, P_WUV, 0x400000)
    a.e(f"s_cmp_ge_u32 s{S_WAVE}, 4")
    a.e(f"s_cbranch_scc1 LF1_V")
    a.flush()
    st0 = a.st.copy()
    ends = []
    for isv in (0, 1):
        if isv:
            a.st = st0.copy()
            a.e(f"LF1_V:")
            ln_issue(a)
            touch_setup(a)
            if 'a' not in OPT:
                a.add(touch_p1(2))
        else:
            k_dma_setup(a)
            for st in range(2):
                g, adv = k_dma(st)
                for m0, ld in g:
                    a.add([m0, ld])
                a.add(adv)
        srd(a, SRD3, P_WS, WS_CTX)
        srd(a, SRD_F, P_WS, 0x40000, WS_FLAG)
        if isv:
            a.e(f"v_min_u32 v20, 7, v{V_LANE}")
            a.e("v_lshlrev_b32 v20, 7, v20")
            a.e("v_mov_b32 v21, 0")
            a.e("s_lshl_b32 s62, s2, 10")
            a.e(f"s_cmp_eq_u32 s{S_WAVE}, 4")
            a.e("s_cselect_b32 s62, s62, 0x40000")
            a.e(f"buffer_store_dword v21, v20, s[{SRD_F}:{SRD_F+3}], s62 offen sc1")
        p3.q0_setup2(a)
        setup_reads(a)
        if isv:
            ln_compute(a)
        a.add([WaitTag(lambda t: t == ("p1", 0), lg0=True), "s_barrier"])
        stamp(a, 1)
        a.add(p1.p1_reads(0, 0, p1.F0))

        def tl(st):
            x = []
            if isv and st + 3 < 8 and 'a' not in OPT:
                x += touch_p1(st + 3)
            if isv and 1 <= st <= 4 and 'b' not in OPT:
                x += cap(late_touch, st - 1)
            return spread(x, 10, 31) if x else []
        for st in range(6):
            fl1, fl2 = tl(st), []
            if st == 0:
                x = cap(ln_store)
                fl1 = fl1 + spread(x[:-1], 2, 8, 8) + [(14, 8, x[-1])]
            if st == 2 and isv:
                t = Asm()
                srd(t, 84, P_DBG, 256)
                t.e(f"s_cmp_eq_u32 s{S_WAVE}, 4")
                t.e("s_cselect_b32 s86, s86, 0")
                t.e("s_and_b32 s60, s2, 15")
                t.e("s_lshl_b32 s60, s60, 2")
                t.e("v_mov_b32 v22, 1")
                t.e("s_mov_b64 exec, 1")
                t.e(f"buffer_atomic_add v22, off, s[84:87], s60 sc1")
                t.e("s_mov_b64 exec, -1")
                fl2 = [(0, 7, t.cur)] + fl2
            p1_stage(a, isv, st, fl1=fl1, fl2=fl2, wait="xn" if st == 2 else None)
            stamp(a, 8 + st, True)
        p1_stage(a, isv, 6, fl1=spread(cap(p3.p2_setup), 0, 30) + ([(20, 7, [f"v_and_b32 v29, 15, v{V_LANE}", "v_lshlrev_b32 v29, 2, v29", poll_load(28, 29, 84)])] if isv else []), fl2=spread(p2_dma(0) + p2_dma(1), 0, 31))
        stamp(a, 14, True)

        def init_check():
            if isv:
                a.add(Need([v(28)]))
                a.e(f"s_cmp_lg_u32 s{S_WAVE}, 4")
                a.e("s_cbranch_scc1 LF_noinitchk")
                poll_check(a, 28, 29, 84, 16)
                a.flush()
                a.e("LF_noinitchk:")
        x = cap(bias_load)
        y = xload(0) + xload(1) + xload(2)
        p1_stage(a, isv, 7, pre_bar=init_check, fl1=spread(x, 22, 31) if False else [],
                 fl2=spread(cap(xn_setup), 0, 1, 3) + spread(y, 2, 22, 4) + spread(x, 23, 31, 4) + spread(cap(p2_setup_reads), 0, 31))
        stamp(a, 15, True)
        stamp(a, 2)
        p1_pack(a, isv)
        if not isv:
            a.e(f"s_branch LF1_done")
        a.flush()
        while a.st.vm and a.st.vm[0][1] is None and not a.st.vm[0][0]:
            a.st.vm.pop(0)
        ends.append(a.st.key())
    assert ends[0] == ends[1], ends
    a.e("LF1_done:")
    bias_apply(a)
    stamp(a, 3)
    a.add([WaitTag(lambda t: t == ("p2", 0)), "s_barrier"])
    for d in range(12):
        a.add(p2_read(0, 0, d))
    stamp(a, 4)
    for st in range(8):
        ex = xload(2 * st + 3) if st < 7 else []
        ex += [kv_deferred(i) for i in range(12) if KVST[i] == st]
        a.add(p2_part(2 * st, (st, 1), spread(ex, 1, 22) if ex else []))
        if st < 7:
            a.add([WaitTag(lambda t, st=st: t == ("p2", st + 1) or (st == KVFLAG and t == "kvst")), "s_barrier"])
        if st == KVFLAG:
            a.add(set_flag(F_KV, 30, 0))
        ex = (p2_dma(2) if st == 0 else []) + (p2_dma(st + 3) if st <= 4 else []) + (xload(2 * st + 4) if st < 6 else [])
        if st == 7:
            a.add(Need([v(p3.BR, 32)]))
            ex = cap(p3.p3_setup_once, 30) + [f"v_and_b32 v29, 7, v{V_LANE}", "v_lshlrev_b32 v29, 15, v29", "s_and_b32 s74, s2, 31",
                                              "s_lshl_b32 s74, s74, 10", f"s_cmp_lt_u32 s{S_WAVE}, 4", "s_cselect_b32 s74, s74, 0x40000",
                                              poll_load(28, 29, SRD_F, "s74")] + cap(p3.first_dma_regs)
            a.add(p2_part(2 * st + 1, None, spread(ex, 0, 12)))
        else:
            a.add(p2_part(2 * st + 1, (st + 1, 0), spread(ex, 1, 22) if ex else []))
        stamp(a, 8 + st, 'U')
    a.e(f"s_cmp_ge_u32 s{S_WAVE}, 4")
    a.e("s_cbranch_scc1 LF_nokv")
    a.flush()
    stt = a.st.copy()
    poll_check(a, 28, 29, SRD_F, 1, "s74")
    a.add(p3.kv_dma(30))
    a.add(p3.kv_dma(30))
    a.flush()
    a.st = stt
    a.e("LF_nokv:")
    stamp(a, 5)
    a.e(f"v_mov_b32 v{p3.V_KD}, v30")
    p3.p2_epilogue(a, SRD3, WS_H, SC)
    p3.p3_consts(a)
    a.e(f"s_cmp_eq_u32 s{S_WAVE}, 0")
    a.e(f"s_cselect_b32 s{p3.S_TODO}, 1, 0")
    stamp(a, 6)
    p3.p3_main(a, "LF3", SC, last_hook=a_last_hook, last_wait=4 + NTOUCH, b_hook=b_pre_join, epi_hook=arm_slot)
    stamp(a, 9)
    p45(a)
    kernel_tail(a, label)
    return label
```

```python
from common import *
import os

V_LANE = 1
V_CD, V_WD = 2, 3
V_CA = 4
V_WA = 6
V_L16 = 14
F0 = 32
ACC = 128
S_CSO, S_WSO = 64, 68
S_CM0, S_WM0 = 72, 73
LDS_C, LDS_W = 0, 65536


def p0_issue(a):
    srd(a, SRD0, P_X, 2097152)
    a.e(f"s_lshl_b32 s60, s2, 3")
    a.e(f"s_add_u32 s60, s60, s{S_WAVE}")
    a.e(f"s_lshl_b32 s61, s60, 10")
    a.e(f"v_lshlrev_b32 v{V_L16}, 4, v{V_LANE}")
    a.e(f"buffer_load_dwordx4 v[32:35], v{V_L16}, s[{SRD0}:{SRD0+3}], s61 offen")


def p0_compute(a, sc=""):
    for i in range(4):
        a.e(f"v_lshlrev_b32 v{36+2*i}, 16, v{32+i}")
        a.e(f"v_and_b32 v{37+2*i}, 0xffff0000, v{32+i}")
    a.e("v_add_f32 v44, v36, v37")
    for i in range(2, 8):
        a.e(f"v_add_f32 v44, v44, v{36+i}")
    wave_sum(a, 44, 45)
    a.e("v_mul_f32 v44, 0x3b000000, v44")
    a.e("v_sub_f32 v32, v36, v44")
    a.e("v_mul_f32 v46, v32, v32")
    for i in range(1, 8):
        a.e(f"v_sub_f32 v32, v{36+i}, v44")
        a.e(f"v_fmac_f32 v46, v32, v32")
    wave_sum(a, 46, 45)
    a.e("v_mul_f32 v46, 0x3b000000, v46")
    round_bf16(a, 44)
    round_bf16(a, 46)
    a.e("v_add_f32 v46, 0x3727c5ac, v46")
    round_bf16(a, 46)
    a.e("v_sqrt_f32 v46, v46")
    round_bf16(a, 46)
    a.e("v_rcp_f32 v46, v46")
    for i in range(8):
        a.e(f"v_sub_f32 v{36+i}, v{36+i}, v44")
    for i in range(4):
        a.e(f"v_cvt_pk_bf16_f32 v{32+i}, v{36+2*i}, v{37+2*i}")
    for i in range(4):
        a.e(f"v_lshlrev_b32 v{36+2*i}, 16, v{32+i}")
        a.e(f"v_and_b32 v{37+2*i}, 0xffff0000, v{32+i}")
    for i in range(8):
        a.e(f"v_mul_f32 v{36+i}, v{36+i}, v46")
    for i in range(4):
        a.e(f"v_cvt_pk_bf16_f32 v{32+i}, v{36+2*i}, v{37+2*i}")
    a.e(f"v_lshrrev_b32 v36, 2, v{V_LANE}")
    a.e("v_lshlrev_b32 v36, 10, v36")
    a.e(f"v_and_b32 v37, 3, v{V_LANE}")
    a.e("v_lshl_add_u32 v36, v37, 8, v36")
    a.e("s_lshr_b32 s61, s60, 4")
    a.e("s_lshl_b32 s61, s61, 14")
    a.e("s_and_b32 s62, s60, 15")
    a.e("s_lshl_b32 s62, s62, 4")
    a.e("s_add_u32 s61, s61, s62")
    srd(a, SRD3, P_WS, WS_KV + 0x2000000)
    a.e(f"buffer_store_dwordx4 v[32:35], v36, s[{SRD3}:{SRD3+3}], s61 offen{sc}", tag="xn")


def p1_setup(a):
    L = V_LANE
    srd(a, SRD1, P_CKV, 2097152)
    a.e(f"s_cmp_lt_u32 s{S_WAVE}, 4")
    a.e(f"s_cselect_b32 s{SRD2}, s{P_WUK}, s{P_WUV}")
    a.e(f"s_cselect_b32 s{SRD2+1}, s{P_WUK+1}, s{P_WUV+1}")
    a.e(f"s_mov_b32 s{SRD2+2}, 0x400000")
    a.e(f"s_mov_b32 s{SRD2+3}, 0x20000")
    a.e(f"s_and_b32 s62, s{S_WAVE}, 1")
    a.e(f"s_lshl_b32 s63, s62, 2")
    a.e(f"v_and_b32 v16, 7, v{L}")
    a.e(f"v_lshrrev_b32 v17, 4, v{L}")
    a.e(f"v_xor_b32 v16, v16, v17")
    a.e(f"v_xor_b32 v16, s63, v16")
    a.e(f"v_lshlrev_b32 v16, 4, v16")
    a.e(f"v_lshrrev_b32 v17, 3, v{L}")
    a.e(f"v_lshl_add_u32 v{V_CD}, v17, 10, v16")
    a.e(f"s_lshl_b32 s63, s{S_P}, 18")
    a.e(f"v_add_u32 v{V_CD}, s63, v{V_CD}")
    a.e(f"s_lshr_b32 s63, s{S_WAVE}, 1")
    a.e(f"s_lshl_b32 s63, s63, 3")
    a.e(f"s_add_u32 s63, s63, s62")
    a.e(f"s_lshl_b32 s{S_CM0}, s63, 10")
    a.e(f"s_lshl_b32 s{S_CSO}, s63, 13")
    for j in range(1, 4):
        a.e(f"s_add_u32 s{S_CSO+j}, s{S_CSO}, {j*16384}")
    a.e(f"s_lshl_b32 s63, s62, 3")
    a.e(f"v_lshrrev_b32 v17, 4, v{L}")
    a.e(f"v_lshlrev_b32 v18, 1, v17")
    a.e(f"v_and_b32 v16, 15, v{L}")
    a.e(f"v_xor_b32 v16, v16, v18")
    a.e(f"v_xor_b32 v16, s63, v16")
    a.e(f"v_lshlrev_b32 v16, 4, v16")
    a.e(f"v_lshl_add_u32 v{V_WD}, v17, 13, v16")
    a.e(f"s_lshl_b32 s63, s{S_H}, 8")
    a.e(f"v_add_u32 v{V_WD}, s63, v{V_WD}")
    a.e(f"s_lshr_b32 s63, s{S_W3}, 1")
    a.e(f"s_lshl_b32 s63, s63, 3")
    a.e(f"s_lshl_b32 s74, s62, 1")
    a.e(f"s_add_u32 s63, s63, s74")
    a.e(f"s_lshl_b32 s{S_WSO}, s63, 15")
    for j in range(1, 4):
        a.e(f"s_add_u32 s{S_WSO+j}, s{S_WSO}, {((j&1)+4*(j>>1))*32768}")
    a.e(f"s_lshl_b32 s{S_WM0}, s63, 10")
    a.e(f"s_lshr_b32 s74, s{S_WAVE}, 2")
    a.e(f"s_lshl_b32 s74, s74, 14")
    a.e(f"s_add_u32 s{S_WM0}, s{S_WM0}, s74")
    a.e(f"s_add_u32 s{S_WM0}, s{S_WM0}, {LDS_W}")


def p1_setup_reads(a):
    L = V_LANE
    a.e(f"v_and_b32 v16, 15, v{L}")
    a.e(f"v_lshrrev_b32 v17, 4, v{L}")
    a.e(f"v_lshrrev_b32 v18, 1, v16")
    a.e(f"v_xor_b32 v18, v18, v17")
    a.e(f"v_lshlrev_b32 v18, 4, v18")
    a.e(f"v_lshl_add_u32 v18, v16, 7, v18")
    a.e(f"s_lshl_b32 s63, s{S_W3}, 13")
    a.e(f"v_add_u32 v{V_CA}, s63, v18")
    a.e(f"v_xor_b32 v{V_CA+1}, 64, v{V_CA}")
    a.e(f"v_lshrrev_b32 v18, 2, v16")
    a.e(f"v_and_b32 v19, 1, v17")
    a.e(f"v_lshl_add_u32 v19, v19, 2, v18")
    a.e(f"v_lshl_add_u32 v18, v17, 3, v18")
    a.e(f"v_lshlrev_b32 v18, 8, v18")
    a.e(f"v_and_b32 v20, 3, v{L}")
    a.e(f"v_lshl_add_u32 v18, v20, 3, v18")
    a.e(f"s_lshr_b32 s74, s{S_WAVE}, 2")
    a.e(f"s_lshl_b32 s74, s74, 14")
    a.e(f"s_add_u32 s74, s74, {LDS_W}")
    a.e(f"v_add_u32 v18, s74, v18")
    for d in range(8):
        a.e(f"v_xor_b32 v20, {d}, v19")
        a.e(f"v_lshl_add_u32 v{V_WA+d}, v20, 5, v18")


def p1_dma(stage):
    par = stage & 1
    g = []
    for j in range(4):
        g.append([f"s_add_u32 m0, s{S_CM0}, {par*32768 + j*2048}",
                  I(f"buffer_load_dwordx4 v{V_CD}, s[{SRD1}:{SRD1+3}], s{S_CSO+j} offen lds", tag=("p1", par))])
    for j in range(4):
        g.append([f"s_add_u32 m0, s{S_WM0}, {par*32768 + ((j&1)+4*(j>>1))*1024}",
                  I(f"buffer_load_dwordx4 v{V_WD}, s[{SRD2}:{SRD2+3}], s{S_WSO+j} offen lds", tag=("p1", par))])
    adv = [f"v_add_u32 v{V_CD}, 128, v{V_CD}", f"v_add_u32 v{V_WD}, 0x80000, v{V_WD}"]
    return g, adv


def p1_reads(par, ks, fb):
    r = []
    for kb in range(4):
        r.append(f"ds_read_b128 {v(fb+4*kb,4)}, v{V_CA+ks} offset:{par*32768 + kb*2048}")
    for d in range(8):
        for e in range(2):
            r.append(f"ds_read_b64_tr_b16 {v(fb+16+4*d+2*e,2)}, v{V_WA+d} offset:{par*32768 + ks*8192 + e*1024}")
    return r


def p1_mfmas(isv, fb, first):
    m = []
    for d in range(8):
        kbs = range(4) if d % 2 == 0 else range(3, -1, -1)
        for kb in kbs:
            acc = ACC + 4 * (d * 4 + kb)
            c = None if first else acc
            if isv:
                m.append(mfma(acc, fb + 4 * kb, fb + 16 + 4 * d, c))
            else:
                m.append(mfma(acc, fb + 16 + 4 * d, fb + 4 * kb, c))
    return m


def p1_stage(isv, par, first, dma, nxt):
    FA, FB = F0, F0 + 48
    out = [Need([v(FA, 48)])]
    rd = p1_reads(par, 1, FB)
    fl = [(i + i // 4, 0, x) for i, x in enumerate(rd)]
    out += weave(p1_mfmas(isv, FA, first), fl)
    if nxt:
        out += [WaitTag(lambda t, par=par: t == ("p1", 1 - par), lg0=True), "s_barrier"]
    else:
        out += [Need([v(FB, 48)])]
    fl = []
    if nxt:
        rd = p1_reads(1 - par, 0, FA)
        fl += [(i + i // 4, 0, x) for i, x in enumerate(rd)]
    if dma:
        g, adv = p1_dma(par)
        for j, (m0, ld) in enumerate(g):
            fl.append((3 * j + 1, 2, m0))
            fl.append((3 * j + 2, 1, ld))
        fl.append((26, 2, adv[0]))
        fl.append((27, 2, adv[1]))
    out += weave(p1_mfmas(isv, FB, False), fl)
    return out


def p1_epilogue(a, isv, sc=""):
    a.e(f"s_lshl_b32 s60, s{S_H}, 20")
    a.e(f"s_lshl_b32 s61, s{S_P}, 2")
    a.e(f"s_add_u32 s61, s61, s{S_W3}")
    a.e(f"s_lshl_b32 s61, s61, 15")
    a.e(f"s_add_u32 s60, s60, s61")
    a.e(f"s_add_u32 s60, s60, {WS_KV + (16384 if isv else 0)}")
    fi = 0
    lst = []
    if not isv:
        for kb in range(4):
            for t in range(4):
                lst.append((ACC + 4 * ((2 * t) * 4 + kb), ACC + 4 * ((2 * t + 1) * 4 + kb)))
    else:
        for k in range(4):
            for t in range(4):
                u, d = k >> 1, 2 * t + (k & 1)
                lst.append((ACC + 4 * (d * 4 + 2 * u), ACC + 4 * (d * 4 + 2 * u + 1)))
    for fi, (b0, b1) in enumerate(lst):
        t = F0 + 4 * (fi % 8)
        a.e(f"v_cvt_pk_bf16_f32 v{t}, v{b0}, v{b0+1}")
        a.e(f"v_cvt_pk_bf16_f32 v{t+1}, v{b0+2}, v{b0+3}")
        a.e(f"v_cvt_pk_bf16_f32 v{t+2}, v{b1}, v{b1+1}")
        a.e(f"v_cvt_pk_bf16_f32 v{t+3}, v{b1+2}, v{b1+3}")
        a.e(f"buffer_store_dwordx4 {v(t,4)}, v{V_L16}, s[{SRD3}:{SRD3+3}], s60 offen offset:{(fi%4)*1024}{sc}", tag="kv")
        if fi % 4 == 3 and fi != 15:
            a.e("s_add_u32 s60, s60, 4096")


def p1_main(a, pfx, sc="", after=None):
    a.add([WaitTag(lambda t: t == ("p1", 0)), "s_barrier"])
    stamp(a, 1)
    a.add(p1_reads(0, 0, F0))
    a.e(f"s_cmp_ge_u32 s{S_WAVE}, 4")
    a.e(f"s_cbranch_scc1 {pfx}_V")
    a.flush()
    st0 = a.st.copy()
    for isv in (0, 1):
        if isv:
            a.st = st0.copy()
            a.e(f"{pfx}_V:")
            a.e("s_nop 1")
        a.add(p1_stage(isv, 0, True, True, True))
        a.add(p1_stage(isv, 1, False, True, True))
        a.e("s_mov_b32 s75, 2")
        a.loop(f"{pfx}_loop{isv}", lambda: p1_stage(isv, 0, False, True, True) + p1_stage(isv, 1, False, True, True),
               ["s_sub_u32 s75, s75, 1", "s_cmp_lg_u32 s75, 0", f"s_cbranch_scc1 {pfx}_loop{isv}"])
        a.add(p1_stage(isv, 0, False, False, True))
        a.add(p1_stage(isv, 1, False, False, False))
        stamp(a, 2)
        p1_epilogue(a, isv, sc)
        stamp(a, 3)
        if STAMP:
            a.e("s_waitcnt vmcnt(0)")
        stamp(a, 4)
        if not isv:
            a.e(f"s_branch {pfx}_done")
        a.flush()
    a.e(f"{pfx}_done:")
    a.flush()


def kernel_a(a):
    label = "ka_kernel"
    a.st = WState()
    kernel_head(a, label, 256)
    stamp_init(a, 0)
    stamp(a, 0)
    p0_issue(a)
    p1_setup(a)
    for st in range(2):
        g, adv = p1_dma(st)
        for m0, ld in g:
            a.add([m0, ld])
        a.add(adv)
    p1_setup_reads(a)
    sc = os.environ.get("SC", "")
    p0_compute(a, sc)
    p1_main(a, "LA", sc)
    kernel_tail(a, label)
    return label
```

```python
from common import *
import os

V_LANE, V_L16 = 1, 14
V_QD, V_HD = 2, 3
V_QA = 4
V_XO = 12
V_HA = 16
BR = 32
AF = 64
QACC, HACC = 160, 224
S_Q0 = 76
S_QSO = 64
S_HSO = 66
S_QM0, S_HM0 = 67, 68
S_16K = 69
LDS_Q, LDS_H = 0, 65536
QSCALE = 0.08838834764831845 * 1.4426950408889634


def fhex(x):
    import struct
    return hex(struct.unpack("<I", struct.pack("<f", x))[0])


def q0_setup(a):
    a.e(f"s_sub_u32 s60, 15, s{S_P}")
    a.e(f"s_cmp_lt_u32 s{S_WAVE}, 4")
    a.e(f"s_cselect_b32 s60, s{S_P}, s60")
    a.e(f"s_lshl_b32 s60, s60, 2")
    a.e(f"s_add_u32 s60, s60, s{S_W3}")
    a.e(f"s_lshl_b32 s{S_Q0}, s60, 5")


def q0_setup2(a):
    a.e(f"s_sub_u32 s62, 15, s{S_P}")
    a.e(f"s_cmp_lt_u32 s{S_WAVE}, 4")
    a.e(f"s_cselect_b32 s62, s{S_P}, s62")
    a.e(f"s_lshl_b32 s62, s62, 2")
    a.e(f"s_add_u32 s62, s62, s{S_W3}")
    a.e(f"s_lshl_b32 s{S_Q0}, s62, 5")


def p2_setup(a):
    L = V_LANE
    srd(a, SRD0, P_WQ, 0x400000)
    srd(a, SRD1, P_W1, 512 * 1792 * 2)
    a.e(f"s_cmp_lt_u32 s{S_H}, 28")
    a.e(f"s_cselect_b32 s{SRD1+2}, s{SRD1+2}, 0")
    a.e(f"s_and_b32 s62, s{S_WAVE}, 1")
    a.e(f"s_lshl_b32 s63, s62, 3")
    a.e(f"v_lshrrev_b32 v21, 4, v{L}")
    a.e(f"v_lshlrev_b32 v22, 1, v21")
    a.e(f"v_and_b32 v20, 15, v{L}")
    a.e(f"v_xor_b32 v20, v20, v22")
    a.e(f"v_xor_b32 v20, s63, v20")
    a.e(f"v_lshlrev_b32 v20, 4, v20")
    a.e(f"v_lshl_add_u32 v{V_QD}, v21, 13, v20")
    a.e(f"s_lshl_b32 s63, s{S_H}, 8")
    a.e(f"v_add_u32 v{V_QD}, s63, v{V_QD}")
    a.e(f"s_lshr_b32 s63, s{S_WAVE}, 1")
    a.e(f"s_lshl_b32 s63, s63, 2")
    a.e(f"s_lshl_b32 s74, s62, 1")
    a.e(f"s_add_u32 s63, s63, s74")
    a.e(f"s_lshl_b32 s{S_QSO}, s63, 15")
    a.e(f"s_add_u32 s{S_QSO+1}, s{S_QSO}, 32768")
    a.e(f"s_lshl_b32 s{S_QM0}, s63, 10")
    a.e(f"s_add_u32 s{S_QM0}, s{S_QM0}, {LDS_Q}")
    a.e(f"s_lshl_b32 s63, s62, 2")
    a.e(f"v_and_b32 v22, 2, v22")
    a.e(f"v_and_b32 v20, 7, v{L}")
    a.e(f"v_xor_b32 v20, v20, v22")
    a.e(f"v_xor_b32 v20, s63, v20")
    a.e(f"v_lshlrev_b32 v20, 4, v20")
    a.e(f"v_lshrrev_b32 v21, 3, v{L}")
    a.e(f"v_mul_u32_u24 v21, 3584, v21")
    a.e(f"v_add_u32 v{V_HD}, v21, v20")
    a.e(f"s_lshl_b32 s63, s{S_H}, 7")
    a.e(f"v_add_u32 v{V_HD}, s63, v{V_HD}")
    a.e(f"s_mul_i32 s{S_HSO}, s{S_WAVE}, {8*3584}")
    a.e(f"s_lshl_b32 s{S_HM0}, s{S_WAVE}, 10")
    a.e(f"s_add_u32 s{S_HM0}, s{S_HM0}, {LDS_H}")


def p2_setup_reads(a):
    L = V_LANE
    a.e(f"v_and_b32 v20, 15, v{L}")
    a.e(f"v_lshrrev_b32 v21, 4, v{L}")
    a.e(f"v_lshrrev_b32 v22, 2, v20")
    a.e(f"v_and_b32 v23, 1, v21")
    a.e(f"v_lshl_add_u32 v24, v23, 2, v22")
    a.e(f"v_lshrrev_b32 v25, 1, v22")
    a.e(f"v_lshl_add_u32 v25, v23, 1, v25")
    a.e(f"v_lshl_add_u32 v22, v21, 3, v22")
    a.e(f"v_and_b32 v26, 3, v{L}")
    a.e(f"v_lshlrev_b32 v26, 3, v26")
    a.e(f"v_lshl_add_u32 v27, v22, 8, v26")
    a.e(f"v_lshl_add_u32 v28, v22, 7, v26")
    if LDS_Q:
        a.e(f"v_add_u32 v27, {LDS_Q}, v27")
    a.e(f"v_add_u32 v28, {LDS_H}, v28")
    for d in range(8):
        a.e(f"v_xor_b32 v20, {d}, v24")
        a.e(f"v_lshl_add_u32 v{V_QA+d}, v20, 5, v27")
    for f in range(4):
        a.e(f"v_xor_b32 v20, {f}, v25")
        a.e(f"v_lshl_add_u32 v{V_HA+f}, v20, 5, v28")
    a.e(f"s_lshl_b32 s63, s{S_Q0}, 10")
    a.e(f"v_add_u32 v{V_XO}, s63, v{V_L16}")
    a.e(f"s_mov_b32 s{S_16K}, 16384")


def p2_dma(stage):
    sl = stage & 3
    g = []
    for j in range(2):
        g.append([f"s_add_u32 m0, s{S_QM0}, {sl*16384 + j*1024}",
                  I(f"buffer_load_dwordx4 v{V_QD}, s[{SRD0}:{SRD0+3}], s{S_QSO+j} offen lds", tag=("p2", stage))])
    g.append([f"s_add_u32 m0, s{S_HM0}, {sl*8192}",
              I(f"buffer_load_dwordx4 v{V_HD}, s[{SRD1}:{SRD1+3}], s{S_HSO} offen lds", tag=("p2", stage))])
    adv = [f"v_add_u32 v{V_QD}, 0x80000, v{V_QD}", f"v_add_u32 v{V_HD}, {64*3584}, v{V_HD}"]
    return g, adv


def p2_xload(stage, xsrd, sc=""):
    r = []
    for ks in range(2):
        for qb in range(2):
            k = 2 * stage + ks
            dst = BR + 4 * ((k & 3) * 2 + qb)
            so = f"s{S_16K}" if qb else "0"
            r.append(f"buffer_load_dwordx4 {v(dst,4)}, v{V_XO}, s[{xsrd}:{xsrd+3}], {so} offen offset:{ks*1024}{sc}")
    r.append(f"v_add_u32 v{V_XO}, 2048, v{V_XO}")
    return r


def p2_reads(stage, ks, fb):
    sl = stage & 3
    r = []
    for d in range(8):
        for e in range(2):
            r.append(f"ds_read_b64_tr_b16 {v(fb+4*d+2*e,2)}, v{V_QA+d} offset:{sl*16384 + ks*8192 + e*1024}")
    for f in range(4):
        for e in range(2):
            r.append(f"ds_read_b64_tr_b16 {v(fb+32+4*f+2*e,2)}, v{V_HA+f} offset:{sl*8192 + ks*4096 + e*512}")
    return r


def p2_mfmas(k, fb):
    m = []
    for d in range(12):
        for qb in ((0, 1) if d % 2 == 0 else (1, 0)):
            acc = QACC + 4 * (d * 2 + qb)
            c = None if (k == 0 and d < 8) else acc
            m.append(mfma(acc, fb + 4 * d, BR + 4 * ((k & 3) * 2 + qb), c))
    return m


def p2_stage(st, xsrd, sc=""):
    FA, FB = AF, AF + 48
    k = 2 * st
    out = [Need([v(FA, 48), v(BR + 8 * (k & 3), 8)])]
    out += weave(p2_mfmas(k, FA), [(max(i - 1, 0), 0, x) for i, x in enumerate(p2_reads(st, 1, FB))])
    if st < 7:
        out += [WaitTag(lambda t, st=st: t == ("p2", st + 1), lg0=True), "s_barrier"]
    out += [Need([v(FB, 48), v(BR + 8 * ((k + 1) & 3), 8)])]
    fl = []
    if st < 7:
        fl += [(max(i - 1, 0), 0, x) for i, x in enumerate(p2_reads(st + 1, 0, FA))]
    if st + 4 < 8:
        g, adv = p2_dma(st + 4)
        for j, (m0, ld) in enumerate(g):
            fl.append((4 * j + 1, 2, m0))
            fl.append((4 * j + 2, 1, ld))
        fl.append((14, 2, adv[0]))
        fl.append((15, 2, adv[1]))
    out += weave(p2_mfmas(k + 1, FB), fl)
    if st + 2 < 8:
        out += p2_xload(st + 2, xsrd, sc)
    return out


def p2_bias(a):
    L = V_LANE
    srd(a, SRD2, P_B1, 1792 * 2)
    a.e(f"v_lshrrev_b32 v20, 4, v{L}")
    a.e(f"v_lshlrev_b32 v20, 3, v20")
    a.e(f"s_lshl_b32 s63, s{S_H}, 7")
    for f in range(4):
        a.e(f"buffer_load_dwordx2 {v(22+2*f,2)}, v20, s[{SRD2}:{SRD2+3}], s63 offen offset:{f*32}")


def p2_bias_apply(a):
    for f in range(4):
        for qb in range(2):
            b = HACC + 4 * (f * 2 + qb)
            a.e(f"v_lshlrev_b32 v{b}, 16, v{22+2*f}")
            a.e(f"v_and_b32 v{b+1}, 0xffff0000, v{22+2*f}")
            a.e(f"v_lshlrev_b32 v{b+2}, 16, v{23+2*f}")
            a.e(f"v_and_b32 v{b+3}, 0xffff0000, v{23+2*f}")


QF = 32


def p2_epilogue(a, hsrd, hoff, sc=""):
    a.e(f"s_mov_b32 s63, {fhex(QSCALE)}")
    for qb in range(2):
        for t in range(4):
            for b in range(2):
                r = QACC + 4 * ((2 * t + b) * 2 + qb)
                for i in range(4):
                    a.e(f"v_mul_f32 v{r+i}, s63, v{r+i}")
                a.e(f"v_cvt_pk_bf16_f32 v{QF+16*qb+4*t+2*b}, v{r}, v{r+1}")
                a.e(f"v_cvt_pk_bf16_f32 v{QF+16*qb+4*t+2*b+1}, v{r+2}, v{r+3}")
    a.e(f"s_cmp_ge_u32 s{S_H}, 28")
    a.e(f"s_cbranch_scc1 L_p2_noh")
    a.e(f"s_lshr_b32 s60, s{S_Q0}, 4")
    a.e(f"s_mul_i32 s60, s60, {56*1024}")
    a.e(f"s_lshl_b32 s61, s{S_H}, 11")
    a.e(f"s_add_u32 s60, s60, s61")
    a.e(f"s_add_u32 s60, s60, {hex(hoff)}")
    for qb in range(2):
        for t in range(2):
            d = AF + 4 * (qb * 2 + t)
            for b in range(2):
                r = HACC + 4 * ((2 * t + b) * 2 + qb)
                for i in range(4):
                    a.e(f"v_max_f32 v{r+i}, 0, v{r+i}")
                for i in range(4):
                    a.e(f"v_mul_f32 v{r+i}, v{r+i}, v{r+i}")
                a.e(f"v_cvt_pk_bf16_f32 v{d+2*b}, v{r}, v{r+1}")
                a.e(f"v_cvt_pk_bf16_f32 v{d+2*b+1}, v{r+2}, v{r+3}")
            a.e(f"buffer_store_dwordx4 {v(d,4)}, v{V_L16}, s[{hsrd}:{hsrd+3}], s60 offen offset:{t*1024}{sc}", tag="h")
        if qb == 0:
            a.e(f"s_add_u32 s60, s60, {56*1024}")
    a.e("s_nop 1")
    a.flush()
    a.e("L_p2_noh:")


O_, L_, S_, P_, M_, ONES = 64, 128, 136, 152, 168, 176
KA, KB, VF = 180, 196, 212
V_KA, V_VA, V_KD = 2, 3, 4
V_MX = 5
V_NINF = 7
T0 = 16
S_T, S_CNT, S_KM, S_DM, S_DX, S_TO, S_MODE, S_REM, S_UD = 64, 65, 66, 67, 68, 69, 70, 71, 72
S_MK = 80
LDS_FLAG = 131072
SRD_KV, SRD_CTX = SRD4, SRD5
KVSC = ""
STB = 0
S_TODO, S_EPI = 73, 77
TODO_HOOK = None


def sblk(b, qb):
    return S_ + 4 * (b * 2 + qb)


CH = [(0, 0), (0, 1), (1, 0), (1, 1)]


def qk(ch, zero):
    b, qb = ch
    kf = KA if b == 0 else KB
    return [mfma(sblk(b, qb), kf + 4 * ks, QF + 16 * qb + 4 * ks,
                 (None if zero else M_ + 4 * qb) if ks == 0 else sblk(b, qb)) for ks in range(4)]


def pv(par):
    m = [mfma(L_ + 4 * qb, ONES, P_ + 8 * par + 4 * qb, L_ + 4 * qb) for qb in range(2)]
    for d in range(8):
        for qb in ((0, 1) if d % 2 == 0 else (1, 0)):
            o = O_ + 4 * (d * 2 + qb)
            m.append(mfma(o, VF + 4 * d, P_ + 8 * par + 4 * qb, o))
    return m


def kread(ul, b, ks):
    return f"ds_read_b128 {v((KA if b == 0 else KB)+4*ks,4)}, v{V_KA} offset:{(ul*8+b*4+ks)*1024}"


def vread(ul, d):
    return f"ds_read_b128 {v(VF+4*d,4)}, v{V_VA} offset:{16384+((2*ul+(d&1))*4+(d>>1))*1024}"


def exp_(ch, i):
    r = sblk(*ch) + i
    return f"v_exp_f32 v{r}, v{r}"


def cvt_(ch, half, par):
    b, qb = ch
    r = sblk(b, qb) + 2 * half
    return f"v_cvt_pk_bf16_f32 v{P_+8*par+4*qb+2*b+half}, v{r}, v{r+1}"


def carry(par):
    return [exp_(CH[3], 1), cvt_(CH[3], 0, par), exp_(CH[3], 2), exp_(CH[3], 3), cvt_(CH[3], 1, par)]


def kv_dma(V_KD=V_KD):
    g = []
    for half in range(2):
        g.append(f"s_mov_b32 m0, s{S_DM}" if half == 0 else f"s_add_u32 m0, s{S_DM}, 4096")
        for j in range(4):
            g.append(I(f"buffer_load_dwordx4 v{V_KD}, s[{SRD_KV}:{SRD_KV+3}], s{S_TO} offen offset:{j*1024}{KVSC} lds", tag="kv"))
        g.append(f"s_add_u32 s{S_TO}, s{S_TO}, {4096 if half == 0 else 32768-4096}")
    g.append(f"s_xor_b32 s{S_DM}, s{S_DM}, s{S_DX}")
    g.append(f"s_xor_b32 s{S_DX}, s{S_DX}, 0x18000")
    return g


def body(par, isA, diag=False, pfx="", cnt=True):
    chains = [c for c in CH if not (diag and c == (1, 0))]
    prim = []
    for c in chains:
        prim += qk(c, False)
    nq = len(prim)
    prim += pv(1 - par)
    n = len(prim)
    sh = nq - 16
    fl = []
    cy = carry(1 - par)
    fl += [(1, 1, cy[0]), (2, 2, cy[1]), (3, 1, cy[2]), (5, 1, cy[3]), (6, 2, cy[4])]
    for d in range(8):
        fl += [(2 * d if not diag else d, 0, vread(1 - par, d))]
    fl += [(4, 9, Need([v(KB, 16)]))]
    fl += [(16 + sh, 7, Need([v(VF, 24)])), (24 + sh, 9, Need([v(VF + 24, 8)]))]
    if not diag:
        pos = {CH[0]: [7, 9, 11, 13], CH[1]: [15, 17, 19, 21], CH[2]: [23, 25, 27, 29], CH[3]: [31]}
        for c in CH:
            for i, p in enumerate(pos[c]):
                fl.append((p, 1, exp_(c, i)))
            if c != CH[3]:
                fl.append((pos[c][1] + 1, 2, cvt_(c, 0, par)))
                fl.append((pos[c][3] + 1, 2, cvt_(c, 1, par)))
    else:
        pos = {CH[0]: [8, 9, 11, 13], CH[1]: [15, 17, 19, 21], CH[3]: [27]}
        for c in chains:
            if c[0] == c[1]:
                for i in range(4):
                    r = sblk(*c) + i
                    fl.append((pos[c][0] - 1, 5 + i, f"v_cndmask_b32 v{r}, v{r}, v{V_NINF}, s[{S_MK+2*i}:{S_MK+2*i+1}]"))
            for i, p in enumerate(pos[c]):
                fl.append((p, 1, exp_(c, i)))
            if c != CH[3]:
                fl.append((pos[c][1] + 1, 2, cvt_(c, 0, par)))
                fl.append((pos[c][3] + 1, 2, cvt_(c, 1, par)))
        fl.append((23, 2, f"v_mov_b32 v{P_+8*par+2}, 0"))
        fl.append((24, 2, f"v_mov_b32 v{P_+8*par+3}, 0"))
    if par == 1:
        bar = []
        if isA:
            bar += ["s_waitcnt vmcnt(8)", "s_barrier"]
            if TODO_HOOK and not diag:
                bar += [f"s_cmp_lg_u32 s{S_TODO}, 0", f"s_cbranch_scc1 {pfx}_todo", f"{pfx}_todo_ret:"]
        elif not diag:
            bar += ["s_waitcnt vmcnt(0)", "s_barrier"]
        else:
            bar += ["s_waitcnt vmcnt(0)", f"s_cmp_eq_u32 s{S_W3}, 3", f"s_cbranch_scc1 {pfx}_nobar", "s_barrier", f"{pfx}_nobar:"]
        fl.append((16 + sh, 8, bar))
        if not diag:
            fl.append((8, 3, f"v_xor_b32 v{V_KA}, s{S_KM}, v{V_KA}"))
            fl.append((12, 3, f"s_xor_b32 s{S_KM}, s{S_KM}, 0x18000"))
        if isA:
            g = kv_dma()
            for i, x in enumerate(g):
                fl.append((min(17 + sh + (i * 11) // len(g), n - 1), 4, x))
    else:
        fl.append((n - 2, 3, f"v_mov_b32 v{V_VA}, v{V_KA}"))
    if not diag:
        nl = 1 - par
        for i in range(8):
            fl.append((18 + 2 * i, 0, kread(nl, i // 4, i % 4)))
        fl.append((28, 9, f"s_sub_u32 s{S_CNT}, s{S_CNT}, 1"))
        fl.append((33, 1, Need([v(KA, 16)])))
    return weave(prim, fl)


def drain(par):
    out = []
    out += [vread(par, d) for d in range(8)]
    out += carry(par)
    out += pv(par)
    return out


def xmax(a, r, t):
    a.e(f"v_mov_b32 v{t}, v{r}")
    a.e(f"v_permlane16_swap_b32 v{r}, v{t}")
    a.e(f"v_max_f32 v{r}, v{r}, v{t}")
    a.e(f"v_mov_b32 v{t}, v{r}")
    a.e(f"v_permlane32_swap_b32 v{r}, v{t}")
    a.e(f"v_max_f32 v{r}, v{r}, v{t}")


def diag_mask(a):
    for c in (CH[0], CH[3]):
        for i in range(4):
            r = sblk(*c) + i
            a.e(f"v_cndmask_b32 v{r}, v{r}, v{V_NINF}, s[{S_MK+2*i}:{S_MK+2*i+1}]")
    for i in range(4):
        a.e(f"v_mov_b32 v{sblk(1,0)+i}, v{V_NINF}")


def p3_setup_once(a, V_KD=V_KD):
    L = V_LANE
    a.e(f"s_sub_u32 s{S_T}, 16, s{S_P}")
    a.e(f"s_lshl_b32 s{S_T}, s{S_T}, 1")
    a.e(f"s_lshl_b32 s60, s{S_H}, 20")
    a.e(f"s_add_u32 s60, s60, {hex(WS_KV)}")
    a.e(f"s_add_u32 s{SRD_KV}, s{P_WS}, s60")
    a.e(f"s_addc_u32 s{SRD_KV+1}, s{P_WS+1}, 0")
    a.e(f"s_lshl_b32 s{SRD_KV+2}, s{S_T}, 15")
    a.e(f"s_mov_b32 s{SRD_KV+3}, 0x20000")
    srd(a, SRD_CTX, P_WS, 0x1000000, WS_CTX)
    a.e(f"s_lshr_b32 s{S_UD}, s{S_Q0}, 5")
    a.e(f"s_mov_b32 s{S_MODE}, 0")
    a.e(f"s_lshl_b32 s60, s{S_W3}, 13")
    a.e(f"v_add_u32 v{V_KD}, s60, v{V_L16}")


def first_dma_regs(a):
    a.e(f"s_lshl_b32 s{S_DM}, s{S_W3}, 13")
    a.e(f"s_add_u32 s{S_DM}, s{S_DM}, 0x8000")
    a.e(f"s_mov_b32 s{S_DX}, 0x10000")
    a.e(f"s_mov_b32 s{S_TO}, 0")


def p3_first_dma(a, pfx):
    first_dma_regs(a)
    a.e(f"s_cmp_ge_u32 s{S_WAVE}, 4")
    a.e(f"s_cbranch_scc1 {pfx}_nodma")
    a.add(kv_dma())
    a.add(kv_dma())
    a.flush()
    a.e(f"{pfx}_nodma:")


def p3_consts(a):
    L = V_LANE
    a.e(f"v_mov_b32 v{V_NINF}, 0xff800000")
    a.e(f"v_and_b32 v{T0}, 15, v{L}")
    a.e(f"v_lshrrev_b32 v{T0+1}, 4, v{L}")
    a.e(f"v_lshlrev_b32 v{T0+1}, 2, v{T0+1}")
    for i in range(4):
        a.e(f"v_add_u32 v{T0+2}, {i}, v{T0+1}")
        a.e(f"v_cmp_gt_u32 s[{S_MK+2*i}:{S_MK+2*i+1}], v{T0+2}, v{T0}")
    a.e(f"v_and_b32 v{T0}, 3, v{L}")
    a.e(f"v_cmp_eq_u32 vcc, 0, v{T0}")
    a.e(f"v_mov_b32 v{T0+1}, 0x3f803f80")
    a.e(f"v_cndmask_b32 v{ONES}, 0, v{T0+1}, vcc")
    for i in range(1, 4):
        a.e(f"v_mov_b32 v{ONES+i}, v{ONES}")


def ovf_check(a):
    a.e(f"v_add_f32 v{T0+1}, v{L_}, v{L_+4}")
    a.e(f"v_mov_b32 v{T0+2}, 0x5f800000")
    a.e(f"v_cmp_nlt_f32 vcc, v{T0+1}, v{T0+2}")
    a.e(f"v_mov_b32 v{T0+3}, {LDS_FLAG}")
    a.e(f"v_mov_b32 v{T0+4}, 1")
    a.e(f"s_and_saveexec_b64 s[62:63], vcc")
    a.e(f"ds_write_b32 v{T0+3}, v{T0+4}")
    a.e(f"s_mov_b64 exec, s[62:63]")


def ctx_store(a, qb, sc=""):
    a.e(f"v_rcp_f32 v{T0}, v{L_+4*qb}")
    a.e(f"s_lshl_b32 s60, s{S_Q0}, 13")
    a.e(f"s_lshl_b32 s61, s{S_H}, 12")
    a.e(f"s_add_u32 s60, s60, s61")
    if qb:
        a.e(f"s_add_u32 s60, s60, {128*1024}")
    for t in range(4):
        d = KA + 4 * (qb * 4 + t)
        for b in range(2):
            r = O_ + 4 * ((2 * t + b) * 2 + qb)
            for i in range(4):
                a.e(f"v_mul_f32 v{r+i}, v{r+i}, v{T0}")
            a.e(f"v_cvt_pk_bf16_f32 v{d+2*b}, v{r}, v{r+1}")
            a.e(f"v_cvt_pk_bf16_f32 v{d+2*b+1}, v{r+2}, v{r+3}")
        a.e(f"buffer_store_dwordx4 {v(d,4)}, v{V_L16}, s[{SRD_CTX}:{SRD_CTX+3}], s60 offen offset:{t*1024}{sc}", tag="ctx")


def p3_main(a, pfx, sc="", last_hook=None, last_wait=0, b_hook=None, epi_hook=None):
    a.flush()
    a.e(f"{pfx}_start:")
    for r in range(O_, L_ + 8):
        a.e(f"v_mov_b32 v{r}, 0")
    a.e(f"v_add_u32 v{V_KA}, 0x8000, v{V_L16}")
    a.e(f"s_mov_b32 s{S_KM}, 0x10000")
    a.e(f"s_add_u32 s60, s{S_UD}, 1")
    a.e(f"s_lshr_b32 s60, s60, 1")
    a.e(f"s_add_u32 s60, s60, 1")
    a.e(f"s_min_u32 s60, s60, s{S_T}")
    a.e(f"s_sub_u32 s{S_REM}, s{S_T}, s60")
    a.e(f"v_mov_b32 v{T0}, {LDS_FLAG}")
    a.e(f"v_mov_b32 v{T0+1}, 0")
    a.e(f"ds_write_b32 v{T0}, v{T0+1}")
    a.e("s_waitcnt vmcnt(8) lgkmcnt(0)")
    a.e("s_barrier")
    stamp(a, STB + 3)
    for b in range(2):
        for ks in range(4):
            a.e(kread(0, b, ks))
    a.e(f"s_cmp_ge_u32 s{S_WAVE}, 4")
    a.e(f"s_cbranch_scc1 {pfx}_nodma2")
    a.add(kv_dma())
    a.flush()
    a.e(f"{pfx}_nodma2:")
    for c in CH:
        a.add(qk(c, True))
    for b in range(2):
        for ks in range(4):
            a.e(kread(1, b, ks))
    a.e(f"v_mov_b32 v{V_VA}, v{V_KA}")
    a.e("s_nop 7")
    a.e(f"s_cmp_lg_u32 s{S_UD}, 0")
    a.e(f"s_cbranch_scc1 {pfx}_nomask0")
    diag_mask(a)
    a.flush()
    a.e(f"{pfx}_nomask0:")
    for qb in range(2):
        s0, s1 = sblk(0, qb), sblk(1, qb)
        t = T0 + qb
        a.e(f"v_max3_f32 v{t}, v{s0}, v{s0+1}, v{s0+2}")
        a.e(f"v_max3_f32 v{t}, v{t}, v{s0+3}, v{s1}")
        a.e(f"v_max3_f32 v{t}, v{t}, v{s1+1}, v{s1+2}")
        a.e(f"v_max_f32 v{t}, v{t}, v{s1+3}")
        xmax(a, t, T0 + 2)
        a.e(f"v_sub_f32 v{t}, 0, v{t}")
    a.e(f"s_cmp_eq_u32 s{S_MODE}, 0")
    a.e(f"s_cbranch_scc1 {pfx}_standin")
    a.e(f"v_mov_b32 v{T0}, v{V_MX}")
    a.e(f"v_mov_b32 v{T0+1}, v{V_MX+1}")
    a.flush()
    a.e(f"{pfx}_standin:")
    for qb in range(2):
        for i in range(4):
            a.e(f"v_mov_b32 v{M_+4*qb+i}, v{T0+qb}")
    for c in CH:
        for i in range(4):
            a.e(f"v_add_f32 v{sblk(*c)+i}, v{sblk(*c)+i}, v{T0+c[1]}")
    for c in CH:
        for i in range(4 if c != CH[3] else 1):
            a.e(exp_(c, i))
        if c != CH[3]:
            a.e(cvt_(c, 0, 0))
            a.e(cvt_(c, 1, 0))
    a.add(Need([v(KA, 16)]))
    a.e(f"s_sub_u32 s{S_CNT}, s{S_UD}, 1")
    a.e(f"s_cselect_b32 s60, 1, 0")
    a.e(f"s_cmp_ge_u32 s{S_WAVE}, 4")
    a.e(f"s_cbranch_scc1 {pfx}_B")
    a.flush()
    st0 = a.st.copy()
    for isA in (True, False):
        R = pfx + ("_A" if isA else "_B")
        a.st = st0.copy()
        if not isA:
            a.st.vm = []
            a.e(f"{R}:")
        else:
            a.st.vm = [(set(), "kv")] * 16
        a.e("s_cmp_eq_u32 s60, 1")
        a.e(f"s_cbranch_scc1 {R}_drain0")
        a.e(f"s_sub_u32 s{S_CNT}, s{S_CNT}, 1")
        a.e(f"s_cbranch_scc1 {R}_diag1")
        a.e(".p2align 3")
        a.loop(f"{R}_loop",
               lambda: body(1, isA, pfx=R) + [f"s_cbranch_scc1 {R}_diag0"] + body(0, isA),
               [f"s_cbranch_scc0 {R}_loop"])
        stl = a.st.copy()
        a.e(f"{R}_diag1:")
        a.add(body(1, isA, True, R + "_d1"))
        a.add(drain(1))
        a.e(f"s_branch {R}_fin")
        a.flush()
        a.st = stl.copy()
        a.e(f"{R}_diag0:")
        a.add(body(0, isA, True, R + "_d0"))
        a.flush()
        a.st.lg = list(stl.lg)
        a.e(f"{R}_drain0:")
        a.add(drain(0))
        a.flush()
        a.e(f"{R}_fin:")
        a.e("s_waitcnt lgkmcnt(0)")
        if isA:
            a.e(f"s_mov_b32 s{S_EPI}, 1")
            a.e("s_nop 7")
            stamp(a, STB + 4)
            a.flush()
            a.st.vm = []
            a.e(f"{R}_ld:")
            a.e(f"s_cmp_eq_u32 s{S_REM}, 1")
            a.e(f"s_cbranch_scc1 {R}_last")
            a.e("s_waitcnt vmcnt(8)")
            a.e("s_barrier")
            a.add(kv_dma())
            a.e(f"s_branch {R}_post")
            a.flush()
            a.st.vm = []
            a.e(f"{R}_last:")
            a.e("s_waitcnt vmcnt(0)")
            a.e("s_barrier")
            if last_hook:
                last_hook(a)
            a.flush()
            a.st.vm = []
            a.e(f"{R}_post:")
            a.e(f"s_cmp_eq_u32 s{S_EPI}, 0")
            a.e(f"s_cbranch_scc1 {R}_skip")
            if TODO_HOOK:
                a.e(f"s_cmp_eq_u32 s{S_TODO}, 0")
                a.e(f"s_cbranch_scc1 {R}_notodo")
                TODO_HOOK(a)
                a.e(f"{R}_notodo:")
            ovf_check(a)
            ctx_store(a, 0, sc)
            ctx_store(a, 1, sc)
            if epi_hook:
                epi_hook(a)
            a.e(f"s_mov_b32 s{S_EPI}, 0")
            a.e(f"s_cmp_lg_u32 s{S_REM}, 1")
            a.e(f"s_cbranch_scc1 {R}_skip")
            a.e(f"s_waitcnt vmcnt({last_wait + 8 + (8 if epi_hook else 0)})")
            a.e(f"s_branch {pfx}_join")
            a.flush()
            a.st.vm = []
            a.e(f"{R}_skip:")
            a.e(f"s_sub_u32 s{S_REM}, s{S_REM}, 1")
            a.e(f"s_cmp_lg_u32 s{S_REM}, 0")
            a.e(f"s_cbranch_scc1 {R}_ld")
            a.e(f"s_waitcnt vmcnt({last_wait})")
            a.e(f"s_branch {pfx}_join")
            if TODO_HOOK:
                a.e(f"{R}_todo:")
                TODO_HOOK(a)
                a.e(f"s_branch {R}_todo_ret")
            a.flush()
        else:
            a.e("s_waitcnt vmcnt(0)")
            a.e(f"s_cmp_eq_u32 s{S_REM}, 0")
            a.e(f"s_cbranch_scc1 {R}_nob")
            a.e("s_barrier")
            a.e(f"{R}_nob:")
            a.e("s_nop 7")
            stamp(a, STB + 4)
            ovf_check(a)
            if b_hook:
                b_hook(a)
            a.flush()
    a.e(f"{pfx}_join:")
    a.e("s_waitcnt lgkmcnt(0)")
    a.e("s_barrier")
    a.e(f"v_mov_b32 v{T0}, {LDS_FLAG}")
    a.e(f"ds_read_b32 v{T0+1}, v{T0}")
    a.e("s_waitcnt lgkmcnt(0)")
    a.e(f"v_readfirstlane_b32 s60, v{T0+1}")
    a.e("s_nop 3")
    a.e(f"s_andn2_b32 s60, s60, s{S_MODE}")
    a.e("s_cmp_eq_u32 s60, 0")
    a.e(f"s_cbranch_scc1 {pfx}_done")
    a.e("s_waitcnt vmcnt(0)")
    a.e("s_barrier")
    a.e(f"s_mov_b32 s{S_MODE}, 1")
    a.e(f"v_mov_b32 v{V_MX}, v{V_NINF}")
    a.e(f"v_mov_b32 v{V_MX+1}, v{V_NINF}")
    a.e("s_mov_b32 s61, 0")
    a.flush()
    a.e(f"{pfx}_mx:")
    a.e("s_lshr_b32 s62, s61, 1")
    a.e("s_lshl_b32 s62, s62, 15")
    a.e("s_and_b32 s63, s61, 1")
    a.e("s_lshl_b32 s63, s63, 13")
    a.e("s_add_u32 s62, s62, s63")
    a.e("s_add_u32 s63, s62, 4096")
    for b in range(2):
        for ks in range(4):
            a.e(f"buffer_load_dwordx4 {v((KA if b == 0 else KB)+4*ks,4)}, v{V_L16}, s[{SRD_KV}:{SRD_KV+3}], s{62+b} offen offset:{ks*1024}")
    for c in CH:
        a.add(qk(c, True))
    a.e("s_nop 7")
    a.e(f"s_cmp_lg_u32 s61, s{S_UD}")
    a.e(f"s_cbranch_scc1 {pfx}_mx1")
    diag_mask(a)
    a.flush()
    a.e(f"{pfx}_mx1:")
    for qb in range(2):
        s0, s1 = sblk(0, qb), sblk(1, qb)
        t = V_MX + qb
        a.e(f"v_max3_f32 v{t}, v{t}, v{s0}, v{s0+1}")
        a.e(f"v_max3_f32 v{t}, v{t}, v{s0+2}, v{s0+3}")
        a.e(f"v_max3_f32 v{t}, v{t}, v{s1}, v{s1+1}")
        a.e(f"v_max3_f32 v{t}, v{t}, v{s1+2}, v{s1+3}")
    a.e("s_add_u32 s61, s61, 1")
    a.e(f"s_cmp_le_u32 s61, s{S_UD}")
    a.e(f"s_cbranch_scc1 {pfx}_mx")
    for qb in range(2):
        xmax(a, V_MX + qb, T0 + 2)
        a.e(f"v_sub_f32 v{V_MX+qb}, 0, v{V_MX+qb}")
    p3_first_dma(a, pfx + "_redo")
    a.e(f"s_branch {pfx}_start")
    a.flush()
    a.st = WState()
    a.e(f"{pfx}_done:")


def kernel_b(a):
    label = "kb_kernel"
    a.st = WState()
    kernel_head(a, label, 256)
    stamp_init(a, 1)
    stamp(a, 0)
    a.e(f"v_lshlrev_b32 v{V_L16}, 4, v{V_LANE}")
    q0_setup(a)
    p2_setup(a)
    for st in range(4):
        g, adv = p2_dma(st)
        for m0, ld in g:
            a.add([m0, ld])
        a.add(adv)
    p2_setup_reads(a)
    srd(a, SRD3, P_WS, WS_CTX)
    a.add(p2_xload(0, SRD3))
    a.add(p2_xload(1, SRD3))
    p2_bias(a)
    p2_bias_apply(a)
    a.add([WaitTag(lambda t: t == ("p2", 0)), "s_barrier"])
    stamp(a, 1)
    a.add(p2_reads(0, 0, AF))
    for st in range(8):
        a.add(p2_stage(st, SRD3))
    stamp(a, 2)
    a.e("s_barrier")
    p3_setup_once(a)
    a.flush()
    vm = list(a.st.vm)
    p3_first_dma(a, "LB")
    a.st.vm = vm
    sc = os.environ.get("SC", "")
    p2_epilogue(a, SRD3, WS_H, sc)
    a.e("s_waitcnt vmcnt(0)")
    p3_consts(a)
    p3_main(a, "LB", sc)
    a.e(f"s_cmp_lt_u32 s{S_WAVE}, 4")
    a.e(f"s_cbranch_scc1 LB_noepi")
    ctx_store(a, 0, sc)
    ctx_store(a, 1, sc)
    a.flush()
    a.e("LB_noepi:")
    stamp(a, 5)
    kernel_tail(a, label)
    return label
```

```python
from common import *
import os

V_LANE, V_L16 = 1, 14
V_WD, V_AD = 2, 3
V_WA = 4
V_BA = 8
FR = 32
GACC, SACC = 128, 192
S_J, S_RB, S_CB, S_TILE = 76, 77, 78, 79
S_WSO = 64
S_ASO = 68
S_WM0, S_AM0 = 70, 71
LDS_W, LDS_A = 0, 65536
NG, NS = 7, 16


def ids(a):
    a.e(f"s_and_b32 s60, s2, 7")
    a.e(f"s_lshr_b32 s61, s2, 3")
    a.e(f"s_and_b32 s{S_J}, s60, 3")
    a.e(f"s_lshr_b32 s60, s60, 2")
    a.e(f"s_lshl_b32 s60, s60, 3")
    a.e(f"s_lshr_b32 s{S_RB}, s61, 2")
    a.e(f"s_add_u32 s{S_RB}, s{S_RB}, s60")
    a.e(f"s_and_b32 s{S_CB}, s61, 3")
    a.e(f"s_lshl_b32 s{S_TILE}, s{S_RB}, 2")
    a.e(f"s_add_u32 s{S_TILE}, s{S_TILE}, s{S_CB}")


def loader_setup(a):
    L = V_LANE
    srd(a, SRD0, P_W2, 1792 * 1024)
    srd(a, SRD1, P_WO, 0x400000)
    srd(a, SRD2, P_WS, 0x700000, WS_H)
    srd(a, SRD3, P_WS, 0x1000000, WS_CTX)
    a.e(f"s_and_b32 s62, s{S_W3}, 1")
    a.e(f"s_lshl_b32 s63, s62, 2")
    a.e(f"v_lshrrev_b32 v17, 4, v{L}")
    a.e(f"v_or_b32 v18, s63, v17")
    a.e(f"v_lshlrev_b32 v18, 1, v18")
    a.e(f"v_and_b32 v16, 15, v{L}")
    a.e(f"v_xor_b32 v16, v16, v18")
    a.e(f"v_lshlrev_b32 v16, 4, v16")
    a.e(f"v_lshl_add_u32 v16, v17, 10, v16")
    a.e(f"s_lshl_b32 s63, s{S_CB}, 8")
    a.e(f"v_add_u32 v16, s63, v16")
    a.e(f"s_lshr_b32 s63, s{S_W3}, 1")
    a.e(f"s_lshl_b32 s63, s63, 3")
    a.e(f"s_add_u32 s63, s63, s62")
    a.e(f"s_lshl_b32 s{S_WSO}, s63, 12")
    for j in range(1, 4):
        a.e(f"s_add_u32 s{S_WSO+j}, s{S_WSO}, {j*8192}")
    a.e(f"s_lshl_b32 s{S_WM0}, s63, 10")
    if LDS_W:
        a.e(f"s_add_u32 s{S_WM0}, s{S_WM0}, {LDS_W}")
    a.e(f"s_lshl_b32 s{S_AM0}, s{S_W3}, 12")
    a.e(f"s_add_u32 s{S_AM0}, s{S_AM0}, {LDS_A}")


def loader_phase(isg):
    r = []
    kw = 448 * 1024 if isg else 1024 * 1024
    stride = 56 * 1024 if isg else 128 * 1024
    kk = 14 * 1024 if isg else 32 * 1024
    r.append(f"s_mul_i32 s63, s{S_J}, {kw}")
    r.append(f"v_add_u32 v{V_WD}, s63, v16")
    r.append(f"s_lshl_b32 s63, s{S_RB}, 3")
    r.append(f"s_lshl_b32 s62, s{S_W3}, 1")
    r.append(f"s_add_u32 s63, s63, s62")
    r.append(f"s_mul_i32 s{S_ASO}, s63, {stride}")
    r.append(f"s_add_u32 s{S_ASO+1}, s{S_ASO}, {stride}")
    r.append(f"s_mul_i32 s63, s{S_J}, {kk}")
    r.append(f"v_add_u32 v{V_AD}, s63, v{V_L16}")
    return r


def dma(stage, sc=""):
    sl = stage & 3
    isg = stage < NG
    ws, as_ = (SRD0, SRD2) if isg else (SRD1, SRD3)
    r = []
    if stage == 0 or stage == NG:
        r += loader_phase(isg)
    for j in range(4):
        r.append(f"s_add_u32 m0, s{S_WM0}, {sl*16384 + j*2048}")
        r.append(I(f"buffer_load_dwordx4 v{V_WD}, s[{ws}:{ws+3}], s{S_WSO+j} offen lds", tag=("p5", stage)))
    for i in range(2):
        r.append(f"s_add_u32 m0, s{S_AM0}, {sl*16384 + i*2048}")
        for ks in range(2):
            r.append(I(f"buffer_load_dwordx4 v{V_AD}, s[{as_}:{as_+3}], s{S_ASO+i} offen offset:{ks*1024}{sc} lds", tag=("p5", stage)))
    r.append(f"v_add_u32 v{V_WD}, 0x10000, v{V_WD}")
    r.append(f"v_add_u32 v{V_AD}, 2048, v{V_AD}")
    return r


def compute_setup(a):
    L = V_LANE
    a.e(f"v_and_b32 v16, 15, v{L}")
    a.e(f"v_lshrrev_b32 v17, 4, v{L}")
    a.e(f"v_lshrrev_b32 v18, 2, v16")
    a.e(f"v_lshl_add_u32 v18, v17, 2, v18")
    a.e(f"v_and_b32 v19, 7, v18")
    a.e(f"v_and_b32 v20, 3, v{L}")
    a.e(f"v_lshlrev_b32 v20, 3, v20")
    a.e(f"v_lshl_add_u32 v18, v18, 8, v20")
    if LDS_W:
        a.e(f"v_add_u32 v18, {LDS_W}, v18")
    a.e(f"s_and_b32 s62, s{S_W3}, 1")
    a.e(f"s_lshl_b32 s62, s62, 2")
    a.e(f"v_xor_b32 v19, s62, v19")
    for m in range(4):
        a.e(f"v_xor_b32 v20, {m}, v19")
        a.e(f"v_lshl_add_u32 v{V_WA+m}, v20, 5, v18")
    a.e(f"s_lshr_b32 s62, s{S_W3}, 1")
    a.e(f"s_lshl_b32 s62, s62, 13")
    a.e(f"s_add_u32 s62, s62, {LDS_A}")
    a.e(f"v_add_u32 v{V_BA}, s62, v{V_L16}")


def reads(stage, ks, fb):
    sl = stage & 3
    r = []
    for q in range(4):
        r.append(f"ds_read_b128 {v(fb+16+4*q,4)}, v{V_BA} offset:{sl*16384 + q*2048 + ks*1024}")
    for m in range(4):
        for e in range(2):
            r.append(f"ds_read_b64_tr_b16 {v(fb+4*m+2*e,2)}, v{V_WA+m} offset:{sl*16384 + ks*8192 + e*4096}")
    return r


def mfmas(acc, fb, first):
    m = []
    for mb in range(4):
        for q in (range(4) if mb % 2 == 0 else range(3, -1, -1)):
            d = acc + 4 * (q * 4 + mb)
            m.append(mfma(d, fb + 4 * mb, fb + 16 + 4 * q, None if first else d))
    return m


def cstage(stage, first=False):
    acc = GACC if stage < NG else SACC
    FA, FB = FR, FR + 32
    out = weave(mfmas(acc, FA, first), [(i // 2 if i < 4 else i - 2, 0, x) for i, x in enumerate(reads(stage, 1, FB))])
    out += ["s_waitcnt lgkmcnt(0)", "s_barrier"]
    fl = [(i // 2 if i < 4 else i - 2, 0, x) for i, x in enumerate(reads(stage + 1, 0, FA))]
    fl.append((15, 1, Need([v(FA, 32)])))
    out += weave(mfmas(acc, FB, False), fl)
    return out


def store_partial(a, acc, srd_, sc=""):
    a.e(f"s_lshl_b32 s60, s{S_TILE}, 2")
    a.e(f"s_add_u32 s60, s60, s{S_J}")
    a.e(f"s_lshl_b32 s60, s60, 2")
    a.e(f"s_add_u32 s60, s60, s{S_W3}")
    a.e(f"s_lshl_b32 s60, s60, 14")
    for q in range(4):
        for mb in range(4):
            a.e(f"buffer_store_dwordx4 {v(acc+4*(q*4+mb),4)}, v{V_L16}, s[{srd_}:{srd_+3}], s60 offen offset:{mb*1024}{sc}", tag="part")
        if q < 3:
            a.e("s_add_u32 s60, s60, 4096")


def kernel_c(a):
    label = "kc_kernel"
    a.st = WState()
    kernel_head(a, label, 256)
    stamp_init(a, 2)
    stamp(a, 0)
    a.e(f"v_lshlrev_b32 v{V_L16}, 4, v{V_LANE}")
    ids(a)
    a.e(f"s_cmp_lt_u32 s{S_WAVE}, 4")
    a.e("s_cbranch_scc1 LC_comp")
    a.flush()
    st0 = a.st.copy()
    loader_setup(a)
    for st in range(4):
        a.add(dma(st))
    a.add([WaitTag(lambda t: t == ("p5", 0)), "s_barrier"])
    stamp(a, 1)
    for st in range(NG + NS):
        a.add([WaitTag(lambda t, st=st: t == ("p5", st + 1)), "s_barrier"])
        if st + 4 < NG + NS:
            a.add(dma(st + 4))
        if st == NG - 1:
            stamp(a, 2)
    stamp(a, 3)
    stamp(a, 4)
    a.e("s_endpgm")
    a.flush()
    a.st = st0.copy()
    a.e("LC_comp:")
    compute_setup(a)
    srd(a, SRD4, P_WS, 0x1000000, WS_GP)
    srd(a, SRD5, P_WS, 0x1000000, WS_SP)
    a.e("s_barrier")
    stamp(a, 1)
    a.add(reads(0, 0, FR))
    a.add(Need([v(FR, 32)]))
    for st in range(NG):
        a.add(cstage(st, st == 0))
    stamp(a, 2)
    a.add(cstage(NG, True))
    store_partial(a, GACC, SRD4, os.environ.get('SC', ''))
    for st in range(NG + 1, NG + 4):
        a.add(cstage(st))
    a.e("s_mov_b32 s75, 3")
    a.flush()
    a.st.vm = []
    a.loop("LC_loop", lambda: [cstage(st) for st in range(NG + 4, NG + 8)],
           ["s_sub_u32 s75, s75, 1", "s_cmp_lg_u32 s75, 0", "s_cbranch_scc1 LC_loop"])
    stamp(a, 3)
    store_partial(a, SACC, SRD5, os.environ.get('SC', ''))
    if STAMP:
        a.e("s_waitcnt vmcnt(0)")
    stamp(a, 4)
    kernel_tail(a, label)
    return label


def final_math(a, g, s_, x, b2, t):
    for i in range(4):
        if i % 2 == 0:
            a.e(f"v_lshlrev_b32 v{t}, 16, v{b2+i//2}")
        else:
            a.e(f"v_and_b32 v{t}, 0xffff0000, v{b2+i//2}")
        a.e(f"v_add_f32 v{g+i}, v{g+i}, v{t}")
        a.e(f"v_mul_f32 v{t}, 0xbfb8aa3b, v{g+i}")
        a.e(f"v_exp_f32 v{t}, v{t}")
        a.e(f"v_add_f32 v{t}, 1.0, v{t}")
        a.e(f"v_rcp_f32 v{t}, v{t}")
        a.e(f"v_mul_f32 v{g+i}, v{g+i}, v{t}")
        if i % 2 == 0:
            a.e(f"v_lshlrev_b32 v{t}, 16, v{x+i//2}")
        else:
            a.e(f"v_and_b32 v{t}, 0xffff0000, v{x+i//2}")
        a.e(f"v_fma_f32 v{g+i}, v{s_+i}, v{g+i}, v{t}")
    a.e(f"v_cvt_pk_bf16_f32 v{x}, v{g}, v{g+1}")
    a.e(f"v_cvt_pk_bf16_f32 v{x+1}, v{g+2}, v{g+3}")


def kernel_d(a):
    label = "kd_kernel"
    a.st = WState()
    kernel_head(a, label, 256)
    stamp_init(a, 3)
    stamp(a, 0)
    L = V_LANE
    a.e(f"v_lshlrev_b32 v{V_L16}, 4, v{L}")
    srd(a, SRD0, P_WS, 0x1000000, WS_GP)
    srd(a, SRD1, P_WS, 0x1000000, WS_SP)
    srd(a, SRD2, P_X, 0x200000)
    srd(a, SRD3, P_OUT, 0x200000)
    srd(a, SRD4, P_B2, 1024)
    a.e("s_lshr_b32 s64, s2, 2")
    a.e("s_and_b32 s65, s2, 3")
    a.e("s_lshl_b32 s60, s64, 18")
    a.e("s_lshl_b32 s61, s65, 14")
    a.e("s_add_u32 s60, s60, s61")
    a.e(f"s_lshl_b32 s61, s{S_WAVE}, 12")
    a.e("s_add_u32 s60, s60, s61")
    G, S_, X, B = 16, 48, 112, 120
    G0 = 16
    GB, SB = 16, 64
    for j in range(4):
        for mb in range(4):
            a.e(f"buffer_load_dwordx4 {v(16+16*j+4*mb,4)}, v{V_L16}, s[{SRD0}:{SRD0+3}], s60 offen offset:{mb*1024}")
        if j < 2:
            for mb in range(4):
                a.e(f"buffer_load_dwordx4 {v(80+16*j+4*mb,4)}, v{V_L16}, s[{SRD1}:{SRD1+3}], s60 offen offset:{mb*1024}")
        a.e("s_add_u32 s60, s60, 0x10000")
    a.e("s_lshr_b32 s66, s64, 2")
    a.e("s_lshl_b32 s66, s66, 7")
    a.e("s_lshr_b32 s67, s65, 1")
    a.e("s_lshl_b32 s67, s67, 6")
    a.e("s_add_u32 s66, s66, s67")
    a.e(f"s_lshl_b32 s67, s{S_WAVE}, 4")
    a.e("s_add_u32 s66, s66, s67")
    a.e("s_lshl_b32 s66, s66, 10")
    a.e("s_and_b32 s67, s64, 3")
    a.e("s_lshl_b32 s67, s67, 8")
    a.e("s_and_b32 s68, s65, 1")
    a.e("s_lshl_b32 s68, s68, 7")
    a.e("s_add_u32 s67, s67, s68")
    a.e("s_add_u32 s66, s66, s67")
    a.e(f"v_lshrrev_b32 v2, 4, v{L}")
    a.e("v_lshlrev_b32 v2, 3, v2")
    a.e(f"v_and_b32 v3, 15, v{L}")
    a.e("v_lshl_add_u32 v3, v3, 10, v2")
    for mb in range(4):
        a.e(f"buffer_load_dwordx2 {v(112+2*mb,2)}, v3, s[{SRD2}:{SRD2+3}], s66 offen offset:{mb*32}")
        a.e(f"buffer_load_dwordx2 {v(120+2*mb,2)}, v2, s[{SRD4}:{SRD4+3}], s67 offen offset:{mb*32}")
    for j in range(1, 4):
        for i in range(16):
            a.e(f"v_add_f32 v{16+i}, v{16+i}, v{16+16*j+i}")
    a.e("s_sub_u32 s60, s60, 0x20000")
    for j in range(2):
        for mb in range(4):
            a.e(f"buffer_load_dwordx4 {v(32+16*j+4*mb,4)}, v{V_L16}, s[{SRD1}:{SRD1+3}], s60 offen offset:{mb*1024}")
        a.e("s_add_u32 s60, s60, 0x10000")
    for src in (96, 32, 48):
        for i in range(16):
            a.e(f"v_add_f32 v{80+i}, v{80+i}, v{src+i}")
    for mb in range(4):
        final_math(a, 16 + 4 * mb, 80 + 4 * mb, 112 + 2 * mb, 120 + 2 * mb, 4)
        a.e(f"buffer_store_dwordx2 {v(112+2*mb,2)}, v3, s[{SRD3}:{SRD3+3}], s66 offen offset:{mb*32}")
    if STAMP:
        a.e("s_waitcnt vmcnt(0)")
    stamp(a, 1)
    kernel_tail(a, label)
    return label
```

```python
from asmlib import *
import os
STAMP = bool(os.environ.get("STAMP"))

NAME = "recurrent_scan__compressed_kv_cla__dense_activation_squared_relu__prompt"

WS_XN = 0x0000000
WS_KV = 0x0200000
WS_H = 0x2200000
WS_CTX = 0x2900000
WS_GP = 0x3900000
WS_SP = 0x4900000
WS_FLAG = 0x5900000
WS_SIZE = 268435456

P_X, P_CKV, P_WQ, P_WUK, P_WUV, P_WO, P_BX, P_W1 = 4, 6, 8, 10, 12, 14, 16, 18
P_B1, P_W2, P_B2, P_OUT, P_DBG, P_WS = 20, 22, 24, 26, 28, 30
SRD0, SRD1, SRD2, SRD3, SRD4, SRD5 = 32, 36, 40, 44, 48, 52
S_WAVE, S_H, S_P, S_W3 = 56, 57, 58, 59

MFMA = "v_mfma_f32_16x16x32_bf16"


def mfma(d, a, b, c):
    cs = "0" if c is None else v(c, 4)
    return f"{MFMA} {v(d,4)}, {v(a,4)}, {v(b,4)}, {cs}"


def srd(a, dst, ptr, size, off=0):
    if off:
        a.e(f"s_add_u32 s{dst}, s{ptr}, {hex(off)}")
        a.e(f"s_addc_u32 s{dst+1}, s{ptr+1}, 0")
    else:
        a.e(f"s_mov_b32 s{dst}, s{ptr}")
        a.e(f"s_mov_b32 s{dst+1}, s{ptr+1}")
    a.e(f"s_mov_b32 s{dst+2}, {hex(size)}")
    a.e(f"s_mov_b32 s{dst+3}, 0x20000")


def kernel_head(a, label, nwg, code_lines=0, wait=True):
    a.e(f".globl {label}")
    a.e(".p2align 8")
    a.e(f".type {label},@function")
    a.e(f"{label}:")
    a.e(f"s_cmp_ge_u32 s2, {nwg}")
    a.e(f"s_cbranch_scc1 L_{label}_end")
    if STAMP:
        a.e("s_memtime s[84:85]")
        a.e("s_memrealtime s[82:83]")
    a.e("s_load_dwordx16 s[4:19], s[0:1], 0")
    a.e("s_load_dwordx8 s[20:27], s[0:1], 64")
    a.e("s_load_dwordx4 s[28:31], s[0:1], 96")
    if code_lines:
        a.e("s_getpc_b64 s[60:61]")
        a.e("s_lshr_b32 s62, s2, 3")
        a.e("v_lshl_add_u32 v2, s62, 9, v0")
        a.e("v_lshrrev_b32 v2, 4, v2")
        a.e(f"v_min_u32 v2, {code_lines - 1}, v2")
        a.e("v_lshlrev_b32 v2, 7, v2")
        a.e("global_load_dword v31, v2, s[60:61]")
    a.e("v_lshrrev_b32 v2, 6, v0")
    a.e("v_and_b32 v1, 63, v0")
    a.e(f"v_readfirstlane_b32 s{S_WAVE}, v2")
    a.e(f"s_and_b32 s{S_H}, s2, 7")
    a.e(f"s_lshl_b32 s{S_H}, s{S_H}, 2")
    a.e("s_lshr_b32 s60, s2, 3")
    a.e("s_and_b32 s60, s60, 3")
    a.e(f"s_add_u32 s{S_H}, s{S_H}, s60")
    a.e(f"s_lshr_b32 s{S_P}, s2, 5")
    a.e(f"s_and_b32 s{S_W3}, s{S_WAVE}, 3")
    if wait:
        a.e("s_waitcnt lgkmcnt(0)")


def kernel_tail(a, label):
    a.flush()
    a.e(f"L_{label}_end:")
    a.e("s_endpgm")
    a.flush()


def descriptor(label, nv=256):
    return f""".p2align 6
.amdhsa_kernel {label}
  .amdhsa_next_free_vgpr {nv}
  .amdhsa_next_free_sgpr 102
  .amdhsa_accum_offset {(nv+3)//4*4}
  .amdhsa_group_segment_fixed_size 0
  .amdhsa_kernarg_size 112
  .amdhsa_user_sgpr_count 2
  .amdhsa_user_sgpr_kernarg_segment_ptr 1
  .amdhsa_system_sgpr_workgroup_id_x 1
.end_amdhsa_kernel
"""


def wave_sum(a, r, t):
    for rot in (8, 4, 2, 1):
        a.e(f"v_add_f32_dpp v{r}, v{r}, v{r} row_ror:{rot} row_mask:0xf bank_mask:0xf")
    a.e(f"v_mov_b32 v{t}, v{r}")
    a.e(f"v_permlane16_swap_b32 v{r}, v{t}")
    a.e(f"v_add_f32 v{r}, v{r}, v{t}")
    a.e(f"v_mov_b32 v{t}, v{r}")
    a.e(f"v_permlane32_swap_b32 v{r}, v{t}")
    a.e(f"v_add_f32 v{r}, v{r}, v{t}")


def round_bf16(a, r):
    a.e(f"v_cvt_pk_bf16_f32 v{r}, v{r}, v{r}")
    a.e(f"v_lshlrev_b32 v{r}, 16, v{r}")


WS_STAMP = 0x5A00000


def stamp_init(a, kidx):
    if not STAMP:
        return
    srd(a, 92, P_WS, 0x100000, WS_STAMP + kidx * 0x40000)
    a.e(f"s_lshl_b32 s97, s2, 3")
    a.e(f"s_add_u32 s97, s97, s{S_WAVE}")
    a.e(f"s_lshl_b32 s97, s97, 7")


def stamp(a, idx):
    if not STAMP:
        return
    if idx == 0:
        a.e("s_mov_b32 s98, s84")
        a.e("s_mov_b32 s100, s82")
    else:
        a.e("s_memtime s[98:99]")
        a.e("s_memrealtime s[100:101]")
        a.e("s_waitcnt lgkmcnt(0)")
    a.e("v_mov_b32 v15, s98")
    a.e(f"buffer_store_dword v15, off, s[92:95], s97 offset:{idx*8}")
    a.e("v_mov_b32 v15, s100")
    a.e(f"buffer_store_dword v15, off, s[92:95], s97 offset:{idx*8+4}")
```

```python
from common import *
import p1, p3, p5, os
OPT = os.environ.get('OPT', '')
from p1 import V_LANE, V_L16

SC = " sc1"
SRD_F = 88
F_KV, F_H, F_CTX, F_G, F_S = 0, 128, 256, 384, 512
V_DUM = 31
CODE_LINES = int(os.environ.get('CODE_LINES', '0'))
LDS_H = 131072
S_SPIN = 3
_uid = [0]


_stamp = stamp
def stamp(a, idx, grp=None):
    sel = [c for c in "STUV" if c in OPT]
    if grp in (True, 'S'):
        grp = 'S'
    if grp:
        if grp in OPT:
            _stamp(a, idx)
        return
    if sel and idx >= (10 if 'T' in sel else 8):
        return
    _stamp(a, idx)


def cap(fn, *args):
    t = Asm()
    fn(t, *args)
    return t.cur


def spread(lst, lo, hi, prio=5):
    n = len(lst)
    return [(lo + (i * (hi - lo + 1)) // n, prio, x) for i, x in enumerate(lst)]


def poll_load(dst, addr, srd_, soff="0"):
    return f"buffer_load_dword v{dst}, v{addr}, s[{srd_}:{srd_+3}], {soff} offen sc1"


def poll_check(a, dst, addr, srd_, expect, soff="0"):
    _uid[0] += 1
    L = f"L_poll{_uid[0]}"
    a.add(Need([v(dst)]))
    a.e(f"v_cmp_gt_u32 vcc, {expect}, v{dst}")
    a.e("s_nop 0")
    a.e(f"s_cbranch_vccz {L}_ok")
    a.flush()
    st = a.st.copy()
    a.e(f"s_mov_b32 s{S_SPIN}, 0x10000")
    a.e(f"{L}:")
    a.e("s_sleep 2")
    a.e(poll_load(dst, addr, srd_, soff))
    a.e("s_waitcnt vmcnt(0)")
    a.e(f"v_cmp_gt_u32 vcc, {expect}, v{dst}")
    a.e(f"s_sub_u32 s{S_SPIN}, s{S_SPIN}, 1")
    a.e(f"s_cbranch_scc1 {L}_ok")
    a.e(f"s_cbranch_vccnz {L}")
    a.flush()
    a.st = st
    a.e(f"{L}_ok:")


def set_flag(ftype, t0, cond_wave, ts=60):
    return [f"v_mov_b32 v{t0}, 1", f"s_lshl_b32 s{ts}, s2, 10", f"s_cmp_eq_u32 s{S_WAVE}, {cond_wave}",
            f"s_cselect_b32 s{ts}, s{ts}, 0x40000",
            f"buffer_store_dword v{t0}, off, s[{SRD_F}:{SRD_F+3}], s{ts} offset:{ftype} sc1"]


V_CD, V_WD1 = 2, 3
S_CSO, S_WSO1, S_CM0, S_WM01 = 64, 72, 80, 81
WSO1 = [72, 73, 78, 79]
SRD_WK, SRD_WV = SRD2, SRD4
S_TC, S_TW = 64, 65


def k_dma_setup(a):
    L = V_LANE
    a.e(f"s_and_b32 s62, s{S_WAVE}, 1")
    a.e(f"s_lshl_b32 s63, s62, 2")
    a.e(f"v_and_b32 v20, 7, v{L}")
    a.e(f"v_lshrrev_b32 v21, 4, v{L}")
    a.e(f"v_xor_b32 v20, v20, v21")
    a.e(f"v_xor_b32 v20, s63, v20")
    a.e(f"v_lshlrev_b32 v20, 4, v20")
    a.e(f"v_lshrrev_b32 v22, 3, v{L}")
    a.e(f"v_lshl_add_u32 v{V_CD}, v22, 10, v20")
    a.e(f"s_lshl_b32 s63, s{S_P}, 18")
    a.e(f"v_add_u32 v{V_CD}, s63, v{V_CD}")
    a.e(f"s_lshr_b32 s63, s{S_WAVE}, 1")
    a.e(f"s_lshl_b32 s74, s63, 4")
    a.e(f"s_add_u32 s74, s74, s62")
    a.e(f"s_lshl_b32 s{S_CM0}, s74, 10")
    a.e(f"s_lshl_b32 s{S_CSO}, s74, 13")
    for j in range(1, 8):
        a.e(f"s_add_u32 s{S_CSO+j}, s{S_CSO}, {j*16384}")
    a.e(f"s_lshl_b32 s74, s62, 3")
    a.e(f"v_lshlrev_b32 v22, 1, v21")
    a.e(f"v_and_b32 v20, 15, v{L}")
    a.e(f"v_xor_b32 v20, v20, v22")
    a.e(f"v_xor_b32 v20, s74, v20")
    a.e(f"v_lshlrev_b32 v20, 4, v20")
    a.e(f"v_lshl_add_u32 v{V_WD1}, v21, 13, v20")
    a.e(f"s_lshl_b32 s74, s{S_H}, 8")
    a.e(f"v_add_u32 v{V_WD1}, s74, v{V_WD1}")
    a.e(f"s_lshl_b32 s63, s63, 3")
    a.e(f"s_lshl_b32 s74, s62, 1")
    a.e(f"s_add_u32 s63, s63, s74")
    a.e(f"s_lshl_b32 s{WSO1[0]}, s63, 15")
    for j in range(1, 4):
        a.e(f"s_add_u32 s{WSO1[j]}, s{WSO1[0]}, {((j&1)+4*(j>>1))*32768}")
    a.e(f"s_lshl_b32 s{S_WM01}, s63, 10")
    a.e(f"s_add_u32 s{S_WM01}, s{S_WM01}, {p1.LDS_W}")


def k_dma(stage):
    par = stage & 1
    g = []
    for j in range(8):
        g.append([f"s_add_u32 m0, s{S_CM0}, {par*32768 + j*2048}",
                  I(f"buffer_load_dwordx4 v{V_CD}, s[{SRD1}:{SRD1+3}], s{S_CSO+j} offen lds", tag=("p1", stage))])
    for mat in range(2):
        sr = SRD_WV if mat else SRD_WK
        for j in range(4):
            g.append([f"s_add_u32 m0, s{S_WM01}, {par*32768 + mat*16384 + ((j&1)+4*(j>>1))*1024}",
                      I(f"buffer_load_dwordx4 v{V_WD1}, s[{sr}:{sr+3}], s{WSO1[j]} offen lds", tag=("p1", stage))])
    g = [x for pair in zip(g[:8], g[8:]) for x in pair]
    adv = [f"v_add_u32 v{V_CD}, 128, v{V_CD}", f"v_add_u32 v{V_WD1}, 0x80000, v{V_WD1}"]
    return g, adv


def touch_setup(a):
    L = V_LANE
    a.e(f"v_lshrrev_b32 v{V_CD}, 2, v{L}")
    a.e(f"v_lshlrev_b32 v{V_CD}, 10, v{V_CD}")
    a.e(f"s_and_b32 s62, s{S_H}, 3")
    a.e(f"s_lshl_b32 s62, s62, 2")
    a.e(f"s_add_u32 s62, s62, s{S_W3}")
    a.e(f"s_lshl_b32 s62, s62, 14")
    a.e(f"s_lshl_b32 s63, s{S_P}, 18")
    a.e(f"s_add_u32 s{S_TC}, s62, s63")
    a.e(f"v_and_b32 v{V_WD1}, 32, v{L}")
    a.e(f"v_lshlrev_b32 v{V_WD1}, 8, v{V_WD1}")
    a.e(f"v_and_b32 v20, 16, v{L}")
    a.e(f"v_lshl_add_u32 v{V_WD1}, v20, 3, v{V_WD1}")
    a.e(f"s_lshl_b32 s62, s{S_P}, 2")
    a.e(f"s_add_u32 s62, s62, s{S_W3}")
    a.e(f"s_lshl_b32 s62, s62, 14")
    a.e(f"s_lshl_b32 s63, s{S_H}, 8")
    a.e(f"s_add_u32 s{S_TW}, s62, s63")


def touch_p1(stage):
    return [f"s_add_u32 s62, s{S_TC}, {stage*128}",
            f"buffer_load_dword v{V_DUM}, v{V_CD}, s[{SRD1}:{SRD1+3}], s62 offen",
            f"s_add_u32 s62, s{S_TW}, {stage*0x80000}",
            f"buffer_load_dword v{V_DUM}, v{V_WD1}, s[{SRD_WK}:{SRD_WK+3}], s62 offen",
            f"buffer_load_dword v{V_DUM}, v{V_WD1}, s[{SRD_WV}:{SRD_WV+3}], s62 offen"]


S_ROW = 77


LNB = (128, 144)


def ln_issue(a):
    srd(a, SRD0, P_X, 2097152)
    for r, b in enumerate(LNB):
        a.e(f"buffer_load_dwordx4 {v(b,4)}, v{V_L16}, s[{SRD0}:{SRD0+3}], s{S_ROW} offen offset:{r*1024}")


def ln_row(a, b, r):
    F, M, T, V_ = b + 4, b + 12, b + 13, b + 14
    for i in range(4):
        a.e(f"v_lshlrev_b32 v{F+2*i}, 16, v{b+i}")
        a.e(f"v_and_b32 v{F+1+2*i}, 0xffff0000, v{b+i}")
    for i in range(4):
        a.e(f"v_add_f32 v{b+i}, v{F+2*i}, v{F+1+2*i}")
    a.e(f"v_add_f32 v{b}, v{b}, v{b+1}")
    a.e(f"v_add_f32 v{b+2}, v{b+2}, v{b+3}")
    a.e(f"v_add_f32 v{M}, v{b}, v{b+2}")
    wave_sum(a, M, T)
    a.e(f"v_mul_f32 v{M}, 0x3b000000, v{M}")
    for h in range(2):
        for i in range(4):
            a.e(f"v_sub_f32 v{b+i}, v{F+4*h+i}, v{M}")
        if h == 0:
            a.e(f"v_mul_f32 v{V_}, v{b}, v{b}")
            a.e(f"v_mul_f32 v{V_+1}, v{b+1}, v{b+1}")
        else:
            a.e(f"v_fmac_f32 v{V_}, v{b}, v{b}")
            a.e(f"v_fmac_f32 v{V_+1}, v{b+1}, v{b+1}")
        a.e(f"v_fmac_f32 v{V_}, v{b+2}, v{b+2}")
        a.e(f"v_fmac_f32 v{V_+1}, v{b+3}, v{b+3}")
    a.e(f"v_add_f32 v{V_}, v{V_}, v{V_+1}")
    wave_sum(a, V_, T)
    a.e(f"v_mul_f32 v{V_}, 0x3b000000, v{V_}")
    round_bf16(a, M)
    round_bf16(a, V_)
    a.e(f"v_add_f32 v{V_}, 0x3727c5ac, v{V_}")
    round_bf16(a, V_)
    a.e(f"v_sqrt_f32 v{V_}, v{V_}")
    round_bf16(a, V_)
    a.e(f"v_rcp_f32 v{V_}, v{V_}")
    for i in range(8):
        a.e(f"v_sub_f32 v{F+i}, v{F+i}, v{M}")
    for i in range(4):
        a.e(f"v_cvt_pk_bf16_f32 v{b+i}, v{F+2*i}, v{F+1+2*i}")
    for i in range(4):
        a.e(f"v_lshlrev_b32 v{F+2*i}, 16, v{b+i}")
        a.e(f"v_and_b32 v{F+1+2*i}, 0xffff0000, v{b+i}")
    for i in range(8):
        a.e(f"v_mul_f32 v{F+i}, v{F+i}, v{V_}")
    for i in range(4):
        a.e(f"v_cvt_pk_bf16_f32 v{b+i}, v{F+2*i}, v{F+1+2*i}")
    a.e(f"ds_write_b128 v30, {v(b,4)} offset:{16*r}")


def ln_compute(a):
    a.e(f"s_lshl_b32 s60, s{S_W3}, 5")
    a.e(f"s_add_u32 s60, s60, {LDS_H}")
    a.e(f"v_lshlrev_b32 v30, 7, v{V_LANE}")
    a.e("v_add_u32 v30, s60, v30")
    r0, r1 = cap(ln_row, LNB[0], 0), cap(ln_row, LNB[1], 1)
    for x, y in zip(r0, r1):
        a.add([x, y])


def ln_store(a):
    L = V_LANE
    a.e(f"s_lshl_b32 s60, s{S_WAVE}, 10")
    a.e(f"s_add_u32 s60, s60, {LDS_H}")
    a.e(f"v_add_u32 v20, s60, v{V_L16}")
    a.e("ds_read_b128 v[16:19], v20")
    a.e(f"v_lshrrev_b32 v21, 3, v{L}")
    a.e(f"v_lshlrev_b32 v21, 8, v21")
    a.e(f"v_and_b32 v22, 7, v{L}")
    a.e(f"v_lshl_add_u32 v21, v22, 4, v21")
    a.e(f"s_lshr_b32 s61, s2, 1")
    a.e("s_lshl_b32 s61, s61, 14")
    a.e(f"s_and_b32 s60, s2, 1")
    a.e("s_lshl_b32 s60, s60, 7")
    a.e("s_add_u32 s61, s61, s60")
    a.e(f"s_lshl_b32 s60, s{S_WAVE}, 11")
    a.e("s_add_u32 s61, s61, s60")
    a.e(f"buffer_store_dwordx4 v[16:19], v21, s[{SRD3}:{SRD3+3}], s61 offen{SC}", tag="xn")


def setup_reads(a):
    L = V_LANE
    V_CA, V_WA_ = p1.V_CA, p1.V_WA
    a.e(f"v_and_b32 v20, 15, v{L}")
    a.e(f"v_lshrrev_b32 v21, 4, v{L}")
    a.e(f"v_lshrrev_b32 v22, 1, v20")
    a.e(f"v_xor_b32 v22, v22, v21")
    a.e(f"v_lshlrev_b32 v22, 4, v22")
    a.e(f"v_lshl_add_u32 v22, v20, 7, v22")
    a.e(f"s_lshl_b32 s63, s{S_W3}, 13")
    a.e(f"v_add_u32 v{V_CA}, s63, v22")
    a.e(f"v_xor_b32 v{V_CA+1}, 64, v{V_CA}")
    a.e(f"v_lshrrev_b32 v22, 2, v20")
    a.e(f"v_and_b32 v23, 1, v21")
    a.e(f"v_lshl_add_u32 v23, v23, 2, v22")
    a.e(f"v_lshl_add_u32 v22, v21, 3, v22")
    a.e(f"v_lshlrev_b32 v22, 8, v22")
    a.e(f"v_and_b32 v24, 3, v{L}")
    a.e(f"v_lshl_add_u32 v22, v24, 3, v22")
    a.e(f"s_lshr_b32 s74, s{S_WAVE}, 2")
    a.e(f"s_lshl_b32 s74, s74, 14")
    a.e(f"s_add_u32 s74, s74, {p1.LDS_W}")
    a.e(f"v_add_u32 v22, s74, v22")
    for d in range(8):
        a.e(f"v_xor_b32 v24, {d}, v23")
        a.e(f"v_lshl_add_u32 v{V_WA_+d}, v24, 5, v22")


def late_touch(a, which):
    L = V_LANE
    if which == 0:
        srd(a, SRD0, P_WQ, 0x400000)
        a.e(f"v_lshrrev_b32 v21, 2, v{L}")
        a.e(f"v_lshlrev_b32 v21, 13, v21")
        a.e(f"v_and_b32 v20, 2, v{L}")
        a.e(f"v_lshl_add_u32 v20, v20, 6, v21")
        a.e(f"s_lshl_b32 s62, s{S_P}, 19")
        a.e(f"s_lshl_b32 s63, s{S_W3}, 17")
        a.e(f"s_add_u32 s62, s62, s63")
        a.e(f"s_lshl_b32 s63, s{S_H}, 8")
        a.e(f"s_add_u32 s62, s62, s63")
        a.e(f"buffer_load_dword v{V_DUM}, v20, s[{SRD0}:{SRD0+3}], s62 offen")
    elif which == 1:
        srd(a, SRD0, P_W1, 512 * 3584)
        a.e(f"v_lshrrev_b32 v20, 2, v{L}")
        a.e(f"v_mul_u32_u24 v20, 3584, v20")
        a.e(f"s_lshl_b32 s62, s{S_P}, 2")
        a.e(f"s_add_u32 s62, s62, s{S_W3}")
        a.e(f"s_mul_i32 s62, s62, {16*3584}")
        a.e(f"s_lshl_b32 s63, s{S_H}, 7")
        a.e(f"s_add_u32 s62, s62, s63")
        a.e(f"buffer_load_dword v{V_DUM}, v20, s[{SRD0}:{SRD0+3}], s62 offen")
        srd(a, SRD0, P_B1, 3584)
        a.e(f"buffer_load_dword v{V_DUM}, off, s[{SRD0}:{SRD0+3}], s63")
    elif which == 2:
        srd(a, SRD0, P_WO, 0x400000)
        a.e(f"v_lshrrev_b32 v20, 1, v{L}")
        a.e(f"v_lshlrev_b32 v20, 7, v20")
        a.e(f"s_lshl_b32 s62, s2, 2")
        a.e(f"s_add_u32 s62, s62, s{S_W3}")
        a.e(f"s_lshl_b32 s63, s62, 12")
        a.e(f"buffer_load_dword v{V_DUM}, v20, s[{SRD0}:{SRD0+3}], s63 offen")
    else:
        srd(a, SRD0, P_W2, 1792 * 1024)
        a.e(f"v_lshrrev_b32 v20, 2, v{L}")
        a.e(f"v_min_u32 v20, 13, v20")
        a.e(f"v_lshlrev_b32 v20, 7, v20")
        a.e(f"s_lshl_b32 s62, s2, 2")
        a.e(f"s_add_u32 s62, s62, s{S_W3}")
        a.e(f"s_mul_i32 s63, s62, 1792")
        a.e(f"buffer_load_dword v{V_DUM}, v20, s[{SRD0}:{SRD0+3}], s63 offen")


def p1_stage(a, isv, st, fl1=(), pre_bar=None, fl2=(), wait=None):
    par = st & 1
    FA, FB = p1.F0, p1.F0 + 48
    a.add(Need([v(FA, 48)]))
    rd = p1.p1_reads(par, 1, FB)
    a.add(weave(p1.p1_mfmas(isv, FA, st == 0), [(i + i // 4, 0, x) for i, x in enumerate(rd)] + list(fl1)))
    if pre_bar:
        pre_bar()
    a.add([WaitTag(lambda t: t == ("p1", st + 1) or (wait is not None and t == wait), lg0=True), "s_barrier"])
    fl = list(fl2)
    if st < 7:
        rd = p1.p1_reads(1 - par, 0, FA)
        fl += [(i + i // 4, 0, x) for i, x in enumerate(rd)]
    if st < 6 and not isv:
        g, adv = k_dma(st + 2)
        for j, (m0, ld) in enumerate(g):
            fl.append(((3 * j) // 2, 2, m0))
            fl.append(((3 * j) // 2 + 1, 1, ld))
        fl.append((26, 2, adv[0]))
        fl.append((27, 2, adv[1]))
    a.add(weave(p1.p1_mfmas(isv, FB, False), fl))


S_KVS = 80
KVST = [0, 0, 1, 1, 2, 2, 3, 3, 4, 4, 5, 5] if 'p' not in OPT else [0, 0, 0, 1, 1, 1, 2, 2, 2, 3, 3, 3]
KVFLAG = 6 if 'p' not in OPT else 5
PK = 112


def p1_pack(a, isv):
    ACC = p1.ACC
    a.e(f"s_lshl_b32 s60, s{S_H}, 20")
    a.e(f"s_lshl_b32 s61, s{S_P}, 2")
    a.e(f"s_add_u32 s61, s61, s{S_W3}")
    a.e(f"s_lshl_b32 s61, s61, 15")
    a.e(f"s_add_u32 s60, s60, s61")
    a.e(f"s_add_u32 s{S_KVS}, s60, {WS_KV + (16384 if isv else 0)}")
    for k in range(1, 4):
        a.e(f"s_add_u32 s{S_KVS+k}, s{S_KVS}, {4096*k}")

    def src(k, t):
        if not isv:
            return ACC + 4 * ((2 * t) * 4 + k), ACC + 4 * ((2 * t + 1) * 4 + k)
        u, d = k >> 1, 2 * t + (k & 1)
        return ACC + 4 * (d * 4 + 2 * u), ACC + 4 * (d * 4 + 2 * u + 1)

    def pk(dst, b0, b1):
        a.e(f"v_cvt_pk_bf16_f32 v{dst}, v{b0}, v{b0+1}")
        a.e(f"v_cvt_pk_bf16_f32 v{dst+1}, v{b0+2}, v{b0+3}")
        a.e(f"v_cvt_pk_bf16_f32 v{dst+2}, v{b1}, v{b1+1}")
        a.e(f"v_cvt_pk_bf16_f32 v{dst+3}, v{b1+2}, v{b1+3}")
    for k in range(4):
        pk(80 + 4 * k, *src(k, 0))
        a.e(f"buffer_store_dwordx4 {v(80+4*k,4)}, v{V_L16}, s[{SRD3}:{SRD3+3}], s{S_KVS+k} offen{SC}", tag="kvst")
    for t in range(1, 4):
        for k in range(4):
            pk(PK + 4 * ((t - 1) * 4 + k), *src(k, t))


def kv_deferred(i):
    t, k = 1 + i // 4, i % 4
    return I(f"buffer_store_dwordx4 {v(PK+4*i,4)}, v{V_L16}, s[{SRD3}:{SRD3+3}], s{S_KVS+k} offen offset:{t*1024}{SC}", tag="kvst")


V_QA2 = 20
AF = 64
QSLOT = [0, 16384, 65536, 81920]


def p2_dma(stage):
    sl = stage & 3
    r = []
    for j in range(2):
        r.append(f"s_add_u32 m0, s{p3.S_QM0}, {QSLOT[sl] + j*1024}")
        r.append(I(f"buffer_load_dwordx4 v{p3.V_QD}, s[{SRD0}:{SRD0+3}], s{p3.S_QSO+j} offen lds", tag=("p2", stage)))
    r.append(f"s_add_u32 m0, s{p3.S_HM0}, {sl*8192}")
    r.append(I(f"buffer_load_dwordx4 v{p3.V_HD}, s[{SRD1}:{SRD1+3}], s{p3.S_HSO} offen lds", tag=("p2", stage)))
    r += [f"v_add_u32 v{p3.V_QD}, 0x80000, v{p3.V_QD}", f"v_add_u32 v{p3.V_HD}, {64*3584}, v{p3.V_HD}"]
    return r


def p2_read(stage, ks, d):
    sl = stage & 3
    r = []
    for e in range(2):
        if d < 8:
            base = (p3.V_QA if sl < 2 else V_QA2) + d
            r.append(f"ds_read_b64_tr_b16 {v(AF+4*d+2*e,2)}, v{base} offset:{(sl&1)*16384 + ks*8192 + e*1024}")
        else:
            r.append(f"ds_read_b64_tr_b16 {v(AF+4*d+2*e,2)}, v{p3.V_HA+d-8} offset:{sl*8192 + ks*4096 + e*512}")
    return r


def p2_part(k, nxt, extra):
    fl = list(extra)
    fl.append((-1, 0, Need([v(AF, 24), v(p3.BR + 8 * (k & 3), 8)])))
    fl.append((11, 9, Need([v(AF + 24, 24)])))
    if nxt:
        for d in range(12):
            r = p2_read(nxt[0], nxt[1], d)
            fl.append((2 * d + 1, 0, r[0]))
            fl.append((min(2 * d + 2, 23), 0, r[1]))
    return weave(p3.p2_mfmas(k, AF), fl)


def p2_setup_reads(a):
    L = V_LANE
    t = 72
    a.e(f"v_and_b32 v{t}, 15, v{L}")
    a.e(f"v_lshrrev_b32 v{t+1}, 4, v{L}")
    a.e(f"v_lshrrev_b32 v{t+2}, 2, v{t}")
    a.e(f"v_and_b32 v{t+3}, 1, v{t+1}")
    a.e(f"v_lshl_add_u32 v{t+4}, v{t+3}, 2, v{t+2}")
    a.e(f"v_lshrrev_b32 v{t+5}, 1, v{t+2}")
    a.e(f"v_lshl_add_u32 v{t+5}, v{t+3}, 1, v{t+5}")
    a.e(f"v_lshl_add_u32 v{t+2}, v{t+1}, 3, v{t+2}")
    a.e(f"v_and_b32 v{t+6}, 3, v{L}")
    a.e(f"v_lshlrev_b32 v{t+6}, 3, v{t+6}")
    a.e(f"v_lshl_add_u32 v{t+7}, v{t+2}, 8, v{t+6}")
    a.e(f"v_lshl_add_u32 v13, v{t+2}, 7, v{t+6}")
    a.e(f"v_add_u32 v13, {LDS_H}, v13")
    for d in range(8):
        a.e(f"v_xor_b32 v{t}, {d}, v{t+4}")
        a.e(f"v_lshl_add_u32 v{p3.V_QA+d}, v{t}, 5, v{t+7}")
        a.e(f"v_add_u32 v{V_QA2+d}, 0x10000, v{p3.V_QA+d}")
    for f in range(4):
        a.e(f"v_xor_b32 v{t}, {f}, v{t+5}")
        a.e(f"v_lshl_add_u32 v{p3.V_HA+f}, v{t}, 5, v13")


BIAS = 64


def bias_load(a):
    L = V_LANE
    srd(a, SRD2, P_B1, 1792 * 2)
    a.e(f"v_lshrrev_b32 v30, 4, v{L}")
    a.e(f"v_lshlrev_b32 v30, 3, v30")
    a.e(f"s_lshl_b32 s63, s{S_H}, 7")
    for f in range(4):
        a.e(f"buffer_load_dwordx2 {v(BIAS+2*f,2)}, v30, s[{SRD2}:{SRD2+3}], s63 offen offset:{f*32}")


def bias_apply(a):
    for f in range(4):
        for qb in range(2):
            b = p3.HACC + 4 * (f * 2 + qb)
            a.e(f"v_lshlrev_b32 v{b}, 16, v{BIAS+2*f}")
            a.e(f"v_and_b32 v{b+1}, 0xffff0000, v{BIAS+2*f}")
            a.e(f"v_lshlrev_b32 v{b+2}, 16, v{BIAS+2*f+1}")
            a.e(f"v_and_b32 v{b+3}, 0xffff0000, v{BIAS+2*f+1}")


def xload(k):
    r = []
    for qb in range(2):
        dst = p3.BR + 4 * ((k & 3) * 2 + qb)
        so = f"s{p3.S_16K}" if qb else "0"
        r.append(f"buffer_load_dwordx4 {v(dst,4)}, v{p3.V_XO}, s[{SRD3}:{SRD3+3}], {so} offen offset:{(k&1)*1024}{SC}")
    if k & 1:
        r.append(f"v_add_u32 v{p3.V_XO}, 2048, v{p3.V_XO}")
    return r


def xn_setup(a):
    a.e(f"s_lshl_b32 s63, s{p3.S_Q0}, 10")
    a.e(f"v_add_u32 v{p3.V_XO}, s63, v{V_L16}")
    a.e(f"s_mov_b32 s{p3.S_16K}, 16384")


def xn_touch(a):
    a.e(f"s_and_b32 s62, s{S_H}, 3")
    a.e(f"s_lshl_b32 s62, s62, 3")
    a.e(f"s_add_u32 s62, s62, s{S_WAVE}")
    a.e(f"s_sub_u32 s63, 15, s{S_P}")
    a.e(f"s_cmp_lt_u32 s62, 16")
    a.e(f"s_cselect_b32 s63, s{S_P}, s63")
    a.e(f"s_lshl_b32 s63, s63, 4")
    a.e(f"s_and_b32 s62, s62, 15")
    a.e(f"s_add_u32 s62, s62, s63")
    a.e(f"s_lshl_b32 s62, s62, 13")
    a.e(f"v_lshlrev_b32 v30, 7, v{V_LANE}")
    a.e(f"buffer_load_dword v{V_DUM}, v30, s[{SRD3}:{SRD3+3}], s62 offen sc1")


V_WD, V_AD, V_PD, V_PA = 8, 9, 11, 12
V_WA, V_BA = 22, 26
V_GA, V_GB = 27, 29
V_XA, V_BB = 10, 13
S_J, S_RB, S_CB, S_TILE = 6, 7, 8, 9
S_WSO, S_ASO, S_WM0, S_AM0 = 10, 16, 18, 19
S_PP, S_XO = 20, 21
FR, GACC, SACC, XR, BR2 = 32, 128, 192, 144, 152
NG, NS = 14, 16
NT = NG + NS
SRD_W2, SRD_WO, SRD_H, SRD_C = SRD0, SRD1, SRD2, SRD5
LDS_OWN = 131072
CTXFLAG = 6


def smask(stage):
    return 0x10000 if stage % 2 == 0 else 0x8000


def p5_ids(a):
    a.e(f"s_and_b32 s60, s2, 7")
    a.e(f"s_lshr_b32 s61, s2, 3")
    a.e(f"s_and_b32 s{S_J}, s60, 3")
    a.e(f"s_lshr_b32 s60, s60, 2")
    a.e(f"s_lshl_b32 s60, s60, 3")
    a.e(f"s_lshr_b32 s{S_RB}, s61, 2")
    a.e(f"s_add_u32 s{S_RB}, s{S_RB}, s60")
    a.e(f"s_and_b32 s{S_CB}, s61, 3")
    a.e(f"s_lshl_b32 s{S_TILE}, s{S_RB}, 2")
    a.e(f"s_add_u32 s{S_TILE}, s{S_TILE}, s{S_CB}")
    a.e(f"s_sub_u32 s60, 15, s{S_RB}")
    a.e(f"s_min_u32 s{S_PP}, s60, s{S_RB}")
    srd(a, SRD_W2, P_W2, 1792 * 1024)
    srd(a, SRD_WO, P_WO, 0x400000)
    srd(a, SRD_H, P_WS, 0x700000, WS_H)


def ring0(a, dst):
    a.e(f"s_and_b32 s{dst}, s{p3.S_T}, 2")
    a.e(f"s_cmp_eq_u32 s{dst}, 0")
    a.e(f"s_mov_b32 s61, 0x10000")
    a.e(f"s_cselect_b32 s{dst}, 0x8000, s61")


def mbase2(a, dst):
    a.e(f"s_and_b32 s{dst}, s{S_J}, 1")
    a.e(f"s_lshl_b32 s{dst}, s{dst}, 7")
    a.e(f"s_lshl_b32 s61, s{S_CB}, 8")
    a.e(f"s_add_u32 s{dst}, s{dst}, s61")


def qbase16(a, dst):
    a.e(f"s_lshr_b32 s{dst}, s{S_J}, 1")
    a.e(f"s_lshl_b32 s{dst}, s{dst}, 2")
    a.e(f"s_lshl_b32 s61, s{S_RB}, 3")
    a.e(f"s_add_u32 s{dst}, s{dst}, s61")


def loader_setup(a, skip):
    L = V_LANE
    a.e(f"v_lshrrev_b32 v17, 4, v{L}")
    a.e(f"v_lshlrev_b32 v17, 1, v17")
    a.e(f"v_and_b32 v16, 7, v{L}")
    a.e(f"v_xor_b32 v16, v16, v17")
    a.e(f"v_lshlrev_b32 v16, 4, v16")
    a.e(f"v_lshrrev_b32 v17, 3, v{L}")
    a.e(f"v_lshl_add_u32 v16, v17, 10, v16")
    mbase2(a, 62)
    if skip:
        a.e(f"s_add_u32 s62, s62, {skip*0x20000}")
    a.e(f"v_add_u32 v{V_WD}, s62, v16")
    a.e(f"s_lshl_b32 s{S_WSO}, s{S_W3}, 15")
    for j in range(1, 4):
        a.e(f"s_add_u32 s{S_WSO+j}, s{S_WSO}, {j*8192}")
    ring0(a, 60)
    if skip:
        assert skip == 2
        a.e("s_xor_b32 s60, s60, 0x18000")
    a.e(f"s_lshl_b32 s{S_WM0}, s{S_W3}, 12")
    a.e(f"s_add_u32 s{S_WM0}, s{S_WM0}, s60")
    a.e(f"s_add_u32 s{S_AM0}, s{S_WM0}, 16384")
    qbase16(a, 62)
    a.e(f"s_add_u32 s62, s62, s{S_W3}")
    a.e(f"s_mul_i32 s62, s62, {56*1024}")
    if skip:
        a.e(f"s_add_u32 s62, s62, {skip*4096}")
    a.e(f"v_add_u32 v{V_AD}, s62, v{V_L16}")


def s_phase_w(a):
    L = V_LANE
    a.e(f"s_and_b32 s62, s{S_W3}, 1")
    a.e(f"s_lshl_b32 s63, s62, 2")
    a.e(f"v_lshrrev_b32 v17, 4, v{L}")
    a.e(f"v_or_b32 v18, s63, v17")
    a.e(f"v_lshlrev_b32 v18, 1, v18")
    a.e(f"v_and_b32 v16, 15, v{L}")
    a.e(f"v_xor_b32 v16, v16, v18")
    a.e(f"v_lshlrev_b32 v16, 4, v16")
    a.e(f"v_lshl_add_u32 v16, v17, 10, v16")
    a.e(f"s_lshl_b32 s63, s{S_CB}, 8")
    a.e(f"s_lshl_b32 s61, s{S_J}, 20")
    a.e(f"s_add_u32 s63, s63, s61")
    a.e(f"v_add_u32 v{V_WD}, s63, v16")
    a.e(f"s_lshr_b32 s63, s{S_W3}, 1")
    a.e(f"s_lshl_b32 s63, s63, 3")
    a.e(f"s_add_u32 s63, s63, s62")
    a.e(f"s_lshl_b32 s{S_WSO}, s63, 12")
    for j in range(1, 4):
        a.e(f"s_add_u32 s{S_WSO+j}, s{S_WSO}, {j*8192}")
    a.e(f"s_and_b32 s{S_WM0}, s{S_WM0}, 0x18000")
    a.e(f"s_lshl_b32 s63, s63, 10")
    a.e(f"s_add_u32 s{S_WM0}, s{S_WM0}, s63")


def s_phase_a(a):
    a.e(f"s_lshl_b32 s63, s{S_RB}, 3")
    a.e(f"s_lshl_b32 s62, s{S_W3}, 1")
    a.e(f"s_add_u32 s63, s63, s62")
    a.e(f"s_lshl_b32 s{S_ASO}, s63, 17")
    a.e(f"s_add_u32 s{S_ASO+1}, s{S_ASO}, 0x20000")
    a.e(f"s_lshl_b32 s63, s{S_J}, 15")
    a.e(f"v_add_u32 v{V_AD}, s63, v{V_L16}")


def dma_w(stage):
    if 'm' in OPT and stage > 3:
        return []
    isg = stage < NG
    ws = SRD_W2 if isg else SRD_WO
    r = cap(s_phase_w) if stage == NG else []
    for j in range(4):
        r.append(f"s_add_u32 m0, s{S_WM0}, {j*(1024 if isg else 2048)}")
        r.append(I(f"buffer_load_dwordx4 v{V_WD}, s[{ws}:{ws+3}], s{S_WSO+j} offen lds", tag=("p5", stage)))
    r.append(f"v_add_u32 v{V_WD}, {hex(0x20000 if isg else 0x10000)}, v{V_WD}")
    r.append(f"s_xor_b32 s{S_WM0}, s{S_WM0}, {hex(smask(stage))}")
    return r


def dma_a(stage):
    if 'm' in OPT and stage > 3:
        return []
    r = []
    if stage < NG:
        r.append(f"s_mov_b32 m0, s{S_AM0}")
        for ks in range(4):
            r.append(I(f"buffer_load_dwordx4 v{V_AD}, s[{SRD_H}:{SRD_H+3}], 0 offen offset:{ks*1024}{SC} lds", tag=("p5", stage)))
        r.append(f"v_add_u32 v{V_AD}, 4096, v{V_AD}")
    else:
        if stage == NG:
            r += cap(s_phase_a)
        for i in range(2):
            r.append(f"s_add_u32 m0, s{S_AM0}, {i*2048}")
            for ks in range(2):
                r.append(I(f"buffer_load_dwordx4 v{V_AD}, s[{SRD_C}:{SRD_C+3}], s{S_ASO+i} offen offset:{ks*1024}{SC} lds", tag=("p5", stage)))
        r.append(f"v_add_u32 v{V_AD}, 2048, v{V_AD}")
    r.append(f"s_xor_b32 s{S_AM0}, s{S_AM0}, {hex(smask(stage))}")
    return r


def flag_addr(a, first, n, ftype):
    L = V_LANE
    a.e(f"v_min_u32 v16, {n-1}, v{L}")
    if first is not None:
        a.e(f"v_add_u32 v16, s{first}, v16")
    a.e(f"v_lshrrev_b32 v17, 2, v16")
    a.e(f"v_and_b32 v16, 3, v16")
    a.e(f"v_lshl_add_u32 v16, v16, 3, v17")
    a.e(f"s_lshl_b32 s62, s{S_PP}, 5")
    a.e(f"v_add_u32 v16, s62, v16")
    a.e(f"v_lshlrev_b32 v16, 10, v16")
    a.e(f"v_add_u32 v{V_PA}, {ftype}, v16")


def compute_setup(a):
    L = V_LANE
    ring0(a, 60)
    if NG % 4 == 2:
        a.e("s_xor_b32 s74, s60, 0x18000")
    else:
        assert NG % 4 == 0
        a.e("s_mov_b32 s74, s60")
    a.e(f"v_and_b32 v16, 15, v{L}")
    a.e(f"v_lshrrev_b32 v17, 4, v{L}")
    a.e(f"v_lshrrev_b32 v18, 2, v16")
    a.e(f"v_lshl_add_u32 v18, v17, 2, v18")
    a.e(f"v_and_b32 v19, 7, v18")
    a.e(f"v_and_b32 v20, 3, v{L}")
    a.e(f"v_lshlrev_b32 v20, 3, v20")
    a.e(f"v_lshl_add_u32 v21, v18, 7, v20")
    a.e(f"v_lshl_add_u32 v18, v18, 8, v20")
    a.e(f"v_add_u32 v18, s74, v18")
    a.e(f"v_add_u32 v21, s60, v21")
    a.e(f"v_lshrrev_b32 v30, 1, v19")
    a.e(f"s_and_b32 s62, s{S_W3}, 1")
    a.e(f"s_lshl_b32 s63, s62, 1")
    a.e(f"s_lshl_b32 s62, s62, 2")
    a.e(f"v_xor_b32 v19, s62, v19")
    a.e(f"v_xor_b32 v30, s63, v30")
    for m in range(4):
        a.e(f"v_xor_b32 v20, {m}, v19")
        a.e(f"v_lshl_add_u32 v{V_WA+m}, v20, 5, v18")
    for m in range(2):
        a.e(f"v_xor_b32 v20, {m}, v30")
        a.e(f"v_lshl_add_u32 v{V_GA+m}, v20, 5, v21")
    a.e(f"s_lshr_b32 s62, s{S_W3}, 1")
    a.e(f"s_lshl_b32 s62, s62, 13")
    a.e(f"s_add_u32 s62, s62, 16384")
    a.e(f"s_add_u32 s63, s62, s74")
    a.e(f"v_add_u32 v{V_BA}, s63, v{V_L16}")
    a.e(f"s_add_u32 s63, s62, s60")
    a.e(f"v_add_u32 v{V_GB}, s63, v{V_L16}")
    a.e(f"v_lshlrev_b32 v{V_BB}, 3, v17")
    a.e(f"v_lshl_add_u32 v{V_XA}, v16, 10, v{V_BB}")
    mbase2(a, 62)
    a.e(f"s_and_b32 s63, s{S_W3}, 1")
    a.e(f"s_lshl_b32 s63, s63, 6")
    a.e(f"s_add_u32 s62, s62, s63")
    a.e(f"v_add_u32 v{V_BB}, s62, v{V_BB}")
    qbase16(a, 63)
    a.e(f"s_lshr_b32 s61, s{S_W3}, 1")
    a.e(f"s_lshl_b32 s61, s61, 1")
    a.e(f"s_add_u32 s63, s63, s61")
    a.e(f"s_lshl_b32 s63, s63, 14")
    a.e(f"s_add_u32 s{S_XO}, s63, s62")


def p4_touch(a):
    L = V_LANE
    qbase16(a, 60)
    a.e(f"s_add_u32 s60, s60, s{S_CB}")
    a.e(f"s_lshl_b32 s60, s60, 2")
    a.e(f"s_add_u32 s60, s60, s{S_W3}")
    a.e(f"s_mul_i32 s60, s60, {14*1024}")
    a.e(f"v_lshlrev_b32 v16, 7, v{L}")
    a.e(f"buffer_load_dword v{V_DUM}, v16, s[{SRD_H}:{SRD_H+3}], s60 offen sc1")
    a.e(f"v_min_u32 v16, 47, v{L}")
    a.e(f"v_lshlrev_b32 v16, 7, v16")
    a.e(f"s_add_u32 s60, s60, 8192")
    a.e(f"buffer_load_dword v{V_DUM}, v16, s[{SRD_H}:{SRD_H+3}], s60 offen sc1")
    a.e(f"s_and_b32 s60, s{S_RB}, 7")
    a.e(f"s_lshl_b32 s60, s60, 2")
    a.e(f"s_add_u32 s60, s60, s{S_W3}")
    mbase2(a, 62)
    a.e(f"s_mul_i32 s61, s60, {56*1024}")
    a.e(f"s_add_u32 s61, s61, s62")
    a.e(f"v_min_u32 v16, 55, v{L}")
    a.e(f"v_lshlrev_b32 v16, 10, v16")
    a.e(f"buffer_load_dword v{V_DUM}, v16, s[{SRD_W2}:{SRD_W2+3}], s61 offen")
    a.e(f"v_lshrrev_b32 v17, 1, v{L}")
    a.e(f"v_and_b32 v18, 1, v{L}")
    a.e(f"v_lshlrev_b32 v18, 7, v18")
    a.e(f"v_lshl_add_u32 v17, v17, 10, v18")
    a.e(f"s_lshl_b32 s61, s{S_J}, 5")
    a.e(f"s_add_u32 s60, s60, s61")
    a.e(f"s_lshl_b32 s61, s60, 15")
    a.e(f"s_lshl_b32 s62, s{S_CB}, 8")
    a.e(f"s_add_u32 s61, s61, s62")
    a.e(f"buffer_load_dword v{V_DUM}, v17, s[{SRD_WO}:{SRD_WO+3}], s61 offen")


NTOUCH = 0 if 'f' in OPT else 8


def ctx_touch(a):
    a.e(f"s_lshl_b32 s60, s{S_RB}, 3")
    a.e(f"s_lshl_b32 s61, s{S_CB}, 1")
    a.e(f"s_add_u32 s60, s60, s61")
    a.e(f"s_lshr_b32 s61, s{S_W3}, 1")
    a.e(f"s_add_u32 s60, s60, s61")
    a.e(f"s_lshl_b32 s60, s60, 17")
    a.e(f"s_lshl_b32 s61, s{S_J}, 15")
    a.e(f"s_add_u32 s60, s60, s61")
    a.e(f"s_and_b32 s61, s{S_W3}, 1")
    a.e(f"s_lshl_b32 s61, s61, 14")
    a.e(f"s_add_u32 s60, s60, s61")
    a.e(f"v_lshlrev_b32 v16, 7, v{V_LANE}")
    a.e(f"buffer_load_dword v{V_DUM}, v16, s[{SRD_C}:{SRD_C+3}], s60 offen sc1")
    a.e(f"s_add_u32 s60, s60, 8192")
    a.e(f"buffer_load_dword v{V_DUM}, v16, s[{SRD_C}:{SRD_C+3}], s60 offen sc1")


V_P8, V_PG, V_PS = 5, 6, 21
S_TA, S_TG, S_TX, S_TO_ = 78, 79, 68, 69


def ltouch_setup(a, nw):
    L = V_LANE
    lg = 2 if nw == 4 else 1
    k = 3 - (2 - lg)
    a.e(f"s_and_b32 s74, s{S_W3}, {nw-1}")
    a.e(f"v_lshrrev_b32 v{V_P8}, {k}, v{L}")
    a.e(f"v_lshlrev_b32 v{V_P8}, 7, v{V_P8}")
    a.e(f"v_lshrrev_b32 v{V_PG}, {k+1}, v{L}")
    a.e(f"v_lshlrev_b32 v{V_PG}, 10, v{V_PG}")
    a.e(f"v_lshrrev_b32 v{V_PS}, {k+2}, v{L}")
    a.e(f"v_lshlrev_b32 v{V_PS}, 10, v{V_PS}")
    a.e(f"v_and_b32 v16, {1 << (k+1)}, v{L}")
    a.e(f"v_lshl_add_u32 v{V_PS}, v16, {7-(k+1)}, v{V_PS}")
    qbase16(a, 60)
    a.e(f"s_add_u32 s60, s60, s{S_CB}")
    a.e(f"s_mul_i32 s60, s60, {56*1024}")
    a.e(f"s_lshl_b32 s62, s74, {12-lg}")
    a.e(f"s_add_u32 s{S_TA}, s60, s62")
    a.e(f"s_and_b32 s63, s{S_RB}, 7")
    a.e(f"s_lshl_b32 s63, s63, {lg}")
    a.e(f"s_add_u32 s63, s63, s74")
    mbase2(a, 60)
    a.e(f"s_lshl_b32 s62, s63, {14-lg}")
    a.e(f"s_add_u32 s{S_TG}, s60, s62")
    if nw == 4:
        return
    a.e(f"s_lshl_b32 s62, s63, {13-lg}")
    a.e(f"s_lshl_b32 s60, s{S_J}, 20")
    a.e(f"s_add_u32 s62, s62, s60")
    a.e(f"s_lshl_b32 s60, s{S_CB}, 8")
    a.e(f"s_add_u32 s{S_TO_}, s62, s60")
    a.e(f"s_lshl_b32 s60, s{S_RB}, 3")
    a.e(f"s_lshl_b32 s61, s{S_CB}, 1")
    a.e(f"s_add_u32 s60, s60, s61")
    a.e(f"s_add_u32 s60, s60, s74")
    a.e(f"s_lshl_b32 s60, s60, 17")
    a.e(f"s_lshl_b32 s61, s{S_J}, 15")
    a.e(f"s_add_u32 s{S_TX}, s60, s61")


def ltouch_w(m):
    if m >= NT:
        return []
    if m < NG:
        return [f"s_add_u32 s60, s{S_TG}, {m*0x20000}", f"buffer_load_dword v{V_DUM}, v{V_PG}, s[{SRD_W2}:{SRD_W2+3}], s60 offen"]
    return [f"s_add_u32 s60, s{S_TO_}, {(m-NG)*0x10000}", f"buffer_load_dword v{V_DUM}, v{V_PS}, s[{SRD_WO}:{SRD_WO+3}], s60 offen"]


def ltouch_a(m):
    if m >= NT:
        return []
    if m < NG:
        return [f"s_add_u32 s60, s{S_TA}, {m*4096}", f"buffer_load_dword v{V_DUM}, v{V_P8}, s[{SRD_H}:{SRD_H+3}], s60 offen sc1"]
    return [f"s_add_u32 s60, s{S_TX}, {(m-NG)*2048}", f"buffer_load_dword v{V_DUM}, v{V_P8}, s[{SRD_C}:{SRD_C+3}], s60 offen sc1"]


def dma2_setup(a):
    L = V_LANE
    a.e(f"v_lshrrev_b32 v17, 4, v{L}")
    a.e(f"v_lshlrev_b32 v17, 1, v17")
    a.e(f"v_and_b32 v16, 7, v{L}")
    a.e(f"v_xor_b32 v16, v16, v17")
    a.e(f"v_lshlrev_b32 v16, 4, v16")
    a.e(f"v_lshrrev_b32 v17, 3, v{L}")
    a.e(f"v_lshl_add_u32 v16, v17, 10, v16")
    mbase2(a, 62)
    a.e(f"s_lshl_b32 s63, s{S_W3}, 16")
    a.e(f"s_add_u32 s62, s62, s63")
    a.e(f"s_add_u32 s62, s62, {4*0x20000}")
    a.e(f"v_add_u32 v{V_WD}, s62, v16")
    ring0(a, 60)
    a.e(f"s_lshl_b32 s{S_WM0}, s{S_W3}, 13")
    a.e(f"s_add_u32 s{S_WM0}, s{S_WM0}, s60")
    a.e(f"s_add_u32 s{S_AM0}, s{S_WM0}, 16384")
    qbase16(a, 62)
    a.e(f"s_lshl_b32 s63, s{S_W3}, 1")
    a.e(f"s_add_u32 s62, s62, s63")
    a.e(f"s_mul_i32 s62, s62, {56*1024}")
    a.e(f"s_add_u32 s62, s62, {4*4096}")
    a.e(f"v_add_u32 v{V_AD}, s62, v{V_L16}")
    for i in range(1, 8):
        a.e(f"s_mov_b32 s{SO[i]}, {i*8192}")
    a.e(f"s_mov_b32 s{S_ASO}, {56*1024}")


SO = [None, 10, 11, 12, 13, 21, 78, 79]


def so(i):
    return "0" if i == 0 else f"s{SO[i]}"


def dma2_w(stage):
    if 'm' in OPT and stage > 3:
        return []
    L = V_LANE
    isg = stage < NG
    ws = SRD_W2 if isg else SRD_WO
    r = []
    if stage == NG:
        r += [f"s_lshl_b32 s63, s{S_W3}, 2", f"v_lshrrev_b32 v17, 4, v{L}", f"v_or_b32 v18, s63, v17", f"v_lshlrev_b32 v18, 1, v18",
              f"v_and_b32 v16, 15, v{L}", f"v_xor_b32 v16, v16, v18", f"v_lshlrev_b32 v16, 4, v16", f"v_lshl_add_u32 v16, v17, 10, v16",
              f"s_lshl_b32 s63, s{S_CB}, 8", f"s_lshl_b32 s61, s{S_J}, 20", f"s_add_u32 s63, s63, s61",
              f"s_lshl_b32 s61, s{S_W3}, 12", f"s_add_u32 s63, s63, s61", f"v_add_u32 v{V_WD}, s63, v16",
              f"s_and_b32 s{S_WM0}, s{S_WM0}, 0x18000", f"s_lshl_b32 s63, s{S_W3}, 10", f"s_add_u32 s{S_WM0}, s{S_WM0}, s63"]
    for i in range(8):
        r.append(f"s_add_u32 m0, s{S_WM0}, {i*(1024 if isg else 2048)}")
        r.append(I(f"buffer_load_dwordx4 v{V_WD}, s[{ws}:{ws+3}], {so(i)} offen lds", tag=("p5", stage)))
    r.append(f"v_add_u32 v{V_WD}, {hex(0x20000 if isg else 0x10000)}, v{V_WD}")
    r.append(f"s_xor_b32 s{S_WM0}, s{S_WM0}, {hex(smask(stage))}")
    return r


def dma2_a(stage):
    if 'm' in OPT and stage > 3:
        return []
    r = []
    if stage < NG:
        for i in range(2):
            r.append(f"s_add_u32 m0, s{S_AM0}, {i*4096}")
            for ks in range(4):
                r.append(I(f"buffer_load_dwordx4 v{V_AD}, s[{SRD_H}:{SRD_H+3}], {'0' if i == 0 else 's%d' % S_ASO} offen offset:{ks*1024}{SC} lds", tag=("p5", stage)))
        r.append(f"v_add_u32 v{V_AD}, 4096, v{V_AD}")
    else:
        if stage == NG:
            r += [f"s_lshl_b32 s63, s{S_RB}, 3", f"s_lshl_b32 s62, s{S_W3}, 2", f"s_add_u32 s63, s63, s62", f"s_lshl_b32 s63, s63, 17",
                  f"s_lshl_b32 s62, s{S_J}, 15", f"s_add_u32 s63, s63, s62", f"v_add_u32 v{V_AD}, s63, v{V_L16}",
                  f"s_mov_b32 s{S_ASO}, 0x20000", f"s_mov_b32 s{S_ASO+1}, 0x40000", f"s_mov_b32 s64, 0x60000"]
        for i in range(4):
            r.append(f"s_add_u32 m0, s{S_AM0}, {i*2048}")
            sreg = ["0", f"s{S_ASO}", f"s{S_ASO+1}", "s64"][i]
            for ks in range(2):
                r.append(I(f"buffer_load_dwordx4 v{V_AD}, s[{SRD_C}:{SRD_C+3}], {sreg} offen offset:{ks*1024}{SC} lds", tag=("p5", stage)))
        r.append(f"v_add_u32 v{V_AD}, 2048, v{V_AD}")
    r.append(f"s_xor_b32 s{S_AM0}, s{S_AM0}, {hex(smask(stage))}")
    return r


def a_last_hook(a):
    p5_ids(a)
    flag_addr(a, None, 28, F_H)
    a.e(poll_load(V_PD, V_PA, SRD_F))
    loader_setup(a, 0)
    a.add(dma_w(0))
    a.add(dma_w(1))
    compute_setup(a)
    poll_check(a, V_PD, V_PA, SRD_F, 1)
    a.add(dma_a(0))
    a.add(dma_a(1))
    if NTOUCH:
        ltouch_setup(a, 4)
        for m in range(2, 2 + NTOUCH // 2):
            a.add(ltouch_w(m) + ltouch_a(m))


def b_pre_join(a):
    a.e(f"s_cmp_ge_u32 s{S_WAVE}, 6")
    a.e("s_cbranch_scc1 LF_bpre")
    a.flush()
    st = a.st.copy()
    p3.ctx_store(a, 0, SC)
    p3.ctx_store(a, 1, SC)
    p5_ids(a)
    dma2_setup(a)
    a.flush()
    a.st = st
    a.e("LF_bpre:")


def h_flag_hook(a):
    a.flush()
    st = a.st.copy()
    a.e(f"v_mov_b32 v{p3.T0}, 1")
    a.e(f"s_lshl_b32 s60, s2, 10")
    a.e(f"buffer_store_dword v{p3.T0}, off, s[{SRD_F}:{SRD_F+3}], s60 offset:{F_H} sc1")
    a.e(f"s_mov_b32 s{p3.S_TODO}, 0")
    a.flush()
    a.st = st


def c_reads(ks, fb):
    r = []
    for q in range(4):
        r.append(f"ds_read_b128 {v(fb+16+4*q,4)}, v{V_BA} offset:{q*2048 + ks*1024}")
    for m in range(4):
        for e in range(2):
            r.append(f"ds_read_b64_tr_b16 {v(fb+4*m+2*e,2)}, v{V_WA+m} offset:{ks*8192 + e*4096}")
    return r


def g_reads(half, fb):
    r = []
    for k in range(2):
        ks = 2 * half + k
        for q in range(2):
            r.append(f"ds_read_b128 {v(fb+16+4*(2*k+q),4)}, v{V_GB} offset:{q*4096 + ks*1024}")
        for m in range(2):
            for e in range(2):
                r.append(f"ds_read_b64_tr_b16 {v(fb+4*(2*k+m)+2*e,2)}, v{V_GA+m} offset:{ks*4096 + e*2048}")
    return r


def g_mfmas(fb, first):
    m = []
    for k in range(2):
        for mb, q in ((0, 0), (0, 1), (1, 1), (1, 0)):
            d = GACC + 4 * (q * 2 + mb)
            m.append(mfma(d, fb + 4 * (2 * k + mb), fb + 16 + 4 * (2 * k + q), None if (first and k == 0) else d))
    return m


def barw(vm0):
    return [f"s_waitcnt vmcnt({vm0}) lgkmcnt(0)" if vm0 is not None else "s_waitcnt lgkmcnt(0)", "s_barrier"]


def gstage(stage, first=False, vm0=None):
    if 'n' in OPT:
        return barw(vm0)
    FA, FB = FR, FR + 32
    fl = [(i // 2, 0, x) for i, x in enumerate(g_reads(1, FB))]
    for i, r in enumerate([V_GB, V_GA, V_GA + 1]):
        fl.append((6 + i // 2, 1, f"v_xor_b32 v{r}, {hex(smask(stage))}, v{r}"))
    out = weave(g_mfmas(FA, first), fl)
    out += barw(vm0)
    nx = g_reads(0, FA) if stage + 1 < NG else c_reads(0, FA)
    fl = [(i // 2, 0, x) for i, x in enumerate(nx)]
    fl.append((7, 1, Need([v(FA, 32)])))
    out += weave(g_mfmas(FB, False), fl)
    return out


def cstage(stage, first=False, vm0=None):
    if 'n' in OPT:
        return barw(vm0)
    FA, FB = FR, FR + 32
    pos = lambda i: i // 2 if i < 4 else i - 2
    fl = [(pos(i), 0, x) for i, x in enumerate(c_reads(1, FB))]
    for i, r in enumerate([V_BA, V_WA, V_WA + 1, V_WA + 2, V_WA + 3]):
        fl.append((10 + i, 1, f"v_xor_b32 v{r}, {hex(smask(stage))}, v{r}"))
    out = weave(p5.mfmas(SACC, FA, first), fl)
    out += barw(vm0)
    fl = [(pos(i), 0, x) for i, x in enumerate(c_reads(0, FA))]
    fl.append((15, 1, Need([v(FA, 32)])))
    out += weave(p5.mfmas(SACC, FB, False), fl)
    return out


def gate_math(a):
    G, T = GACC, GACC + 32
    for i in range(16):
        mb, r = (i >> 2) & 1, i & 3
        src = BR2 + 2 * mb + r // 2
        a.e(f"v_lshlrev_b32 v{T+i}, 16, v{src}" if r % 2 == 0 else f"v_and_b32 v{T+i}, 0xffff0000, v{src}")
        a.e(f"v_add_f32 v{G+i}, v{G+i}, v{T+i}")
        a.e(f"v_mul_f32 v{T+i}, 0xbfb8aa3b, v{G+i}")
        a.e(f"v_exp_f32 v{T+i}, v{T+i}")
    for i in range(16):
        a.e(f"v_add_f32 v{T+i}, 1.0, v{T+i}")
        a.e(f"v_rcp_f32 v{T+i}, v{T+i}")
    for i in range(16):
        a.e(f"v_mul_f32 v{G+i}, v{G+i}, v{T+i}")
        src = XR + i // 2
        a.e(f"v_lshlrev_b32 v{T+i}, 16, v{src}" if i % 2 == 0 else f"v_and_b32 v{T+i}, 0xffff0000, v{src}")


def slot_addr(a):
    a.e(f"s_lshl_b32 s60, s{S_TILE}, 2")
    a.e(f"s_add_u32 s60, s60, s{S_J}")
    a.e(f"s_lshl_b32 s60, s60, 2")
    a.e(f"s_add_u32 s60, s60, s{S_W3}")
    a.e(f"s_lshl_b32 s60, s60, 13")
    a.e(f"s_add_u32 s61, s60, 4096")


def arm_slot(a):
    p5_ids(a)
    srd(a, SRD3, P_WS, 0x800000, WS_SP)
    slot_addr(a)
    for i in range(4):
        a.e(f"v_mov_b32 v{136+i}, -1")
    for h in range(2):
        for i in range(4):
            a.e(f"buffer_store_dwordx4 v[136:139], v{V_L16}, s[{SRD3}:{SRD3+3}], s{60+h} offen offset:{i*1024}{SC}")


def p45(a):
    a.e(f"s_cmp_lt_u32 s{S_WAVE}, 4")
    a.e("s_cbranch_scc1 LF_comp")
    a.flush()
    a.st = WState()
    a.e(f"s_cmp_ge_u32 s{S_WAVE}, 6")
    a.e("s_cbranch_scc1 LF_touch")
    a.flush()
    LEAD = 4
    for st in range(NT):
        a.add([WaitTag(lambda t, st=st: t == ("p5", st + 1)), "s_barrier"])
        if st == CTXFLAG:
            a.add(set_flag(F_CTX, 16, 4))
        n = st + LEAD
        if n < NG or NG + LEAD - 1 <= n < NT:
            a.add(dma2_w(n))
            a.add(dma2_a(n))
        elif n < NG + LEAD - 1:
            a.add(dma2_w(n))
        if st == NG - 5:
            a.e(f"s_lshl_b32 s63, s{S_J}, 3")
            flag_addr(a, 63, 8, F_CTX)
            a.e(f"v_and_b32 v16, 3, v{V_LANE}")
            a.e("s_andn2_b32 s62, s2, 3")
            a.e("v_add_u32 v16, s62, v16")
            a.e("v_lshlrev_b32 v16, 10, v16")
            a.e(f"v_add_u32 v16, {F_CTX}, v16")
            a.e(f"v_cmp_lt_u32 vcc, 31, v{V_LANE}")
            a.e(f"v_cndmask_b32 v{V_PA}, v{V_PA}, v16, vcc")
            a.e(poll_load(V_PD, V_PA, SRD_F))
        if st == NG - 2:
            stamp(a, 10)
            poll_check(a, V_PD, V_PA, SRD_F, 1)
            stamp(a, 11)
            for k in range(LEAD - 1):
                a.add(dma2_a(NG + k))
    for i in (12, 13, 14, 15):
        stamp(a, i)
    a.e("s_endpgm")
    a.flush()
    a.st = WState()
    a.e("LF_touch:")
    DT = 10
    LT = 'h' in OPT
    first = 4
    quarters = []
    for qb in range(2):
        x = cap(p3.ctx_store, qb, SC)
        cut = [i for i, y in enumerate(x) if y.k == "vst"][1] + 1
        quarters += [x[:cut], x[cut:]]
    a.add(quarters[0])
    early = [NG - 7, NG - 5]
    a.e("s_mov_b32 s77, 0")
    for st in range(NT):
        a.add([WaitTag(lambda t, st=st: st == CTXFLAG and t == "ctx"), "s_barrier"])
        if st < 3:
            a.add(quarters[st + 1])
        if not LT:
            if st == CTXFLAG:
                break
            continue
        if st == 3:
            p5_ids(a)
            a.e(f"s_lshl_b32 s63, s{S_J}, 3")
            flag_addr(a, 63, 8, F_CTX)
            ltouch_setup(a, 2)
            for m in range(8, DT + 3):
                a.add(ltouch_w(m) + ltouch_a(m))
        if st < 3:
            continue
        if st in early:
            a.add(Need([v(V_PD)]))
            a.e(f"v_cmp_ne_u32 vcc, 1, v{V_PD}")
            a.e("s_cmp_lg_u32 s77, 0")
            a.e(f"s_cbranch_scc1 LF_te{st}")
            a.e(f"s_cbranch_vccnz LF_te{st}")
            a.flush()
            stt = a.st.copy()
            for m in range(NG, NG + 8):
                a.add(ltouch_a(m))
            a.e("s_mov_b32 s77, 1")
            a.flush()
            a.st = stt
            a.e(f"LF_te{st}:")
        if st == NG - 2:
            poll_check(a, V_PD, V_PA, SRD_F, 1)
            a.e("s_cmp_lg_u32 s77, 0")
            a.e(f"s_cbranch_scc1 LF_te{st}")
            a.flush()
            stt = a.st.copy()
            for m in range(NG + 2, NG + 8):
                a.add(ltouch_a(m))
            a.flush()
            a.st = stt
            a.e(f"LF_te{st}:")
        if st + 2 in early or st + 2 == NG - 2:
            a.e(poll_load(V_PD, V_PA, SRD_F))
        a.add(ltouch_w(st + DT))
        if st + DT < NG or st + DT >= NG + 8:
            a.add(ltouch_a(st + DT))
        if len(a.st.vm) > 40:
            a.flush()
            a.st.vm = a.st.vm[-20:]
    for i in (10, 11, 12, 13, 14, 15):
        stamp(a, i)
    a.e("s_endpgm")
    a.flush()
    a.st = WState()
    a.e("LF_comp:")
    a.add(g_reads(0, FR))
    for st in (2, 3):
        a.add(dma_w(st))
        a.add(dma_a(st))
    srd(a, SRD3, P_X, 0x200000)
    srd(a, SRD4, P_B2, 1024)
    a.add(Need([v(FR, 32)]))
    stamp(a, 10, 'T')
    a.flush()
    ns = 2 if (STAMP and 'T' in OPT) else 0
    a.add(gstage(0, True, 16 + ns))
    stamp(a, 11, 'T')
    a.e(f"s_add_u32 s60, s{S_XO}, 16384")
    for q in range(2):
        for mb in range(2):
            a.e(f"buffer_load_dwordx2 {v(XR+2*(2*q+mb),2)}, v{V_XA}, s[{SRD3}:{SRD3+3}], s{60 if q else S_XO} offen offset:{mb*32}")
    for mb in range(2):
        a.e(f"buffer_load_dwordx2 {v(BR2+2*mb,2)}, v{V_BB}, s[{SRD4}:{SRD4+3}], 0 offen offset:{mb*32}")
    a.add(gstage(1, vm0=14 + 2 * ns))
    a.add(gstage(2, vm0=6 + 2 * ns))
    stamp(a, 12, 'T')
    a.add(gstage(3))
    stamp(a, 13, 'T')
    a.add(gstage(4))
    a.add(gstage(5))
    stamp(a, 14, 'T')
    a.e("s_mov_b32 s75, 3")
    a.e("s_waitcnt vmcnt(0)")
    a.loop("LF_gloop", lambda: [gstage(4), gstage(5)],
           ["s_sub_u32 s75, s75, 1", "s_cmp_lg_u32 s75, 0", "s_cbranch_scc1 LF_gloop"])
    a.add(gstage(12))
    FA, FB = FR, FR + 32
    a.add(weave(g_mfmas(FA, False), [(i // 2, 0, x) for i, x in enumerate(g_reads(1, FB))]))
    a.add(g_mfmas(FB, False))
    stamp(a, 15, 'T')
    stamp(a, 10)
    gate_math(a)
    srd(a, SRD3, P_WS, 0x800000, WS_SP)
    srd(a, SRD4, P_OUT, 0x200000)
    a.e("s_barrier")
    a.add(c_reads(0, FA))
    a.add(Need([v(FA, 32)]))
    stamp(a, 11)
    a.add(cstage(NG, True))
    a.add(cstage(NG + 1))
    a.e("s_mov_b32 s75, 7")
    a.loop("LF_loop", lambda: [cstage(NG + 2), cstage(NG + 3)],
           ["s_sub_u32 s75, s75, 1", "s_cmp_lg_u32 s75, 0", "s_cbranch_scc1 LF_loop"])
    stamp(a, 12)
    a.e("s_waitcnt lgkmcnt(0)")
    a.e(f"s_cmp_eq_u32 s{S_W3}, s{S_J}")
    a.e("s_cbranch_scc1 LF_own")
    slot_addr(a)
    for cw in range(4):
        for q in range(2):
            d = FR + 4 * (2 * cw + q)
            for mb in range(2):
                b = SACC + 4 * ((2 * (cw >> 1) + q) * 4 + 2 * (cw & 1) + mb)
                a.e(f"v_cvt_pk_bf16_f32 v{d+2*mb}, v{b}, v{b+1}")
                a.e(f"v_cvt_pk_bf16_f32 v{d+2*mb+1}, v{b+2}, v{b+3}")
            a.e(f"buffer_store_dwordx4 {v(d,4)}, v{V_L16}, s[{SRD3}:{SRD3+3}], s{60 + (cw >> 1)} offen offset:{((cw&1)*2+q)*1024}{SC}")
    a.e("s_branch LF_sent")
    a.flush()
    a.st = WState()
    a.e("LF_own:")
    a.e(f"v_add_u32 v16, {LDS_OWN}, v{V_L16}")
    a.e("s_nop 7")
    for i in range(16):
        a.e(f"ds_write_b128 v16, {v(SACC+4*i,4)} offset:{i*1024}")
    a.e("s_waitcnt lgkmcnt(0)")
    a.flush()
    a.e("LF_sent:")
    PR = 96
    for k in range(1, 4):
        a.e(f"s_add_u32 s60, s{S_J}, {k}")
        a.e(f"s_and_b32 s60, s60, 3")
        a.e(f"s_lshl_b32 s61, s{S_TILE}, 2")
        a.e(f"s_add_u32 s60, s60, s61")
        a.e(f"s_lshl_b32 s60, s60, 2")
        a.e(f"s_add_u32 s60, s60, s{S_J}")
        a.e(f"s_lshl_b32 s60, s60, 2")
        a.e(f"s_add_u32 s60, s60, s{S_W3}")
        a.e(f"s_lshl_b32 s{64+k}, s60, 11")

    def fetch():
        for k in range(1, 4):
            for q in range(2):
                a.e(f"buffer_load_dwordx4 {v(PR+8*(k-1)+4*q,4)}, v{V_L16}, s[{SRD3}:{SRD3+3}], s{64+k} offen offset:{q*1024}{SC}")
    fetch()
    a.e(f"s_lshr_b32 s62, s{S_W3}, 1")
    a.e(f"s_lshl_b32 s62, s62, 13")
    a.e(f"s_and_b32 s63, s{S_W3}, 1")
    a.e(f"s_lshl_b32 s63, s63, 11")
    a.e(f"s_add_u32 s62, s62, s63")
    a.e(f"s_add_u32 s62, s62, {LDS_OWN}")
    a.e(f"v_add_u32 v18, s62, v{V_L16}")
    a.e(f"s_mov_b32 s{S_SPIN}, 0x10000")
    a.e("s_barrier")
    stamp(a, 13)
    S_ = 64
    for q in range(2):
        for mb in range(2):
            a.e(f"ds_read_b128 {v(S_+4*(2*q+mb),4)}, v18 offset:{q*4096+mb*1024}")
    a.flush()
    a.e("LF_xchk:")
    a.e("s_waitcnt vmcnt(0)")
    a.e(f"v_max3_u32 v16, v{PR}, v{PR+1}, v{PR+2}")
    a.e(f"v_max3_u32 v17, v{PR+3}, v{PR+4}, v{PR+5}")
    for i in range(6, 24, 4):
        a.e(f"v_max3_u32 v16, v16, v{PR+i}, v{PR+i+1}")
        if i + 2 < 24:
            a.e(f"v_max3_u32 v17, v17, v{PR+i+2}, v{PR+i+3}")
    a.e("v_max_u32 v16, v16, v17")
    a.e("v_cmp_eq_u32 vcc, -1, v16")
    a.e(f"s_sub_u32 s{S_SPIN}, s{S_SPIN}, 1")
    a.e("s_cbranch_scc1 LF_xok")
    a.e("s_cbranch_vccz LF_xok")
    fetch()
    a.e("s_branch LF_xchk")
    a.flush()
    a.st.vm = []
    a.e("LF_xok:")
    stamp(a, 14)
    for k in range(3):
        for i in range(16):
            src = PR + 8 * k + i // 2
            t = 80 + i
            a.e(f"v_lshlrev_b32 v{t}, 16, v{src}" if i % 2 == 0 else f"v_and_b32 v{t}, 0xffff0000, v{src}")
        for i in range(16):
            a.e(f"v_add_f32 v{S_+i}, v{S_+i}, v{80+i}")
    a.e(f"s_add_u32 s60, s{S_XO}, 16384")
    for b in range(4):
        for i in range(4):
            a.e(f"v_fma_f32 v{S_+4*b+i}, v{S_+4*b+i}, v{GACC+4*b+i}, v{GACC+32+4*b+i}")
        a.e(f"v_cvt_pk_bf16_f32 v{XR+2*b}, v{S_+4*b}, v{S_+4*b+1}")
        a.e(f"v_cvt_pk_bf16_f32 v{XR+2*b+1}, v{S_+4*b+2}, v{S_+4*b+3}")
        a.e(f"buffer_store_dwordx2 {v(XR+2*b,2)}, v{V_XA}, s[{SRD4}:{SRD4+3}], s{60 if b >= 2 else S_XO} offen offset:{(b&1)*32}")
    if STAMP:
        a.e("s_waitcnt vmcnt(0)")
    stamp(a, 15)


def p2_main(a):
    a.add([WaitTag(lambda t: t == ("p2", 0)), "s_barrier"])
    for d in range(12):
        a.add(p2_read(0, 0, d))
    stamp(a, 4)
    for st in range(8):
        ex = xload(2 * st + 3) if st < 7 else []
        if True:
            ex += [kv_deferred(i) for i in range(12) if KVST[i] == st]
        a.add(p2_part(2 * st, (st, 1), spread(ex, 1, 22) if ex else []))
        if st < 7:
            a.add([WaitTag(lambda t, st=st: t == ("p2", st + 1) or (st == KVFLAG and t == "kvst")), "s_barrier"])
        if st == KVFLAG:
            a.add(set_flag(F_KV, 30, 0))
        ex = (p2_dma(2) if st == 0 else []) + (p2_dma(st + 3) if st <= 4 else []) + (xload(2 * st + 4) if st < 6 else [])
        if st == 7:
            a.add(Need([v(p3.BR, 32)]))
            ex = cap(p3.p3_setup_once, 30) + [f"v_and_b32 v29, 7, v{V_LANE}", "v_lshlrev_b32 v29, 15, v29", "s_and_b32 s74, s2, 31",
                                              "s_lshl_b32 s74, s74, 10", f"s_cmp_lt_u32 s{S_WAVE}, 4", "s_cselect_b32 s74, s74, 0x40000",
                                              poll_load(28, 29, SRD_F, "s74")] + cap(p3.first_dma_regs)
            a.add(p2_part(2 * st + 1, None, spread(ex, 0, 12)))
        else:
            a.add(p2_part(2 * st + 1, (st + 1, 0), spread(ex, 1, 22) if ex else []))
        stamp(a, 8 + st, 'U')
    a.e(f"s_cmp_ge_u32 s{S_WAVE}, 4")
    a.e("s_cbranch_scc1 LF_nokv")
    a.flush()
    stt = a.st.copy()
    poll_check(a, 28, 29, SRD_F, 1, "s74")
    a.add(p3.kv_dma(30))
    a.add(p3.kv_dma(30))
    a.flush()
    a.st = stt
    a.e("LF_nokv:")


def kernel_f(a, label):
    p3.KVSC = SC
    p3.TODO_HOOK = h_flag_hook
    p3.STB = 4
    p3.stamp = stamp
    p3.LDS_H = LDS_H
    a.st = WState()
    kernel_head(a, label, 256, 0 if 'q' in OPT else CODE_LINES, wait=False)
    a.e(f"v_lshlrev_b32 v{V_L16}, 4, v{V_LANE}")
    a.e(f"s_lshl_b32 s{S_ROW}, s2, 3")
    a.e(f"s_lshl_b32 s61, s{S_W3}, 1")
    a.e(f"s_add_u32 s{S_ROW}, s{S_ROW}, s61")
    a.e(f"s_lshl_b32 s{S_ROW}, s{S_ROW}, 10")
    a.e(f"s_cmp_ge_u32 s{S_WAVE}, 4")
    a.e(f"s_cbranch_scc0 LF0_K")
    a.e("s_waitcnt lgkmcnt(0)")
    a.flush()
    st0 = a.st.copy()
    ln_issue(a)
    a.e("s_branch LF0_V")
    a.flush()
    stv = a.st.copy()
    pro = {}
    for isv in (0, 1):
        if isv:
            a.st = stv
            a.e(f"LF0_V:")
        else:
            a.st = st0
            a.e(f"LF0_K:")
            k_dma_setup(a)
            a.e("s_waitcnt lgkmcnt(0)")
        srd(a, SRD1, P_CKV, 2097152)
        srd(a, SRD_WK, P_WUK, 0x400000)
        srd(a, SRD_WV, P_WUV, 0x400000)
        if isv:
            touch_setup(a)
            if 'a' not in OPT:
                a.add(touch_p1(2))
        else:
            for st in range(2):
                g, adv = k_dma(st)
                for m0, ld in g:
                    a.add([m0, ld])
                a.add(adv)
            a.e("s_branch LF1_K")
            a.flush()
            pro[0] = a.st.copy()
            continue
    order = (1, 0)
    ends = []
    for isv in order:
        if not isv:
            a.st = pro[0]
            a.e("LF1_K:")
        stamp_init(a, 0)
        stamp(a, 0)
        stamp(a, 8, 'V')
        stamp(a, 9, 'V')
        p3.q0_setup2(a)
        setup_reads(a)
        srd(a, SRD3, P_WS, WS_CTX)
        srd(a, SRD_F, P_WS, 0x40000, WS_FLAG)
        if isv:
            a.e(f"v_min_u32 v20, 7, v{V_LANE}")
            a.e("v_lshlrev_b32 v20, 7, v20")
            a.e("v_mov_b32 v21, 0")
            a.e("s_lshl_b32 s62, s2, 10")
            a.e(f"s_cmp_eq_u32 s{S_WAVE}, 4")
            a.e("s_cselect_b32 s62, s62, 0x40000")
            a.e(f"buffer_store_dword v21, v20, s[{SRD_F}:{SRD_F+3}], s62 offen sc1")
            ln_compute(a)
        stamp(a, 10, 'V')
        a.add([WaitTag(lambda t: t == ("p1", 0), lg0=True), "s_barrier"])
        stamp(a, 1)
        a.add(p1.p1_reads(0, 0, p1.F0))

        def tl(st):
            x = []
            if isv and 'a' not in OPT:
                if 'r' in OPT:
                    for m in {0: (3, 4), 1: (5, 6), 2: (7,)}.get(st, ()):
                        x += touch_p1(m)
                elif st + 3 < 8:
                    x += touch_p1(st + 3)
            if isv and 1 <= st <= 4 and 'b' not in OPT:
                x += cap(late_touch, st - 1)
            return spread(x, 10, 31) if x else []
        for st in range(6):
            fl1, fl2 = tl(st), []
            if st == 0:
                x = cap(ln_store)
                fl1 = fl1 + spread(x[:-1], 2, 8, 8) + [(14, 8, x[-1])]
            if st == 2 and isv:
                t = Asm()
                srd(t, 84, P_DBG, 256)
                t.e(f"s_cmp_eq_u32 s{S_WAVE}, 4")
                t.e("s_cselect_b32 s86, s86, 0")
                t.e("s_and_b32 s60, s2, 15")
                t.e("s_lshl_b32 s60, s60, 2")
                t.e("v_mov_b32 v22, 1")
                t.e("s_mov_b64 exec, 1")
                t.e(f"buffer_atomic_add v22, off, s[84:87], s60 sc1")
                t.e("s_mov_b64 exec, -1")
                fl2 = [(0, 7, t.cur)] + fl2
            p1_stage(a, isv, st, fl1=fl1, fl2=fl2, wait="xn" if st == 2 else None)
            stamp(a, 8 + st, True)
        p1_stage(a, isv, 6, fl1=spread(cap(p3.p2_setup), 0, 30) + ([(20, 7, [f"v_and_b32 v29, 15, v{V_LANE}", "v_lshlrev_b32 v29, 2, v29", poll_load(28, 29, 84)])] if isv else []), fl2=spread(p2_dma(0) + p2_dma(1), 0, 31))
        stamp(a, 14, True)

        def init_check():
            if isv:
                a.add(Need([v(28)]))
                a.e(f"s_cmp_lg_u32 s{S_WAVE}, 4")
                a.e("s_cbranch_scc1 LF_noinitchk")
                poll_check(a, 28, 29, 84, 16)
                a.flush()
                a.e("LF_noinitchk:")
        x = cap(bias_load)
        y = xload(0) + xload(1) + xload(2)
        p1_stage(a, isv, 7, pre_bar=init_check, fl1=spread(x, 22, 31) if False else [],
                 fl2=spread(cap(xn_setup), 0, 1, 3) + spread(y, 2, 22, 4) + spread(x, 23, 31, 4) + spread(cap(p2_setup_reads), 0, 31))
        stamp(a, 15, True)
        stamp(a, 2)
        p1_pack(a, isv)
        if isv == order[0]:
            a.e(f"s_branch LF1_done")
        a.flush()
        while a.st.vm and a.st.vm[0][1] is None and not a.st.vm[0][0]:
            a.st.vm.pop(0)
        ends.append(a.st.key())
    assert ends[0] == ends[1], ends
    a.e("LF1_done:")
    bias_apply(a)
    stamp(a, 3)
    p2_main(a)
    stamp(a, 5)
    a.e(f"v_mov_b32 v{p3.V_KD}, v30")
    p3.p2_epilogue(a, SRD3, WS_H, SC)
    p3.p3_consts(a)
    a.e(f"s_cmp_eq_u32 s{S_WAVE}, 0")
    a.e(f"s_cselect_b32 s{p3.S_TODO}, 1, 0")
    stamp(a, 6)
    p3.p3_main(a, "LF3", SC, last_hook=a_last_hook, last_wait=4 + NTOUCH, b_hook=b_pre_join, epi_hook=arm_slot)
    stamp(a, 9)
    p45(a)
    kernel_tail(a, label)
    return label
```

```python
from common import *
import p1, p3, p5, os
OPT = os.environ.get('OPT', '') + 'gcwzxA'
from p1 import V_LANE, V_L16

SC = " sc1"
SRD_F = 88
F_KV, F_H, F_CTX, F_XCC, F_S = 0, 128, 256, 384, 512
V_DUM = 31
CODE_LINES = int(os.environ.get('CODE_LINES', '0'))
LDS_H = 131072
S_SPIN = 3
_uid = [0]


_stamp = stamp
def stamp(a, idx, grp=None):
    if 'M' in OPT and (grp or idx not in (0, 5, 9, 15)):
        return
    sel = [c for c in "STUV" if c in OPT]
    if grp in (True, 'S'):
        grp = 'S'
    if grp:
        if grp in OPT:
            _stamp(a, idx)
        return
    if sel and idx >= (10 if 'T' in sel else 8):
        return
    _stamp(a, idx)


def cap(fn, *args):
    t = Asm()
    fn(t, *args)
    return t.cur


def spread(lst, lo, hi, prio=5):
    n = len(lst)
    return [(lo + (i * (hi - lo + 1)) // n, prio, x) for i, x in enumerate(lst)]


def poll_load(dst, addr, srd_, soff="0"):
    return f"buffer_load_dword v{dst}, v{addr}, s[{srd_}:{srd_+3}], {soff} offen sc1"


def poll_check(a, dst, addr, srd_, expect, soff="0", on_spin=(), sleep=2):
    _uid[0] += 1
    L = f"L_poll{_uid[0]}"
    a.add(Need([v(dst)]))
    a.e(f"v_cmp_gt_u32 vcc, {expect}, v{dst}")
    a.e("s_nop 0")
    a.e(f"s_cbranch_vccz {L}_ok")
    a.flush()
    st = a.st.copy()
    a.e(f"s_mov_b32 s{S_SPIN}, 0x10000")
    a.add(list(on_spin))
    a.e(f"{L}:")
    if sleep:
        a.e(f"s_sleep {sleep}")
    a.e(poll_load(dst, addr, srd_, soff))
    a.e("s_waitcnt vmcnt(0)")
    a.e(f"v_cmp_gt_u32 vcc, {expect}, v{dst}")
    a.e(f"s_sub_u32 s{S_SPIN}, s{S_SPIN}, 1")
    a.e(f"s_cbranch_scc1 {L}_ok")
    a.e(f"s_cbranch_vccnz {L}")
    a.flush()
    a.st = st
    a.e(f"{L}_ok:")


def set_flag(ftype, t0, cond_wave, ts=60):
    return [f"v_mov_b32 v{t0}, 1", f"s_lshl_b32 s{ts}, s2, 10", f"s_cmp_eq_u32 s{S_WAVE}, {cond_wave}",
            f"s_cselect_b32 s{ts}, s{ts}, 0x40000",
            f"buffer_store_dword v{t0}, off, s[{SRD_F}:{SRD_F+3}], s{ts} offset:{ftype} sc1"]


V_CD, V_WD1 = 2, 3
S_CSO, S_WSO1, S_CM0, S_WM01 = 64, 72, 80, 81
WSO1 = [72, 73, 78, 79]
SRD_WK, SRD_WV = SRD2, SRD4
S_TC, S_TW = 64, 65


def k_dma_setup(a):
    L = V_LANE
    a.e(f"s_and_b32 s62, s{S_WAVE}, 1")
    a.e(f"s_lshl_b32 s63, s62, 2")
    a.e(f"v_and_b32 v20, 7, v{L}")
    a.e(f"v_lshrrev_b32 v21, 4, v{L}")
    a.e(f"v_xor_b32 v20, v20, v21")
    a.e(f"v_xor_b32 v20, s63, v20")
    a.e(f"v_lshlrev_b32 v20, 4, v20")
    a.e(f"v_lshrrev_b32 v22, 3, v{L}")
    a.e(f"v_lshl_add_u32 v{V_CD}, v22, 10, v20")
    a.e(f"s_lshl_b32 s63, s{S_P}, 18")
    a.e(f"v_add_u32 v{V_CD}, s63, v{V_CD}")
    a.e(f"s_lshr_b32 s63, s{S_WAVE}, 1")
    a.e(f"s_lshl_b32 s74, s63, 4")
    a.e(f"s_add_u32 s74, s74, s62")
    a.e(f"s_lshl_b32 s{S_CM0}, s74, 10")
    a.e(f"s_lshl_b32 s{S_CSO}, s74, 13")
    for j in range(1, 8):
        a.e(f"s_add_u32 s{S_CSO+j}, s{S_CSO}, {j*16384}")
    a.e(f"s_lshl_b32 s74, s62, 3")
    a.e(f"v_lshlrev_b32 v22, 1, v21")
    a.e(f"v_and_b32 v20, 15, v{L}")
    a.e(f"v_xor_b32 v20, v20, v22")
    a.e(f"v_xor_b32 v20, s74, v20")
    a.e(f"v_lshlrev_b32 v20, 4, v20")
    a.e(f"v_lshl_add_u32 v{V_WD1}, v21, 13, v20")
    a.e(f"s_lshl_b32 s74, s{S_H}, 8")
    a.e(f"v_add_u32 v{V_WD1}, s74, v{V_WD1}")
    a.e(f"s_lshl_b32 s63, s63, 3")
    a.e(f"s_lshl_b32 s74, s62, 1")
    a.e(f"s_add_u32 s63, s63, s74")
    a.e(f"s_lshl_b32 s{WSO1[0]}, s63, 15")
    for j in range(1, 4):
        a.e(f"s_add_u32 s{WSO1[j]}, s{WSO1[0]}, {((j&1)+4*(j>>1))*32768}")
    a.e(f"s_lshl_b32 s{S_WM01}, s63, 10")
    a.e(f"s_add_u32 s{S_WM01}, s{S_WM01}, {p1.LDS_W}")


def k_dma(stage):
    par = stage & 1
    g = []
    for j in range(8):
        g.append([f"s_add_u32 m0, s{S_CM0}, {par*32768 + j*2048}",
                  I(f"buffer_load_dwordx4 v{V_CD}, s[{SRD1}:{SRD1+3}], s{S_CSO+j} offen lds", tag=("p1", stage))])
    for mat in range(2):
        sr = SRD_WV if mat else SRD_WK
        for j in range(4):
            g.append([f"s_add_u32 m0, s{S_WM01}, {par*32768 + mat*16384 + ((j&1)+4*(j>>1))*1024}",
                      I(f"buffer_load_dwordx4 v{V_WD1}, s[{sr}:{sr+3}], s{WSO1[j]} offen lds", tag=("p1", stage))])
    g = [x for pair in zip(g[:8], g[8:]) for x in pair]
    adv = [f"v_add_u32 v{V_CD}, 128, v{V_CD}", f"v_add_u32 v{V_WD1}, 0x80000, v{V_WD1}"]
    return g, adv


def touch_setup(a):
    L = V_LANE
    a.e(f"v_lshrrev_b32 v{V_CD}, 2, v{L}")
    a.e(f"v_lshlrev_b32 v{V_CD}, 10, v{V_CD}")
    a.e(f"s_and_b32 s62, s{S_H}, 3")
    a.e(f"s_lshl_b32 s62, s62, 2")
    a.e(f"s_add_u32 s62, s62, s{S_W3}")
    a.e(f"s_lshl_b32 s62, s62, 14")
    a.e(f"s_lshl_b32 s63, s{S_P}, 18")
    a.e(f"s_add_u32 s{S_TC}, s62, s63")
    a.e(f"v_and_b32 v{V_WD1}, 32, v{L}")
    a.e(f"v_lshlrev_b32 v{V_WD1}, 8, v{V_WD1}")
    a.e(f"v_and_b32 v20, 16, v{L}")
    a.e(f"v_lshl_add_u32 v{V_WD1}, v20, 3, v{V_WD1}")
    a.e(f"s_lshl_b32 s62, s{S_P}, 2")
    a.e(f"s_add_u32 s62, s62, s{S_W3}")
    a.e(f"s_lshl_b32 s62, s62, 14")
    a.e(f"s_lshl_b32 s63, s{S_H}, 8")
    a.e(f"s_add_u32 s{S_TW}, s62, s63")


def touch_p1(stage):
    return [f"s_add_u32 s62, s{S_TC}, {stage*128}",
            f"buffer_load_dword v{V_DUM}, v{V_CD}, s[{SRD1}:{SRD1+3}], s62 offen",
            f"s_add_u32 s62, s{S_TW}, {stage*0x80000}",
            f"buffer_load_dword v{V_DUM}, v{V_WD1}, s[{SRD_WK}:{SRD_WK+3}], s62 offen",
            f"buffer_load_dword v{V_DUM}, v{V_WD1}, s[{SRD_WV}:{SRD_WV+3}], s62 offen"]


S_ROW = 77


def start_touch_setup(a):
    L = V_LANE
    a.e(f"s_and_b32 s62, s{S_H}, 3")
    a.e(f"s_lshl_b32 s62, s62, 3")
    a.e(f"s_add_u32 s62, s62, s{S_WAVE}")
    a.e(f"s_lshl_b32 s62, s62, 13")
    a.e(f"s_lshl_b32 s63, s{S_P}, 18")
    a.e(f"s_add_u32 s62, s62, s63")
    a.e(f"v_lshrrev_b32 v16, 2, v{L}")
    a.e(f"v_lshlrev_b32 v16, 10, v16")
    a.e(f"v_and_b32 v17, 2, v{L}")
    a.e(f"v_lshl_add_u32 v16, v17, 6, v16")
    a.e(f"v_add_u32 v16, s62, v16")
    a.e(f"s_lshl_b32 s62, s2, 3")
    a.e(f"s_add_u32 s62, s62, s{S_WAVE}")
    a.e(f"s_lshl_b32 s62, s62, 10")
    a.e(f"v_bfe_u32 v17, v{L}, 2, 3")
    a.e(f"v_max_u32 v17, 2, v17")
    a.e(f"v_lshl_add_u32 v17, v17, 7, s62")
    a.e(f"v_cmp_lt_u32 vcc, 31, v{L}")
    a.e(f"v_and_b32 v18, 32, v{L}")
    a.e(f"v_cndmask_b32 v16, v16, v17, vcc")
    a.e(f"v_lshlrev_b32 v18, 14, v18")
    a.e(f"v_and_b32 v19, 16, v{L}")
    a.e(f"v_lshl_add_u32 v18, v19, 3, v18")
    a.e(f"s_lshl_b32 s62, s{S_P}, 3")
    a.e(f"s_add_u32 s62, s62, s{S_WAVE}")
    a.e(f"s_lshl_b32 s62, s62, 13")
    a.e(f"s_lshl_b32 s63, s{S_H}, 8")
    a.e(f"s_add_u32 s62, s62, s63")
    a.e(f"v_add_u32 v18, s62, v18")


def start_touch(a):
    a.e(f"buffer_load_dword v{V_DUM}, v16, s[{SRD1}:{SRD1+3}], 0 offen")
    a.e(f"buffer_load_dword v{V_DUM}, v18, s[{SRD_WK}:{SRD_WK+3}], 0 offen")
    a.e(f"buffer_load_dword v{V_DUM}, v18, s[{SRD_WV}:{SRD_WV+3}], 0 offen")


LNB = (128, 144)


def ln_issue(a):
    srd(a, SRD0, P_X, 2097152)
    for r, b in enumerate(LNB):
        a.e(f"buffer_load_dwordx4 {v(b,4)}, v{V_L16}, s[{SRD0}:{SRD0+3}], s{S_ROW} offen offset:{r*1024}")


def ln_row(a, b, r):
    F, M, T, V_ = b + 4, b + 12, b + 13, b + 14
    for i in range(4):
        a.e(f"v_lshlrev_b32 v{F+2*i}, 16, v{b+i}")
        a.e(f"v_and_b32 v{F+1+2*i}, 0xffff0000, v{b+i}")
    for i in range(4):
        a.e(f"v_add_f32 v{b+i}, v{F+2*i}, v{F+1+2*i}")
    a.e(f"v_add_f32 v{b}, v{b}, v{b+1}")
    a.e(f"v_add_f32 v{b+2}, v{b+2}, v{b+3}")
    a.e(f"v_add_f32 v{M}, v{b}, v{b+2}")
    wave_sum(a, M, T)
    a.e(f"v_mul_f32 v{M}, 0x3b000000, v{M}")
    for h in range(2):
        for i in range(4):
            a.e(f"v_sub_f32 v{b+i}, v{F+4*h+i}, v{M}")
        if h == 0:
            a.e(f"v_mul_f32 v{V_}, v{b}, v{b}")
            a.e(f"v_mul_f32 v{V_+1}, v{b+1}, v{b+1}")
        else:
            a.e(f"v_fmac_f32 v{V_}, v{b}, v{b}")
            a.e(f"v_fmac_f32 v{V_+1}, v{b+1}, v{b+1}")
        a.e(f"v_fmac_f32 v{V_}, v{b+2}, v{b+2}")
        a.e(f"v_fmac_f32 v{V_+1}, v{b+3}, v{b+3}")
    a.e(f"v_add_f32 v{V_}, v{V_}, v{V_+1}")
    wave_sum(a, V_, T)
    a.e(f"v_mul_f32 v{V_}, 0x3b000000, v{V_}")
    round_bf16(a, M)
    round_bf16(a, V_)
    a.e(f"v_add_f32 v{V_}, 0x3727c5ac, v{V_}")
    round_bf16(a, V_)
    a.e(f"v_sqrt_f32 v{V_}, v{V_}")
    round_bf16(a, V_)
    a.e(f"v_rcp_f32 v{V_}, v{V_}")
    for i in range(8):
        a.e(f"v_sub_f32 v{F+i}, v{F+i}, v{M}")
    for i in range(4):
        a.e(f"v_cvt_pk_bf16_f32 v{b+i}, v{F+2*i}, v{F+1+2*i}")
    for i in range(4):
        a.e(f"v_lshlrev_b32 v{F+2*i}, 16, v{b+i}")
        a.e(f"v_and_b32 v{F+1+2*i}, 0xffff0000, v{b+i}")
    for i in range(8):
        a.e(f"v_mul_f32 v{F+i}, v{F+i}, v{V_}")
    for i in range(4):
        a.e(f"v_cvt_pk_bf16_f32 v{b+i}, v{F+2*i}, v{F+1+2*i}")
    a.e(f"ds_write_b128 v30, {v(b,4)} offset:{16*r}")


def ln_compute(a):
    a.e(f"s_lshl_b32 s60, s{S_W3}, 5")
    a.e(f"s_add_u32 s60, s60, {LDS_H}")
    a.e(f"v_lshlrev_b32 v30, 7, v{V_LANE}")
    a.e("v_add_u32 v30, s60, v30")
    r0, r1 = cap(ln_row, LNB[0], 0), cap(ln_row, LNB[1], 1)
    for x, y in zip(r0, r1):
        a.add([x, y])


def ln_store(a):
    L = V_LANE
    a.e(f"s_lshl_b32 s60, s{S_WAVE}, 10")
    a.e(f"s_add_u32 s60, s60, {LDS_H}")
    a.e(f"v_add_u32 v20, s60, v{V_L16}")
    a.e("ds_read_b128 v[16:19], v20")
    a.e(f"v_lshrrev_b32 v21, 3, v{L}")
    a.e(f"v_lshlrev_b32 v21, 8, v21")
    a.e(f"v_and_b32 v22, 7, v{L}")
    a.e(f"v_lshl_add_u32 v21, v22, 4, v21")
    a.e(f"s_lshr_b32 s61, s2, 1")
    a.e("s_lshl_b32 s61, s61, 14")
    a.e(f"s_and_b32 s60, s2, 1")
    a.e("s_lshl_b32 s60, s60, 7")
    a.e("s_add_u32 s61, s61, s60")
    a.e(f"s_lshl_b32 s60, s{S_WAVE}, 11")
    a.e("s_add_u32 s61, s61, s60")
    a.e(f"buffer_store_dwordx4 v[16:19], v21, s[{SRD3}:{SRD3+3}], s61 offen{SC}", tag="xn")


def setup_reads(a):
    L = V_LANE
    V_CA, V_WA_ = p1.V_CA, p1.V_WA
    a.e(f"v_and_b32 v20, 15, v{L}")
    a.e(f"v_lshrrev_b32 v21, 4, v{L}")
    a.e(f"v_lshrrev_b32 v22, 1, v20")
    a.e(f"v_xor_b32 v22, v22, v21")
    a.e(f"v_lshlrev_b32 v22, 4, v22")
    a.e(f"v_lshl_add_u32 v22, v20, 7, v22")
    a.e(f"s_lshl_b32 s63, s{S_W3}, 13")
    a.e(f"v_add_u32 v{V_CA}, s63, v22")
    a.e(f"v_xor_b32 v{V_CA+1}, 64, v{V_CA}")
    a.e(f"v_lshrrev_b32 v22, 2, v20")
    a.e(f"v_and_b32 v23, 1, v21")
    a.e(f"v_lshl_add_u32 v23, v23, 2, v22")
    a.e(f"v_lshl_add_u32 v22, v21, 3, v22")
    a.e(f"v_lshlrev_b32 v22, 8, v22")
    a.e(f"v_and_b32 v24, 3, v{L}")
    a.e(f"v_lshl_add_u32 v22, v24, 3, v22")
    a.e(f"s_lshr_b32 s74, s{S_WAVE}, 2")
    a.e(f"s_lshl_b32 s74, s74, 14")
    a.e(f"s_add_u32 s74, s74, {p1.LDS_W}")
    a.e(f"v_add_u32 v22, s74, v22")
    for d in range(8):
        a.e(f"v_xor_b32 v24, {d}, v23")
        a.e(f"v_lshl_add_u32 v{V_WA_+d}, v24, 5, v22")


def late_touch(a, which):
    L = V_LANE
    if which < 0:
        k = -which - 1
        if k == 0:
            a.e(f"v_and_b32 v24, 32, v{L}")
            a.e(f"v_lshlrev_b32 v24, 1, v24")
            a.e(f"v_bfe_u32 v25, v{L}, 4, 1")
            a.e(f"v_add_u32 v24, v24, v25")
            a.e(f"s_lshl_b32 s62, s{S_P}, 2")
            a.e(f"s_add_u32 s62, s62, s{S_W3}")
            a.e(f"s_lshl_b32 s62, s62, 1")
            a.e(f"v_add_u32 v24, s62, v24")
            a.e(f"v_mul_u32_u24 v25, 3584, v24")
            a.e(f"s_lshl_b32 s63, s{S_H}, 7")
            a.e(f"v_add_u32 v25, s63, v25")
            a.e(f"v_lshlrev_b32 v24, 13, v24")
            a.e(f"v_and_b32 v20, 8, v{L}")
            a.e(f"v_lshl_add_u32 v24, v20, 4, v24")
            a.e(f"s_lshl_b32 s62, s{S_H}, 8")
            a.e(f"v_add_u32 v24, s62, v24")
            srd(a, SRD5, P_B1, 3584)
            a.e(f"buffer_load_dword v{V_DUM}, off, s[{SRD5}:{SRD5+3}], s63")
            srd(a, SRD5, P_WQ, 0x400000)
            srd(a, 92 if not STAMP else SRD0, P_W1, 512 * 3584)
        w1 = 92 if not STAMP else (SRD0 if (k < 2 or 'y' in OPT) else SRD1)
        a.e(f"s_mov_b32 s62, {k*128*8192}")
        a.e(f"buffer_load_dword v{V_DUM}, v24, s[{SRD5}:{SRD5+3}], s62 offen")
        a.e(f"s_mov_b32 s62, {k*128*3584}")
        a.e(f"buffer_load_dword v{V_DUM}, v25, s[{w1}:{w1+3}], s62 offen")
    elif which == 0:
        srd(a, SRD0, P_WQ, 0x400000)
        a.e(f"v_lshrrev_b32 v21, 2, v{L}")
        a.e(f"v_lshlrev_b32 v21, 13, v21")
        a.e(f"v_and_b32 v20, 2, v{L}")
        a.e(f"v_lshl_add_u32 v20, v20, 6, v21")
        a.e(f"s_lshl_b32 s62, s{S_P}, 19")
        a.e(f"s_lshl_b32 s63, s{S_W3}, 17")
        a.e(f"s_add_u32 s62, s62, s63")
        a.e(f"s_lshl_b32 s63, s{S_H}, 8")
        a.e(f"s_add_u32 s62, s62, s63")
        a.e(f"buffer_load_dword v{V_DUM}, v20, s[{SRD0}:{SRD0+3}], s62 offen")
    elif which == 1:
        srd(a, SRD0, P_W1, 512 * 3584)
        a.e(f"v_lshrrev_b32 v20, 2, v{L}")
        a.e(f"v_mul_u32_u24 v20, 3584, v20")
        a.e(f"s_lshl_b32 s62, s{S_P}, 2")
        a.e(f"s_add_u32 s62, s62, s{S_W3}")
        a.e(f"s_mul_i32 s62, s62, {16*3584}")
        a.e(f"s_lshl_b32 s63, s{S_H}, 7")
        a.e(f"s_add_u32 s62, s62, s63")
        a.e(f"buffer_load_dword v{V_DUM}, v20, s[{SRD0}:{SRD0+3}], s62 offen")
        srd(a, SRD0, P_B1, 3584)
        a.e(f"buffer_load_dword v{V_DUM}, off, s[{SRD0}:{SRD0+3}], s63")
    elif which == 2:
        srd(a, SRD0, P_WO, 0x400000)
        a.e(f"v_lshrrev_b32 v20, 1, v{L}")
        a.e(f"v_lshlrev_b32 v20, 7, v20")
        a.e(f"s_lshl_b32 s62, s2, 2")
        a.e(f"s_add_u32 s62, s62, s{S_W3}")
        a.e(f"s_lshl_b32 s63, s62, 12")
        a.e(f"buffer_load_dword v{V_DUM}, v20, s[{SRD0}:{SRD0+3}], s63 offen")
    else:
        srd(a, SRD0, P_W2, 1792 * 1024)
        a.e(f"v_lshrrev_b32 v20, 2, v{L}")
        a.e(f"v_min_u32 v20, 13, v20")
        a.e(f"v_lshlrev_b32 v20, 7, v20")
        a.e(f"s_lshl_b32 s62, s2, 2")
        a.e(f"s_add_u32 s62, s62, s{S_W3}")
        a.e(f"s_mul_i32 s63, s62, 1792")
        a.e(f"buffer_load_dword v{V_DUM}, v20, s[{SRD0}:{SRD0+3}], s63 offen")


def p1_stage(a, isv, st, fl1=(), pre_bar=None, fl2=(), wait=None):
    par = st & 1
    FA, FB = p1.F0, p1.F0 + 48
    NSP = 16 if 'x' in OPT else 11
    a.add(Need([v(FA, 48)]))
    rd = p1.p1_reads(par, 1, FB)
    fl = [(i + i // 4, 0, x) for i, x in enumerate(rd)] + list(fl1)
    if 1 <= st <= 6 and not isv:
        g, adv = k_dma(st + 1)
        for j, (m0, ld) in enumerate(g[NSP:]):
            fl.append((3 * j, 2, m0))
            fl.append((3 * j + 1, 1, ld))
        fl.append((16, 2, adv[0]))
        fl.append((17, 2, adv[1]))
    a.add(weave(p1.p1_mfmas(isv, FA, st == 0), fl))
    if pre_bar:
        pre_bar()
    a.add([WaitTag(lambda t: t == ("p1", st + 1) or (wait is not None and t == wait), lg0=True), "s_barrier"])
    fl = list(fl2)
    if st < 7:
        rd = p1.p1_reads(1 - par, 0, FA)
        fl += [(i + i // 4, 0, x) for i, x in enumerate(rd)]
    if st < 6 and not isv:
        g, adv = k_dma(st + 2)
        step = 1.5 if NSP == 16 else 2.9
        for j, (m0, ld) in enumerate(g[:NSP]):
            fl.append((int(step * j), 2, m0))
            fl.append((int(step * j) + 1, 1, ld))
    a.add(weave(p1.p1_mfmas(isv, FB, False), fl))


S_KVS = 80
KVST = [0, 0, 1, 1, 2, 2, 3, 3, 4, 4, 5, 5] if 'p' not in OPT else [0, 0, 0, 1, 1, 1, 2, 2, 2, 3, 3, 3]
KVFLAG = 6 if 'p' not in OPT else 5
PK = 112


def p1_pack(a, isv):
    ACC = p1.ACC
    a.e(f"s_lshl_b32 s60, s{S_H}, 20")
    a.e(f"s_lshl_b32 s61, s{S_P}, 2")
    a.e(f"s_add_u32 s61, s61, s{S_W3}")
    a.e(f"s_lshl_b32 s61, s61, 15")
    a.e(f"s_add_u32 s60, s60, s61")
    a.e(f"s_add_u32 s{S_KVS}, s60, {WS_KV + (16384 if isv else 0)}")
    for k in range(1, 4):
        a.e(f"s_add_u32 s{S_KVS+k}, s{S_KVS}, {4096*k}")

    def src(k, t):
        if not isv:
            return ACC + 4 * ((2 * t) * 4 + k), ACC + 4 * ((2 * t + 1) * 4 + k)
        u, d = k >> 1, 2 * t + (k & 1)
        return ACC + 4 * (d * 4 + 2 * u), ACC + 4 * (d * 4 + 2 * u + 1)

    def pk(dst, b0, b1):
        a.e(f"v_cvt_pk_bf16_f32 v{dst}, v{b0}, v{b0+1}")
        a.e(f"v_cvt_pk_bf16_f32 v{dst+1}, v{b0+2}, v{b0+3}")
        a.e(f"v_cvt_pk_bf16_f32 v{dst+2}, v{b1}, v{b1+1}")
        a.e(f"v_cvt_pk_bf16_f32 v{dst+3}, v{b1+2}, v{b1+3}")
    for k in range(4):
        pk(80 + 4 * k, *src(k, 0))
        a.add(kv_store(f"buffer_store_dwordx4 {v(80+4*k,4)}, v{V_L16}, s[{SRD3}:{SRD3+3}], s{S_KVS+k} offen"))
    for t in range(1, 4):
        for k in range(4):
            pk(PK + 4 * ((t - 1) * 4 + k), *src(k, t))


class Sel(I):
    def __init__(self, text):
        I.__init__(self, text + SC, tag="kvst")
        _uid[0] += 1
        L = f"L_sel{_uid[0]}"
        self.t = chr(10).join([f"s_cbranch_vccnz {L}a", f"  {text}{SC}", f"  s_branch {L}b", f"{L}a:", f"  {text}", f"{L}b:"])


def kv_store(text):
    return I(text + SC, tag="kvst") if 'A' in OPT else Sel(text)


def kv_deferred(i):
    t, k = 1 + i // 4, i % 4
    return kv_store(f"buffer_store_dwordx4 {v(PK+4*i,4)}, v{V_L16}, s[{SRD3}:{SRD3+3}], s{S_KVS+k} offen offset:{t*1024}")


def xcc_load():
    return [f"v_and_b32 v27, 7, v{V_LANE}", "v_lshlrev_b32 v27, 15, v27", "s_and_b32 s60, s2, 31", "s_lshl_b32 s60, s60, 10",
            f"buffer_load_dword v26, v27, s[{SRD_F}:{SRD_F+3}], s60 offen offset:{F_XCC} sc1"]


def xcc_check():
    return ["s_getreg_b32 s60, hwreg(HW_REG_XCC_ID, 0, 4)", "v_cmp_ne_u32 vcc, s60, v26", "s_nop 1", "s_cmp_eq_u64 vcc, 0",
            "s_cselect_b64 vcc, -1, 0"]


V_QA2 = 20
AF = 64
QSLOT = [0, 16384, 65536, 81920]


def p2_dma(stage):
    sl = stage & 3
    r = []
    for j in range(2):
        r.append(f"s_add_u32 m0, s{p3.S_QM0}, {QSLOT[sl] + j*1024}")
        r.append(I(f"buffer_load_dwordx4 v{p3.V_QD}, s[{SRD0}:{SRD0+3}], s{p3.S_QSO+j} offen lds", tag=("p2", stage)))
    r.append(f"s_add_u32 m0, s{p3.S_HM0}, {sl*8192}")
    r.append(I(f"buffer_load_dwordx4 v{p3.V_HD}, s[{SRD1}:{SRD1+3}], s{p3.S_HSO} offen lds", tag=("p2", stage)))
    r += [f"v_add_u32 v{p3.V_QD}, 0x80000, v{p3.V_QD}", f"v_add_u32 v{p3.V_HD}, {64*3584}, v{p3.V_HD}"]
    return r


def p2_read(stage, ks, d):
    sl = stage & 3
    r = []
    for e in range(2):
        if d < 8:
            base = (p3.V_QA if sl < 2 else V_QA2) + d
            r.append(f"ds_read_b64_tr_b16 {v(AF+4*d+2*e,2)}, v{base} offset:{(sl&1)*16384 + ks*8192 + e*1024}")
        else:
            r.append(f"ds_read_b64_tr_b16 {v(AF+4*d+2*e,2)}, v{p3.V_HA+d-8} offset:{sl*8192 + ks*4096 + e*512}")
    return r


def p2_part(k, nxt, extra):
    fl = list(extra)
    fl.append((-1, 0, Need([v(AF, 24), v(p3.BR + 8 * (k & 3), 8)])))
    fl.append((11, 9, Need([v(AF + 24, 24)])))
    if nxt:
        for d in range(12):
            r = p2_read(nxt[0], nxt[1], d)
            fl.append((2 * d + 1, 0, r[0]))
            fl.append((min(2 * d + 2, 23), 0, r[1]))
    return weave(p3.p2_mfmas(k, AF), fl)


def p2_setup_reads(a):
    L = V_LANE
    t = 72
    a.e(f"v_and_b32 v{t}, 15, v{L}")
    a.e(f"v_lshrrev_b32 v{t+1}, 4, v{L}")
    a.e(f"v_lshrrev_b32 v{t+2}, 2, v{t}")
    a.e(f"v_and_b32 v{t+3}, 1, v{t+1}")
    a.e(f"v_lshl_add_u32 v{t+4}, v{t+3}, 2, v{t+2}")
    a.e(f"v_lshrrev_b32 v{t+5}, 1, v{t+2}")
    a.e(f"v_lshl_add_u32 v{t+5}, v{t+3}, 1, v{t+5}")
    a.e(f"v_lshl_add_u32 v{t+2}, v{t+1}, 3, v{t+2}")
    a.e(f"v_and_b32 v{t+6}, 3, v{L}")
    a.e(f"v_lshlrev_b32 v{t+6}, 3, v{t+6}")
    a.e(f"v_lshl_add_u32 v{t+7}, v{t+2}, 8, v{t+6}")
    a.e(f"v_lshl_add_u32 v13, v{t+2}, 7, v{t+6}")
    a.e(f"v_add_u32 v13, {LDS_H}, v13")
    for d in range(8):
        a.e(f"v_xor_b32 v{t}, {d}, v{t+4}")
        a.e(f"v_lshl_add_u32 v{p3.V_QA+d}, v{t}, 5, v{t+7}")
        a.e(f"v_add_u32 v{V_QA2+d}, 0x10000, v{p3.V_QA+d}")
    for f in range(4):
        a.e(f"v_xor_b32 v{t}, {f}, v{t+5}")
        a.e(f"v_lshl_add_u32 v{p3.V_HA+f}, v{t}, 5, v13")


BIAS = 64


def bias_load(a):
    L = V_LANE
    srd(a, SRD2, P_B1, 1792 * 2)
    a.e(f"v_lshrrev_b32 v30, 4, v{L}")
    a.e(f"v_lshlrev_b32 v30, 3, v30")
    a.e(f"s_lshl_b32 s63, s{S_H}, 7")
    for f in range(4):
        a.e(f"buffer_load_dwordx2 {v(BIAS+2*f,2)}, v30, s[{SRD2}:{SRD2+3}], s63 offen offset:{f*32}")


def bias_apply(a):
    for f in range(4):
        for qb in range(2):
            b = p3.HACC + 4 * (f * 2 + qb)
            a.e(f"v_lshlrev_b32 v{b}, 16, v{BIAS+2*f}")
            a.e(f"v_and_b32 v{b+1}, 0xffff0000, v{BIAS+2*f}")
            a.e(f"v_lshlrev_b32 v{b+2}, 16, v{BIAS+2*f+1}")
            a.e(f"v_and_b32 v{b+3}, 0xffff0000, v{BIAS+2*f+1}")


def xload(k):
    r = []
    for qb in range(2):
        dst = p3.BR + 4 * ((k & 3) * 2 + qb)
        so = f"s{p3.S_16K}" if qb else "0"
        r.append(f"buffer_load_dwordx4 {v(dst,4)}, v{p3.V_XO}, s[{SRD3}:{SRD3+3}], {so} offen offset:{(k&1)*1024}{SC}")
    if k & 1:
        r.append(f"v_add_u32 v{p3.V_XO}, 2048, v{p3.V_XO}")
    return r


def xn_setup(a):
    a.e(f"s_lshl_b32 s63, s{p3.S_Q0}, 10")
    a.e(f"v_add_u32 v{p3.V_XO}, s63, v{V_L16}")
    a.e(f"s_mov_b32 s{p3.S_16K}, 16384")


def xn_touch(a):
    a.e(f"s_and_b32 s62, s{S_H}, 3")
    a.e(f"s_lshl_b32 s62, s62, 2")
    a.e(f"s_add_u32 s62, s62, s{S_W3}")
    a.e(f"s_sub_u32 s63, 15, s{S_P}")
    a.e(f"s_cmp_lt_u32 s62, 8")
    a.e(f"s_cselect_b32 s63, s{S_P}, s63")
    a.e(f"s_lshl_b32 s63, s63, 3")
    a.e(f"s_and_b32 s62, s62, 7")
    a.e(f"s_add_u32 s62, s62, s63")
    a.e(f"s_lshl_b32 s62, s62, 14")
    a.e(f"v_lshlrev_b32 v30, 7, v{V_LANE}")
    a.e(f"buffer_load_dword v{V_DUM}, v30, s[{SRD3}:{SRD3+3}], s62 offen sc1")
    a.e(f"s_add_u32 s62, s62, 8192")
    a.e(f"buffer_load_dword v{V_DUM}, v30, s[{SRD3}:{SRD3+3}], s62 offen sc1")


V_WD, V_AD, V_PD, V_PA = 8, 9, 11, 12
V_WA, V_BA = 22, 26
V_GA, V_GB = 27, 29
V_XA, V_BB = 10, 13
S_J, S_RB, S_CB, S_TILE = 6, 7, 8, 9
S_WSO, S_ASO, S_WM0, S_AM0 = 10, 16, 18, 19
S_PP, S_XO = 20, 21
FR, GACC, SACC, XR, BR2 = 32, 128, 192, 144, 152
NG, NS = 14, 16
NT = NG + NS
SRD_W2, SRD_WO, SRD_H, SRD_C = SRD0, SRD1, SRD2, SRD5
LDS_OWN = 131072
CTXFLAG = 6


def smask(stage):
    return 0x10000 if stage % 2 == 0 else 0x8000


def p5_ids(a):
    a.e(f"s_and_b32 s60, s2, 7")
    a.e(f"s_lshr_b32 s61, s2, 3")
    a.e(f"s_and_b32 s{S_J}, s60, 3")
    a.e(f"s_lshr_b32 s60, s60, 2")
    a.e(f"s_lshl_b32 s60, s60, 3")
    a.e(f"s_lshr_b32 s{S_RB}, s61, 2")
    a.e(f"s_add_u32 s{S_RB}, s{S_RB}, s60")
    a.e(f"s_and_b32 s{S_CB}, s61, 3")
    a.e(f"s_lshl_b32 s{S_TILE}, s{S_RB}, 2")
    a.e(f"s_add_u32 s{S_TILE}, s{S_TILE}, s{S_CB}")
    a.e(f"s_sub_u32 s60, 15, s{S_RB}")
    a.e(f"s_min_u32 s{S_PP}, s60, s{S_RB}")
    srd(a, SRD_W2, P_W2, 1792 * 1024)
    srd(a, SRD_WO, P_WO, 0x400000)
    srd(a, SRD_H, P_WS, 0x700000, WS_H)


def ring0(a, dst):
    a.e(f"s_and_b32 s{dst}, s{p3.S_T}, 2")
    a.e(f"s_cmp_eq_u32 s{dst}, 0")
    a.e(f"s_mov_b32 s61, 0x10000")
    a.e(f"s_cselect_b32 s{dst}, 0x8000, s61")


def mbase2(a, dst):
    a.e(f"s_and_b32 s{dst}, s{S_J}, 1")
    a.e(f"s_lshl_b32 s{dst}, s{dst}, 7")
    a.e(f"s_lshl_b32 s61, s{S_CB}, 8")
    a.e(f"s_add_u32 s{dst}, s{dst}, s61")


def qbase16(a, dst):
    a.e(f"s_lshr_b32 s{dst}, s{S_J}, 1")
    a.e(f"s_lshl_b32 s{dst}, s{dst}, 2")
    a.e(f"s_lshl_b32 s61, s{S_RB}, 3")
    a.e(f"s_add_u32 s{dst}, s{dst}, s61")


def loader_setup(a, skip):
    L = V_LANE
    a.e(f"v_lshrrev_b32 v17, 4, v{L}")
    a.e(f"v_lshlrev_b32 v17, 1, v17")
    a.e(f"v_and_b32 v16, 7, v{L}")
    a.e(f"v_xor_b32 v16, v16, v17")
    a.e(f"v_lshlrev_b32 v16, 4, v16")
    a.e(f"v_lshrrev_b32 v17, 3, v{L}")
    a.e(f"v_lshl_add_u32 v16, v17, 10, v16")
    mbase2(a, 62)
    if skip:
        a.e(f"s_add_u32 s62, s62, {skip*0x20000}")
    a.e(f"v_add_u32 v{V_WD}, s62, v16")
    a.e(f"s_lshl_b32 s{S_WSO}, s{S_W3}, 15")
    for j in range(1, 4):
        a.e(f"s_add_u32 s{S_WSO+j}, s{S_WSO}, {j*8192}")
    ring0(a, 60)
    if skip:
        assert skip == 2
        a.e("s_xor_b32 s60, s60, 0x18000")
    a.e(f"s_lshl_b32 s{S_WM0}, s{S_W3}, 12")
    a.e(f"s_add_u32 s{S_WM0}, s{S_WM0}, s60")
    a.e(f"s_add_u32 s{S_AM0}, s{S_WM0}, 16384")
    qbase16(a, 62)
    a.e(f"s_add_u32 s62, s62, s{S_W3}")
    a.e(f"s_mul_i32 s62, s62, {56*1024}")
    if skip:
        a.e(f"s_add_u32 s62, s62, {skip*4096}")
    a.e(f"v_add_u32 v{V_AD}, s62, v{V_L16}")


def s_phase_w(a):
    L = V_LANE
    a.e(f"s_and_b32 s62, s{S_W3}, 1")
    a.e(f"s_lshl_b32 s63, s62, 2")
    a.e(f"v_lshrrev_b32 v17, 4, v{L}")
    a.e(f"v_or_b32 v18, s63, v17")
    a.e(f"v_lshlrev_b32 v18, 1, v18")
    a.e(f"v_and_b32 v16, 15, v{L}")
    a.e(f"v_xor_b32 v16, v16, v18")
    a.e(f"v_lshlrev_b32 v16, 4, v16")
    a.e(f"v_lshl_add_u32 v16, v17, 10, v16")
    a.e(f"s_lshl_b32 s63, s{S_CB}, 8")
    a.e(f"s_lshl_b32 s61, s{S_J}, 20")
    a.e(f"s_add_u32 s63, s63, s61")
    a.e(f"v_add_u32 v{V_WD}, s63, v16")
    a.e(f"s_lshr_b32 s63, s{S_W3}, 1")
    a.e(f"s_lshl_b32 s63, s63, 3")
    a.e(f"s_add_u32 s63, s63, s62")
    a.e(f"s_lshl_b32 s{S_WSO}, s63, 12")
    for j in range(1, 4):
        a.e(f"s_add_u32 s{S_WSO+j}, s{S_WSO}, {j*8192}")
    a.e(f"s_and_b32 s{S_WM0}, s{S_WM0}, 0x18000")
    a.e(f"s_lshl_b32 s63, s63, 10")
    a.e(f"s_add_u32 s{S_WM0}, s{S_WM0}, s63")


def s_phase_a(a):
    a.e(f"s_lshl_b32 s63, s{S_RB}, 3")
    a.e(f"s_lshl_b32 s62, s{S_W3}, 1")
    a.e(f"s_add_u32 s63, s63, s62")
    a.e(f"s_lshl_b32 s{S_ASO}, s63, 17")
    a.e(f"s_add_u32 s{S_ASO+1}, s{S_ASO}, 0x20000")
    a.e(f"s_lshl_b32 s63, s{S_J}, 15")
    a.e(f"v_add_u32 v{V_AD}, s63, v{V_L16}")


def dma_w(stage):
    if 'm' in OPT and stage > 3:
        return []
    isg = stage < NG
    ws = SRD_W2 if isg else SRD_WO
    r = cap(s_phase_w) if stage == NG else []
    for j in range(4):
        r.append(f"s_add_u32 m0, s{S_WM0}, {j*(1024 if isg else 2048)}")
        r.append(I(f"buffer_load_dwordx4 v{V_WD}, s[{ws}:{ws+3}], s{S_WSO+j} offen lds", tag=("p5", stage)))
    r.append(f"v_add_u32 v{V_WD}, {hex(0x20000 if isg else 0x10000)}, v{V_WD}")
    r.append(f"s_xor_b32 s{S_WM0}, s{S_WM0}, {hex(smask(stage))}")
    return r


def dma_a(stage):
    if 'm' in OPT and stage > 3:
        return []
    r = []
    if stage < NG:
        r.append(f"s_mov_b32 m0, s{S_AM0}")
        for ks in range(4):
            r.append(I(f"buffer_load_dwordx4 v{V_AD}, s[{SRD_H}:{SRD_H+3}], 0 offen offset:{ks*1024}{SC} lds", tag=("p5", stage)))
        r.append(f"v_add_u32 v{V_AD}, 4096, v{V_AD}")
    else:
        if stage == NG:
            r += cap(s_phase_a)
        for i in range(2):
            r.append(f"s_add_u32 m0, s{S_AM0}, {i*2048}")
            for ks in range(2):
                r.append(I(f"buffer_load_dwordx4 v{V_AD}, s[{SRD_C}:{SRD_C+3}], s{S_ASO+i} offen offset:{ks*1024}{SC} lds", tag=("p5", stage)))
        r.append(f"v_add_u32 v{V_AD}, 2048, v{V_AD}")
    r.append(f"s_xor_b32 s{S_AM0}, s{S_AM0}, {hex(smask(stage))}")
    return r


def flag_addr(a, first, n, ftype):
    L = V_LANE
    a.e(f"v_min_u32 v16, {n-1}, v{L}")
    if first is not None:
        a.e(f"v_add_u32 v16, s{first}, v16")
    a.e(f"v_lshrrev_b32 v17, 2, v16")
    a.e(f"v_and_b32 v16, 3, v16")
    a.e(f"v_lshl_add_u32 v16, v16, 3, v17")
    a.e(f"s_lshl_b32 s62, s{S_PP}, 5")
    a.e(f"v_add_u32 v16, s62, v16")
    a.e(f"v_lshlrev_b32 v16, 10, v16")
    a.e(f"v_add_u32 v{V_PA}, {ftype}, v16")


def compute_setup(a):
    L = V_LANE
    ring0(a, 60)
    if NG % 4 == 2:
        a.e("s_xor_b32 s74, s60, 0x18000")
    else:
        assert NG % 4 == 0
        a.e("s_mov_b32 s74, s60")
    a.e(f"v_and_b32 v16, 15, v{L}")
    a.e(f"v_lshrrev_b32 v17, 4, v{L}")
    a.e(f"v_lshrrev_b32 v18, 2, v16")
    a.e(f"v_lshl_add_u32 v18, v17, 2, v18")
    a.e(f"v_and_b32 v19, 7, v18")
    a.e(f"v_and_b32 v20, 3, v{L}")
    a.e(f"v_lshlrev_b32 v20, 3, v20")
    a.e(f"v_lshl_add_u32 v21, v18, 7, v20")
    a.e(f"v_lshl_add_u32 v18, v18, 8, v20")
    a.e(f"v_add_u32 v18, s74, v18")
    a.e(f"v_add_u32 v21, s60, v21")
    a.e(f"v_lshrrev_b32 v30, 1, v19")
    a.e(f"s_and_b32 s62, s{S_W3}, 1")
    a.e(f"s_lshl_b32 s63, s62, 1")
    a.e(f"s_lshl_b32 s62, s62, 2")
    a.e(f"v_xor_b32 v19, s62, v19")
    a.e(f"v_xor_b32 v30, s63, v30")
    for m in range(4):
        a.e(f"v_xor_b32 v20, {m}, v19")
        a.e(f"v_lshl_add_u32 v{V_WA+m}, v20, 5, v18")
    for m in range(2):
        a.e(f"v_xor_b32 v20, {m}, v30")
        a.e(f"v_lshl_add_u32 v{V_GA+m}, v20, 5, v21")
    a.e(f"s_lshr_b32 s62, s{S_W3}, 1")
    a.e(f"s_lshl_b32 s62, s62, 13")
    a.e(f"s_add_u32 s62, s62, 16384")
    a.e(f"s_add_u32 s63, s62, s74")
    a.e(f"v_add_u32 v{V_BA}, s63, v{V_L16}")
    a.e(f"s_add_u32 s63, s62, s60")
    a.e(f"v_add_u32 v{V_GB}, s63, v{V_L16}")
    a.e(f"v_lshlrev_b32 v{V_BB}, 3, v17")
    a.e(f"v_lshl_add_u32 v{V_XA}, v16, 10, v{V_BB}")
    mbase2(a, 62)
    a.e(f"s_and_b32 s63, s{S_W3}, 1")
    a.e(f"s_lshl_b32 s63, s63, 6")
    a.e(f"s_add_u32 s62, s62, s63")
    a.e(f"v_add_u32 v{V_BB}, s62, v{V_BB}")
    qbase16(a, 63)
    a.e(f"s_lshr_b32 s61, s{S_W3}, 1")
    a.e(f"s_lshl_b32 s61, s61, 1")
    a.e(f"s_add_u32 s63, s63, s61")
    a.e(f"s_lshl_b32 s63, s63, 14")
    a.e(f"s_add_u32 s{S_XO}, s63, s62")


def p4_touch(a):
    L = V_LANE
    qbase16(a, 60)
    a.e(f"s_add_u32 s60, s60, s{S_CB}")
    a.e(f"s_lshl_b32 s60, s60, 2")
    a.e(f"s_add_u32 s60, s60, s{S_W3}")
    a.e(f"s_mul_i32 s60, s60, {14*1024}")
    a.e(f"v_lshlrev_b32 v16, 7, v{L}")
    a.e(f"buffer_load_dword v{V_DUM}, v16, s[{SRD_H}:{SRD_H+3}], s60 offen sc1")
    a.e(f"v_min_u32 v16, 47, v{L}")
    a.e(f"v_lshlrev_b32 v16, 7, v16")
    a.e(f"s_add_u32 s60, s60, 8192")
    a.e(f"buffer_load_dword v{V_DUM}, v16, s[{SRD_H}:{SRD_H+3}], s60 offen sc1")
    a.e(f"s_and_b32 s60, s{S_RB}, 7")
    a.e(f"s_lshl_b32 s60, s60, 2")
    a.e(f"s_add_u32 s60, s60, s{S_W3}")
    mbase2(a, 62)
    a.e(f"s_mul_i32 s61, s60, {56*1024}")
    a.e(f"s_add_u32 s61, s61, s62")
    a.e(f"v_min_u32 v16, 55, v{L}")
    a.e(f"v_lshlrev_b32 v16, 10, v16")
    a.e(f"buffer_load_dword v{V_DUM}, v16, s[{SRD_W2}:{SRD_W2+3}], s61 offen")
    a.e(f"v_lshrrev_b32 v17, 1, v{L}")
    a.e(f"v_and_b32 v18, 1, v{L}")
    a.e(f"v_lshlrev_b32 v18, 7, v18")
    a.e(f"v_lshl_add_u32 v17, v17, 10, v18")
    a.e(f"s_lshl_b32 s61, s{S_J}, 5")
    a.e(f"s_add_u32 s60, s60, s61")
    a.e(f"s_lshl_b32 s61, s60, 15")
    a.e(f"s_lshl_b32 s62, s{S_CB}, 8")
    a.e(f"s_add_u32 s61, s61, s62")
    a.e(f"buffer_load_dword v{V_DUM}, v17, s[{SRD_WO}:{SRD_WO+3}], s61 offen")


NTOUCH = 0 if 'f' in OPT else 8


def ctx_touch(a):
    a.e(f"s_lshl_b32 s60, s{S_RB}, 3")
    a.e(f"s_lshl_b32 s61, s{S_CB}, 1")
    a.e(f"s_add_u32 s60, s60, s61")
    a.e(f"s_lshr_b32 s61, s{S_W3}, 1")
    a.e(f"s_add_u32 s60, s60, s61")
    a.e(f"s_lshl_b32 s60, s60, 17")
    a.e(f"s_lshl_b32 s61, s{S_J}, 15")
    a.e(f"s_add_u32 s60, s60, s61")
    a.e(f"s_and_b32 s61, s{S_W3}, 1")
    a.e(f"s_lshl_b32 s61, s61, 14")
    a.e(f"s_add_u32 s60, s60, s61")
    a.e(f"v_lshlrev_b32 v16, 7, v{V_LANE}")
    a.e(f"buffer_load_dword v{V_DUM}, v16, s[{SRD_C}:{SRD_C+3}], s60 offen sc1")
    a.e(f"s_add_u32 s60, s60, 8192")
    a.e(f"buffer_load_dword v{V_DUM}, v16, s[{SRD_C}:{SRD_C+3}], s60 offen sc1")


V_P8, V_PG, V_PS = 5, 6, 21
S_TA, S_TG, S_TX, S_TO_ = 78, 79, 68, 69


def ltouch_setup(a, nw):
    L = V_LANE
    lg = 2 if nw == 4 else 1
    k = 3 - (2 - lg)
    a.e(f"s_and_b32 s74, s{S_W3}, {nw-1}")
    a.e(f"v_lshrrev_b32 v{V_P8}, {k}, v{L}")
    a.e(f"v_lshlrev_b32 v{V_P8}, 7, v{V_P8}")
    a.e(f"v_lshrrev_b32 v{V_PG}, {k+1}, v{L}")
    a.e(f"v_lshlrev_b32 v{V_PG}, 10, v{V_PG}")
    a.e(f"v_lshrrev_b32 v{V_PS}, {k+2}, v{L}")
    a.e(f"v_lshlrev_b32 v{V_PS}, 10, v{V_PS}")
    a.e(f"v_and_b32 v16, {1 << (k+1)}, v{L}")
    a.e(f"v_lshl_add_u32 v{V_PS}, v16, {7-(k+1)}, v{V_PS}")
    qbase16(a, 60)
    a.e(f"s_add_u32 s60, s60, s{S_CB}")
    a.e(f"s_mul_i32 s60, s60, {56*1024}")
    a.e(f"s_lshl_b32 s62, s74, {12-lg}")
    a.e(f"s_add_u32 s{S_TA}, s60, s62")
    a.e(f"s_and_b32 s63, s{S_RB}, 7")
    a.e(f"s_lshl_b32 s63, s63, {lg}")
    a.e(f"s_add_u32 s63, s63, s74")
    mbase2(a, 60)
    a.e(f"s_lshl_b32 s62, s63, {14-lg}")
    a.e(f"s_add_u32 s{S_TG}, s60, s62")
    if nw == 4:
        return
    a.e(f"s_lshl_b32 s62, s63, {13-lg}")
    a.e(f"s_lshl_b32 s60, s{S_J}, 20")
    a.e(f"s_add_u32 s62, s62, s60")
    a.e(f"s_lshl_b32 s60, s{S_CB}, 8")
    a.e(f"s_add_u32 s{S_TO_}, s62, s60")
    a.e(f"s_lshl_b32 s60, s{S_RB}, 3")
    a.e(f"s_lshl_b32 s61, s{S_CB}, 1")
    a.e(f"s_add_u32 s60, s60, s61")
    a.e(f"s_add_u32 s60, s60, s74")
    a.e(f"s_lshl_b32 s60, s60, 17")
    a.e(f"s_lshl_b32 s61, s{S_J}, 15")
    a.e(f"s_add_u32 s{S_TX}, s60, s61")


def ltouch_w(m):
    if m >= NT:
        return []
    if m < NG:
        return [f"s_add_u32 s60, s{S_TG}, {m*0x20000}", f"buffer_load_dword v{V_DUM}, v{V_PG}, s[{SRD_W2}:{SRD_W2+3}], s60 offen"]
    return [f"s_add_u32 s60, s{S_TO_}, {(m-NG)*0x10000}", f"buffer_load_dword v{V_DUM}, v{V_PS}, s[{SRD_WO}:{SRD_WO+3}], s60 offen"]


def ltouch_a(m):
    if m >= NT:
        return []
    if m < NG:
        return [f"s_add_u32 s60, s{S_TA}, {m*4096}", f"buffer_load_dword v{V_DUM}, v{V_P8}, s[{SRD_H}:{SRD_H+3}], s60 offen sc1"]
    return [f"s_add_u32 s60, s{S_TX}, {(m-NG)*2048}", f"buffer_load_dword v{V_DUM}, v{V_P8}, s[{SRD_C}:{SRD_C+3}], s60 offen sc1"]


def dma2_setup(a):
    L = V_LANE
    a.e(f"v_lshrrev_b32 v17, 4, v{L}")
    a.e(f"v_lshlrev_b32 v17, 1, v17")
    a.e(f"v_and_b32 v16, 7, v{L}")
    a.e(f"v_xor_b32 v16, v16, v17")
    a.e(f"v_lshlrev_b32 v16, 4, v16")
    a.e(f"v_lshrrev_b32 v17, 3, v{L}")
    a.e(f"v_lshl_add_u32 v16, v17, 10, v16")
    mbase2(a, 62)
    a.e(f"s_lshl_b32 s63, s{S_W3}, 16")
    a.e(f"s_add_u32 s62, s62, s63")
    a.e(f"s_add_u32 s62, s62, {4*0x20000}")
    a.e(f"v_add_u32 v{V_WD}, s62, v16")
    ring0(a, 60)
    a.e(f"s_lshl_b32 s{S_WM0}, s{S_W3}, 13")
    a.e(f"s_add_u32 s{S_WM0}, s{S_WM0}, s60")
    a.e(f"s_add_u32 s{S_AM0}, s{S_WM0}, 16384")
    qbase16(a, 62)
    a.e(f"s_lshl_b32 s63, s{S_W3}, 1")
    a.e(f"s_add_u32 s62, s62, s63")
    a.e(f"s_mul_i32 s62, s62, {56*1024}")
    a.e(f"s_add_u32 s62, s62, {4*4096}")
    a.e(f"v_add_u32 v{V_AD}, s62, v{V_L16}")
    for i in range(1, 8):
        a.e(f"s_mov_b32 s{SO[i]}, {i*8192}")
    a.e(f"s_mov_b32 s{S_ASO}, {56*1024}")


SO = [None, 10, 11, 12, 13, 21, 78, 79]


def so(i):
    return "0" if i == 0 else f"s{SO[i]}"


def dma2_w(stage):
    if 'm' in OPT and stage > 3:
        return []
    L = V_LANE
    isg = stage < NG
    ws = SRD_W2 if isg else SRD_WO
    r = []
    if stage == NG:
        r += [f"s_lshl_b32 s63, s{S_W3}, 2", f"v_lshrrev_b32 v17, 4, v{L}", f"v_or_b32 v18, s63, v17", f"v_lshlrev_b32 v18, 1, v18",
              f"v_and_b32 v16, 15, v{L}", f"v_xor_b32 v16, v16, v18", f"v_lshlrev_b32 v16, 4, v16", f"v_lshl_add_u32 v16, v17, 10, v16",
              f"s_lshl_b32 s63, s{S_CB}, 8", f"s_lshl_b32 s61, s{S_J}, 20", f"s_add_u32 s63, s63, s61",
              f"s_lshl_b32 s61, s{S_W3}, 12", f"s_add_u32 s63, s63, s61", f"v_add_u32 v{V_WD}, s63, v16",
              f"s_and_b32 s{S_WM0}, s{S_WM0}, 0x18000", f"s_lshl_b32 s63, s{S_W3}, 10", f"s_add_u32 s{S_WM0}, s{S_WM0}, s63"]
    for i in range(8):
        r.append(f"s_add_u32 m0, s{S_WM0}, {i*(1024 if isg else 2048)}")
        r.append(I(f"buffer_load_dwordx4 v{V_WD}, s[{ws}:{ws+3}], {so(i)} offen lds", tag=("p5", stage)))
    r.append(f"v_add_u32 v{V_WD}, {hex(0x20000 if isg else 0x10000)}, v{V_WD}")
    r.append(f"s_xor_b32 s{S_WM0}, s{S_WM0}, {hex(smask(stage))}")
    return r


def dma2_a(stage):
    if 'm' in OPT and stage > 3:
        return []
    r = []
    if stage < NG:
        for i in range(2):
            r.append(f"s_add_u32 m0, s{S_AM0}, {i*4096}")
            for ks in range(4):
                r.append(I(f"buffer_load_dwordx4 v{V_AD}, s[{SRD_H}:{SRD_H+3}], {'0' if i == 0 else 's%d' % S_ASO} offen offset:{ks*1024}{SC} lds", tag=("p5", stage)))
        r.append(f"v_add_u32 v{V_AD}, 4096, v{V_AD}")
    else:
        if stage == NG:
            r += [f"s_lshl_b32 s63, s{S_RB}, 3", f"s_lshl_b32 s62, s{S_W3}, 2", f"s_add_u32 s63, s63, s62", f"s_lshl_b32 s63, s63, 17",
                  f"s_lshl_b32 s62, s{S_J}, 15", f"s_add_u32 s63, s63, s62", f"v_add_u32 v{V_AD}, s63, v{V_L16}",
                  f"s_mov_b32 s{S_ASO}, 0x20000", f"s_mov_b32 s{S_ASO+1}, 0x40000", f"s_mov_b32 s64, 0x60000"]
        for i in range(4):
            r.append(f"s_add_u32 m0, s{S_AM0}, {i*2048}")
            sreg = ["0", f"s{S_ASO}", f"s{S_ASO+1}", "s64"][i]
            for ks in range(2):
                r.append(I(f"buffer_load_dwordx4 v{V_AD}, s[{SRD_C}:{SRD_C+3}], {sreg} offen offset:{ks*1024}{SC} lds", tag=("p5", stage)))
        r.append(f"v_add_u32 v{V_AD}, 2048, v{V_AD}")
    r.append(f"s_xor_b32 s{S_AM0}, s{S_AM0}, {hex(smask(stage))}")
    return r


def a_last_hook(a):
    p5_ids(a)
    flag_addr(a, None, 28, F_H)
    a.e(poll_load(V_PD, V_PA, SRD_F))
    loader_setup(a, 0)
    a.add(dma_w(0))
    a.add(dma_w(1))
    compute_setup(a)
    poll_check(a, V_PD, V_PA, SRD_F, 1)
    a.add(dma_a(0))
    a.add(dma_a(1))
    if NTOUCH:
        ltouch_setup(a, 4)
        for m in range(2, 2 + NTOUCH // 2):
            a.add(ltouch_w(m) + ltouch_a(m))


def b_pre_join(a):
    a.e(f"s_cmp_ge_u32 s{S_WAVE}, 6")
    a.e("s_cbranch_scc1 LF_bpre")
    a.flush()
    st = a.st.copy()
    p3.ctx_store(a, 0, SC)
    p3.ctx_store(a, 1, SC)
    p5_ids(a)
    dma2_setup(a)
    a.flush()
    a.st = st
    a.e("LF_bpre:")


def h_flag_hook(a):
    a.flush()
    st = a.st.copy()
    a.e(f"v_mov_b32 v{p3.T0}, 1")
    a.e(f"s_lshl_b32 s60, s2, 10")
    a.e(f"buffer_store_dword v{p3.T0}, off, s[{SRD_F}:{SRD_F+3}], s60 offset:{F_H} sc1")
    a.e(f"s_mov_b32 s{p3.S_TODO}, 0")
    a.flush()
    a.st = st


def c_reads(ks, fb):
    r = []
    for q in range(4):
        r.append(f"ds_read_b128 {v(fb+16+4*q,4)}, v{V_BA} offset:{q*2048 + ks*1024}")
    for m in range(4):
        for e in range(2):
            r.append(f"ds_read_b64_tr_b16 {v(fb+4*m+2*e,2)}, v{V_WA+m} offset:{ks*8192 + e*4096}")
    return r


def g_reads(half, fb):
    r = []
    for k in range(2):
        ks = 2 * half + k
        for q in range(2):
            r.append(f"ds_read_b128 {v(fb+16+4*(2*k+q),4)}, v{V_GB} offset:{q*4096 + ks*1024}")
        for m in range(2):
            for e in range(2):
                r.append(f"ds_read_b64_tr_b16 {v(fb+4*(2*k+m)+2*e,2)}, v{V_GA+m} offset:{ks*4096 + e*2048}")
    return r


def g_mfmas(fb, first):
    m = []
    for k in range(2):
        for mb, q in ((0, 0), (0, 1), (1, 1), (1, 0)):
            d = GACC + 4 * (q * 2 + mb)
            m.append(mfma(d, fb + 4 * (2 * k + mb), fb + 16 + 4 * (2 * k + q), None if (first and k == 0) else d))
    return m


def barw(vm0):
    return [f"s_waitcnt vmcnt({vm0}) lgkmcnt(0)" if vm0 is not None else "s_waitcnt lgkmcnt(0)", "s_barrier"]


def gstage(stage, first=False, vm0=None):
    if 'n' in OPT:
        return barw(vm0)
    FA, FB = FR, FR + 32
    fl = [(i // 2, 0, x) for i, x in enumerate(g_reads(1, FB))]
    for i, r in enumerate([V_GB, V_GA, V_GA + 1]):
        fl.append((6 + i // 2, 1, f"v_xor_b32 v{r}, {hex(smask(stage))}, v{r}"))
    out = weave(g_mfmas(FA, first), fl)
    out += barw(vm0)
    nx = g_reads(0, FA) if stage + 1 < NG else c_reads(0, FA)
    fl = [(i // 2, 0, x) for i, x in enumerate(nx)]
    fl.append((7, 1, Need([v(FA, 32)])))
    out += weave(g_mfmas(FB, False), fl)
    return out


def cstage(stage, first=False, vm0=None):
    if 'n' in OPT:
        return barw(vm0)
    FA, FB = FR, FR + 32
    pos = lambda i: i // 2 if i < 4 else i - 2
    fl = [(pos(i), 0, x) for i, x in enumerate(c_reads(1, FB))]
    for i, r in enumerate([V_BA, V_WA, V_WA + 1, V_WA + 2, V_WA + 3]):
        fl.append((10 + i, 1, f"v_xor_b32 v{r}, {hex(smask(stage))}, v{r}"))
    out = weave(p5.mfmas(SACC, FA, first), fl)
    out += barw(vm0)
    fl = [(pos(i), 0, x) for i, x in enumerate(c_reads(0, FA))]
    fl.append((15, 1, Need([v(FA, 32)])))
    out += weave(p5.mfmas(SACC, FB, False), fl)
    return out


def gate_math(a):
    G, T = GACC, GACC + 32
    for i in range(16):
        mb, r = (i >> 2) & 1, i & 3
        src = BR2 + 2 * mb + r // 2
        a.e(f"v_lshlrev_b32 v{T+i}, 16, v{src}" if r % 2 == 0 else f"v_and_b32 v{T+i}, 0xffff0000, v{src}")
        a.e(f"v_add_f32 v{G+i}, v{G+i}, v{T+i}")
        a.e(f"v_mul_f32 v{T+i}, 0xbfb8aa3b, v{G+i}")
        a.e(f"v_exp_f32 v{T+i}, v{T+i}")
    for i in range(16):
        a.e(f"v_add_f32 v{T+i}, 1.0, v{T+i}")
        a.e(f"v_rcp_f32 v{T+i}, v{T+i}")
    for i in range(16):
        a.e(f"v_mul_f32 v{G+i}, v{G+i}, v{T+i}")
        src = XR + i // 2
        a.e(f"v_lshlrev_b32 v{T+i}, 16, v{src}" if i % 2 == 0 else f"v_and_b32 v{T+i}, 0xffff0000, v{src}")


def slot_addr(a):
    a.e(f"s_lshl_b32 s60, s{S_TILE}, 2")
    a.e(f"s_add_u32 s60, s60, s{S_J}")
    a.e(f"s_lshl_b32 s60, s60, 2")
    a.e(f"s_add_u32 s60, s60, s{S_W3}")
    a.e(f"s_lshl_b32 s60, s60, 13")
    a.e(f"s_add_u32 s61, s60, 4096")


def arm_slot(a):
    p5_ids(a)
    srd(a, SRD3, P_WS, 0x800000, WS_SP)
    slot_addr(a)
    for i in range(4):
        a.e(f"v_mov_b32 v{136+i}, -1")
    for h in range(2):
        for i in range(4):
            a.e(f"buffer_store_dwordx4 v[136:139], v{V_L16}, s[{SRD3}:{SRD3+3}], s{60+h} offen offset:{i*1024}{SC}")


def p45(a):
    a.e(f"s_cmp_lt_u32 s{S_WAVE}, 4")
    a.e("s_cbranch_scc1 LF_comp")
    a.flush()
    a.st = WState()
    a.e(f"s_cmp_ge_u32 s{S_WAVE}, 6")
    a.e("s_cbranch_scc1 LF_touch")
    a.flush()
    LEAD = 4

    def it(st, act=True):
        a.add([WaitTag(lambda t, st=st: t == ("p5", st + 1)), "s_barrier"])
        if st == CTXFLAG:
            a.add(set_flag(F_CTX, 16, 4))
        n = st + LEAD
        if n < NT:
            a.add(dma2_w(n))
            if act:
                a.add(dma2_a(n))
    for st in range(NG - LEAD):
        it(st)
        if st == NG - LEAD - 3:
            a.e(f"s_lshl_b32 s63, s{S_J}, 3")
            flag_addr(a, 63, 8, F_CTX)
            a.e(f"v_and_b32 v16, 3, v{V_LANE}")
            a.e("s_andn2_b32 s62, s2, 3")
            a.e("v_add_u32 v16, s62, v16")
            a.e("v_lshlrev_b32 v16, 10, v16")
            a.e(f"v_add_u32 v16, {F_CTX}, v16")
            a.e(f"v_cmp_lt_u32 vcc, 31, v{V_LANE}")
            a.e(f"v_cndmask_b32 v{V_PA}, v{V_PA}, v16, vcc")
        if st == NG - LEAD - 2 and 'O' not in OPT:
            a.e(poll_load(V_PD, V_PA, SRD_F))
    if 'O' not in OPT:
        a.add(Need([v(V_PD)]))
        a.e(f"v_cmp_gt_u32 vcc, 1, v{V_PD}")
        a.e("s_nop 0")
        a.e("s_cbranch_vccnz LF_late")
        a.flush()
        stl = a.st.copy()
        for st in range(NG - LEAD, NG - 1):
            it(st)
        stamp(a, 10)
        stamp(a, 11)
        a.e("s_branch LF_ctxgo")
        a.flush()
        ste = a.st.copy()
        a.st = stl
        a.e("LF_late:")
    for st in range(NG - LEAD, NG - 1):
        it(st, False)
        if st == NG - 3:
            a.e(poll_load(V_PD, V_PA, SRD_F))
    stamp(a, 10)
    poll_check(a, V_PD, V_PA, SRD_F, 1)
    stamp(a, 11)
    for k in range(LEAD - 1):
        a.add(dma2_a(NG + k))
    a.flush()
    if 'O' not in OPT:
        def young(vm, tag):
            idx = [i for i, x in enumerate(vm) if x[1] == tag]
            return len(vm) - 1 - idx[-1] if idx else None
        for k in range(LEAD - 1):
            ye, yl = young(ste.vm, ("p5", NG + k)), young(a.st.vm, ("p5", NG + k))
            assert yl is not None and (ye is None or yl <= ye), (k, ye, yl)
        a.e("LF_ctxgo:")
    for st in range(NG - 1, NT):
        it(st)
    for i in (12, 13, 14, 15):
        stamp(a, i)
    a.e("s_endpgm")
    a.flush()
    a.st = WState()
    a.e("LF_touch:")
    DT = 10
    LT = 'h' in OPT
    first = 4
    quarters = []
    for qb in range(2):
        x = cap(p3.ctx_store, qb, SC)
        cut = [i for i, y in enumerate(x) if y.k == "vst"][1] + 1
        quarters += [x[:cut], x[cut:]]
    a.add(quarters[0])
    early = [NG - 7, NG - 5]
    a.e("s_mov_b32 s77, 0")
    for st in range(NT):
        a.add([WaitTag(lambda t, st=st: st == CTXFLAG and t == "ctx"), "s_barrier"])
        if st < 3:
            a.add(quarters[st + 1])
        if not LT:
            if st == CTXFLAG:
                break
            continue
        if st == 3:
            p5_ids(a)
            a.e(f"s_lshl_b32 s63, s{S_J}, 3")
            flag_addr(a, 63, 8, F_CTX)
            ltouch_setup(a, 2)
            for m in range(8, DT + 3):
                a.add(ltouch_w(m) + ltouch_a(m))
        if st < 3:
            continue
        if st in early:
            a.add(Need([v(V_PD)]))
            a.e(f"v_cmp_ne_u32 vcc, 1, v{V_PD}")
            a.e("s_cmp_lg_u32 s77, 0")
            a.e(f"s_cbranch_scc1 LF_te{st}")
            a.e(f"s_cbranch_vccnz LF_te{st}")
            a.flush()
            stt = a.st.copy()
            for m in range(NG, NG + 8):
                a.add(ltouch_a(m))
            a.e("s_mov_b32 s77, 1")
            a.flush()
            a.st = stt
            a.e(f"LF_te{st}:")
        if st == NG - 2:
            poll_check(a, V_PD, V_PA, SRD_F, 1)
            a.e("s_cmp_lg_u32 s77, 0")
            a.e(f"s_cbranch_scc1 LF_te{st}")
            a.flush()
            stt = a.st.copy()
            for m in range(NG + 2, NG + 8):
                a.add(ltouch_a(m))
            a.flush()
            a.st = stt
            a.e(f"LF_te{st}:")
        if st + 2 in early or st + 2 == NG - 2:
            a.e(poll_load(V_PD, V_PA, SRD_F))
        a.add(ltouch_w(st + DT))
        if st + DT < NG or st + DT >= NG + 8:
            a.add(ltouch_a(st + DT))
        if len(a.st.vm) > 40:
            a.flush()
            a.st.vm = a.st.vm[-20:]
    for i in (10, 11, 12, 13, 14, 15):
        stamp(a, i)
    a.e("s_endpgm")
    a.flush()
    a.st = WState()
    a.e("LF_comp:")
    a.add(g_reads(0, FR))
    for st in (2, 3):
        a.add(dma_w(st))
        a.add(dma_a(st))
    srd(a, SRD3, P_X, 0x200000)
    srd(a, SRD4, P_B2, 1024)
    a.add(Need([v(FR, 32)]))
    stamp(a, 10, 'T')
    a.flush()
    ns = 2 if (STAMP and 'T' in OPT) else 0
    a.add(gstage(0, True, 16 + ns))
    stamp(a, 11, 'T')
    a.e(f"s_add_u32 s60, s{S_XO}, 16384")
    for q in range(2):
        for mb in range(2):
            a.e(f"buffer_load_dwordx2 {v(XR+2*(2*q+mb),2)}, v{V_XA}, s[{SRD3}:{SRD3+3}], s{60 if q else S_XO} offen offset:{mb*32}")
    for mb in range(2):
        a.e(f"buffer_load_dwordx2 {v(BR2+2*mb,2)}, v{V_BB}, s[{SRD4}:{SRD4+3}], 0 offen offset:{mb*32}")
    a.add(gstage(1, vm0=14 + 2 * ns))
    a.add(gstage(2, vm0=6 + 2 * ns))
    stamp(a, 12, 'T')
    a.add(gstage(3))
    stamp(a, 13, 'T')
    a.add(gstage(4))
    a.add(gstage(5))
    stamp(a, 14, 'T')
    a.e("s_mov_b32 s75, 3")
    a.e("s_waitcnt vmcnt(0)")
    a.loop("LF_gloop", lambda: [gstage(4), gstage(5)],
           ["s_sub_u32 s75, s75, 1", "s_cmp_lg_u32 s75, 0", "s_cbranch_scc1 LF_gloop"])
    a.add(gstage(12))
    FA, FB = FR, FR + 32
    a.add(weave(g_mfmas(FA, False), [(i // 2, 0, x) for i, x in enumerate(g_reads(1, FB))]))
    a.add(g_mfmas(FB, False))
    stamp(a, 15, 'T')
    stamp(a, 10)
    gate_math(a)
    srd(a, SRD3, P_WS, 0x800000, WS_SP)
    srd(a, SRD4, P_OUT, 0x200000)
    a.e("s_barrier")
    a.add(c_reads(0, FA))
    a.add(Need([v(FA, 32)]))
    stamp(a, 11)
    a.add(cstage(NG, True))
    a.add(cstage(NG + 1))
    a.e("s_mov_b32 s75, 7")
    a.loop("LF_loop", lambda: [cstage(NG + 2), cstage(NG + 3)],
           ["s_sub_u32 s75, s75, 1", "s_cmp_lg_u32 s75, 0", "s_cbranch_scc1 LF_loop"])
    stamp(a, 12)
    a.e("s_waitcnt lgkmcnt(0)")
    a.e(f"s_cmp_eq_u32 s{S_W3}, s{S_J}")
    a.e("s_cbranch_scc1 LF_own")
    slot_addr(a)
    for cw in range(4):
        for q in range(2):
            d = FR + 4 * (2 * cw + q)
            for mb in range(2):
                b = SACC + 4 * ((2 * (cw >> 1) + q) * 4 + 2 * (cw & 1) + mb)
                a.e(f"v_cvt_pk_bf16_f32 v{d+2*mb}, v{b}, v{b+1}")
                a.e(f"v_cvt_pk_bf16_f32 v{d+2*mb+1}, v{b+2}, v{b+3}")
            a.e(f"buffer_store_dwordx4 {v(d,4)}, v{V_L16}, s[{SRD3}:{SRD3+3}], s{60 + (cw >> 1)} offen offset:{((cw&1)*2+q)*1024}{SC}")
    a.e("s_branch LF_sent")
    a.flush()
    a.st = WState()
    a.e("LF_own:")
    a.e(f"v_add_u32 v16, {LDS_OWN}, v{V_L16}")
    a.e("s_nop 7")
    for i in range(16):
        a.e(f"ds_write_b128 v16, {v(SACC+4*i,4)} offset:{i*1024}")
    a.e("s_waitcnt lgkmcnt(0)")
    a.flush()
    a.e("LF_sent:")
    PR = 96
    for k in range(1, 4):
        a.e(f"s_add_u32 s60, s{S_J}, {k}")
        a.e(f"s_and_b32 s60, s60, 3")
        a.e(f"s_lshl_b32 s61, s{S_TILE}, 2")
        a.e(f"s_add_u32 s60, s60, s61")
        a.e(f"s_lshl_b32 s60, s60, 2")
        a.e(f"s_add_u32 s60, s60, s{S_J}")
        a.e(f"s_lshl_b32 s60, s60, 2")
        a.e(f"s_add_u32 s60, s60, s{S_W3}")
        a.e(f"s_lshl_b32 s{64+k}, s60, 11")

    def fetch():
        for k in range(1, 4):
            for q in range(2):
                a.e(f"buffer_load_dwordx4 {v(PR+8*(k-1)+4*q,4)}, v{V_L16}, s[{SRD3}:{SRD3+3}], s{64+k} offen offset:{q*1024}{SC}")
    fetch()
    a.e(f"s_lshr_b32 s62, s{S_W3}, 1")
    a.e(f"s_lshl_b32 s62, s62, 13")
    a.e(f"s_and_b32 s63, s{S_W3}, 1")
    a.e(f"s_lshl_b32 s63, s63, 11")
    a.e(f"s_add_u32 s62, s62, s63")
    a.e(f"s_add_u32 s62, s62, {LDS_OWN}")
    a.e(f"v_add_u32 v18, s62, v{V_L16}")
    a.e(f"s_mov_b32 s{S_SPIN}, 0x10000")
    a.e("s_barrier")
    stamp(a, 13)
    S_ = 64
    for q in range(2):
        for mb in range(2):
            a.e(f"ds_read_b128 {v(S_+4*(2*q+mb),4)}, v18 offset:{q*4096+mb*1024}")
    a.flush()
    a.e("LF_xchk:")
    a.e("s_waitcnt vmcnt(0)")
    a.e(f"v_max3_u32 v16, v{PR}, v{PR+1}, v{PR+2}")
    a.e(f"v_max3_u32 v17, v{PR+3}, v{PR+4}, v{PR+5}")
    for i in range(6, 24, 4):
        a.e(f"v_max3_u32 v16, v16, v{PR+i}, v{PR+i+1}")
        if i + 2 < 24:
            a.e(f"v_max3_u32 v17, v17, v{PR+i+2}, v{PR+i+3}")
    a.e("v_max_u32 v16, v16, v17")
    a.e("v_cmp_eq_u32 vcc, -1, v16")
    a.e(f"s_sub_u32 s{S_SPIN}, s{S_SPIN}, 1")
    a.e("s_cbranch_scc1 LF_xok")
    a.e("s_cbranch_vccz LF_xok")
    fetch()
    a.e("s_branch LF_xchk")
    a.flush()
    a.st.vm = []
    a.e("LF_xok:")
    stamp(a, 14)
    for k in range(3):
        for i in range(16):
            src = PR + 8 * k + i // 2
            t = 80 + i
            a.e(f"v_lshlrev_b32 v{t}, 16, v{src}" if i % 2 == 0 else f"v_and_b32 v{t}, 0xffff0000, v{src}")
        for i in range(16):
            a.e(f"v_add_f32 v{S_+i}, v{S_+i}, v{80+i}")
    a.e(f"s_add_u32 s60, s{S_XO}, 16384")
    for b in range(4):
        for i in range(4):
            a.e(f"v_fma_f32 v{S_+4*b+i}, v{S_+4*b+i}, v{GACC+4*b+i}, v{GACC+32+4*b+i}")
        a.e(f"v_cvt_pk_bf16_f32 v{XR+2*b}, v{S_+4*b}, v{S_+4*b+1}")
        a.e(f"v_cvt_pk_bf16_f32 v{XR+2*b+1}, v{S_+4*b+2}, v{S_+4*b+3}")
        a.e(f"buffer_store_dwordx2 {v(XR+2*b,2)}, v{V_XA}, s[{SRD4}:{SRD4+3}], s{60 if b >= 2 else S_XO} offen offset:{(b&1)*32}")
    if STAMP:
        a.e("s_waitcnt vmcnt(0)")
    stamp(a, 15)


def p2_main(a):
    if 'E' in OPT:
        a.add([WaitTag(lambda t: t == ("p2", 0)), "s_barrier"])
    for d in range(12):
        a.add(p2_read(0, 0, d))
    stamp(a, 4)
    for st in range(8):
        ex = xload(2 * st + 3) if st < 7 else []
        if True:
            ex += [kv_deferred(i) for i in range(12) if KVST[i] == st]
        a.add(p2_part(2 * st, (st, 1), spread(ex, 1, 22) if ex else []))
        if st < 7:
            a.add([WaitTag(lambda t, st=st: t == ("p2", st + 1) or (st == KVFLAG and t == "kvst")), "s_barrier"])
        if st == KVFLAG:
            a.add(set_flag(F_KV, 30, 0))
        ex = (p2_dma(2) if st == 0 else []) + (p2_dma(st + 3) if st <= 4 else []) + (xload(2 * st + 4) if st < 6 else [])
        if st == 7:
            a.add(Need([v(p3.BR, 32)]))
            ex = cap(p3.p3_setup_once, 30) + [f"v_and_b32 v29, 7, v{V_LANE}", "v_lshlrev_b32 v29, 15, v29", "s_and_b32 s74, s2, 31",
                                              "s_lshl_b32 s74, s74, 10", f"s_cmp_lt_u32 s{S_WAVE}, 4", "s_cselect_b32 s74, s74, 0x40000",
                                              poll_load(28, 29, SRD_F, "s74")] + cap(p3.first_dma_regs)
            a.add(p2_part(2 * st + 1, None, spread(ex, 0, 12)))
        else:
            a.add(p2_part(2 * st + 1, (st + 1, 0), spread(ex, 1, 22) if ex else []))
        stamp(a, 8 + st, 'U')
    a.e(f"s_cmp_ge_u32 s{S_WAVE}, 4")
    a.e("s_cbranch_scc1 LF_nokv")
    a.flush()
    stt = a.st.copy()
    poll_check(a, 28, 29, SRD_F, 1, "s74")
    a.add(p3.kv_dma(30))
    a.add(p3.kv_dma(30))
    a.flush()
    a.st = stt
    a.e("LF_nokv:")


def kernel_f(a, label):
    p3.KVSC = SC
    p3.TODO_HOOK = h_flag_hook
    p3.STB = 4
    p3.BVM = (2 if 'z' not in OPT else 0) + (4 if STAMP and 'M' not in OPT else 0)
    p3.stamp = stamp
    p3.LDS_H = LDS_H
    a.st = WState()
    kernel_head(a, label, 256, 0 if 'q' in OPT else CODE_LINES, wait=False)
    a.e(f"v_lshlrev_b32 v{V_L16}, 4, v{V_LANE}")
    a.e(f"s_lshl_b32 s{S_ROW}, s2, 3")
    a.e(f"s_lshl_b32 s61, s{S_W3}, 1")
    a.e(f"s_add_u32 s{S_ROW}, s{S_ROW}, s61")
    a.e(f"s_lshl_b32 s{S_ROW}, s{S_ROW}, 10")
    if 'u' in OPT:
        start_touch_setup(a)
    a.e(f"s_cmp_ge_u32 s{S_WAVE}, 4")
    a.e(f"s_cbranch_scc0 LF0_K")
    a.flush()
    st0 = a.st.copy()

    def srds_touch():
        srd(a, SRD1, P_CKV, 2097152)
        srd(a, SRD_WK, P_WUK, 0x400000)
        srd(a, SRD_WV, P_WUV, 0x400000)
        if 'u' in OPT:
            start_touch(a)
    a.e("s_waitcnt lgkmcnt(0)")
    ln_issue(a)
    srds_touch()
    a.e("s_branch LF0_V")
    a.flush()
    stv = a.st.copy()
    pro = {}
    a.st = st0
    a.e(f"LF0_K:")
    k_dma_setup(a)
    a.e("s_waitcnt lgkmcnt(0)")
    srds_touch()
    for st in range(2):
        g, adv = k_dma(st)
        for m0, ld in g:
            a.add([m0, ld])
        a.add(adv)
    a.e("s_branch LF1_K")
    a.flush()
    pro[0] = a.st.copy()
    a.st = stv
    a.e(f"LF0_V:")
    touch_setup(a)
    order = (1, 0)
    ends = []
    for isv in order:
        if not isv:
            a.st = pro[0]
            a.e("LF1_K:")
        stamp_init(a, 0)
        p3.q0_setup2(a)
        setup_reads(a)
        srd(a, SRD3, P_WS, WS_CTX)
        srd(a, SRD_F, P_WS, 0x40000, WS_FLAG)
        if isv:
            ln_compute(a)
            stamp(a, 11, 'V')
            if 'a' not in OPT:
                a.add(touch_p1(2))
            a.e(f"v_min_u32 v20, 7, v{V_LANE}")
            a.e("v_lshlrev_b32 v20, 7, v20")
            a.e("v_mov_b32 v21, 0")
            a.e("s_lshl_b32 s62, s2, 10")
            a.e(f"s_cmp_eq_u32 s{S_WAVE}, 4")
            a.e("s_cselect_b32 s62, s62, 0x40000")
            a.e(f"buffer_store_dword v21, v20, s[{SRD_F}:{SRD_F+3}], s62 offen sc1")
        stamp(a, 0)
        stamp(a, 10, 'V')
        a.add([WaitTag(lambda t: t == ("p1", 0), lg0=True), "s_barrier"])
        stamp(a, 1)
        a.add(p1.p1_reads(0, 0, p1.F0))

        def tl(st):
            x = []
            if isv and 'a' not in OPT:
                if 'r' in OPT:
                    for m in {0: (3, 4), 1: (5, 6), 2: (7,)}.get(st, ()):
                        x += touch_p1(m)
                elif st + 3 < 8:
                    x += touch_p1(st + 3)
            if isv and 'w' in OPT:
                if st in (1, 2):
                    x += cap(late_touch, st - 1)
            elif isv and 'y' in OPT:
                if st in (2, 3, 4, 5):
                    x += cap(late_touch, -(st - 2) - 1)
            elif isv and st in (4, 5):
                x += cap(late_touch, -(st - 4) - 1)
            if isv and 'z' in OPT and st in (3, 4):
                x += cap(late_touch, st - 1)
            return spread(x, 10, 31) if x else []
        for st in range(6):
            fl1, fl2 = tl(st), []
            if st == 0:
                x = cap(ln_store)
                fl1 = fl1 + spread(x[:-1], 2, 8, 8) + [(14, 8, x[-1])]
            if st == 2 and isv:
                t = Asm()
                srd(t, 84, P_DBG, 256)
                t.e(f"s_cmp_eq_u32 s{S_WAVE}, 4")
                t.e("s_cselect_b32 s86, s86, 0")
                t.e("s_and_b32 s60, s2, 15")
                t.e("s_lshl_b32 s60, s60, 2")
                t.e("v_mov_b32 v22, 1")
                t.e("s_mov_b64 exec, 1")
                t.e(f"buffer_atomic_add v22, off, s[84:87], s60 sc1")
                t.e("s_mov_b64 exec, -1")
                fl2 = [(0, 7, t.cur)] + fl2
            if st == 5 and isv:
                fl1 = fl1 + [(4, 7, [f"v_and_b32 v29, 15, v{V_LANE}", "v_lshlrev_b32 v29, 2, v29", poll_load(28, 29, 84)])]
            p1_stage(a, isv, st, fl1=fl1, fl2=fl2, wait="xn" if st == 2 else None)
            stamp(a, 8 + st, True)
        def init_check():
            if isv:
                a.add(Need([v(28)]))
                a.e(f"s_cmp_lg_u32 s{S_WAVE}, 4")
                a.e("s_cbranch_scc1 LF_noinitchk")
                poll_check(a, 28, 29, 84, 16)
                a.flush()
                a.e("LF_noinitchk:")
        f1 = spread(cap(p3.p2_setup), 0 if isv else 18, 30)
        if isv and 'w' not in OPT and 'y' not in OPT:
            f1 += [(31, 8, cap(late_touch, -3))]
        p1_stage(a, isv, 6, fl1=f1, pre_bar=init_check, fl2=spread((xcc_load() if 'A' not in OPT else []) + p2_dma(0) + p2_dma(1), 0, 31))
        stamp(a, 14, True)
        x = cap(bias_load)
        y = xload(0) + xload(1) + xload(2)
        f1 = []
        if isv:
            f1 = (cap(xn_touch) if 'c' not in OPT else []) + (cap(late_touch, -4) if 'w' not in OPT and 'y' not in OPT else [])
            f1 = spread(f1, 2, 30) if f1 else []
        p1_stage(a, isv, 7, fl1=f1, wait=("p2", 0) if 'E' not in OPT else None,
                 fl2=([(0, 2, xcc_check())] if 'A' not in OPT else []) + spread(cap(xn_setup), 0, 1, 3) + spread(y, 2, 22, 4) + spread(x, 23, 31, 4) + spread(cap(p2_setup_reads), 1, 31))
        stamp(a, 15, True)
        stamp(a, 2)
        p1_pack(a, isv)
        if isv == order[0]:
            a.e(f"s_branch LF1_done")
        a.flush()
        a.st.vm = [x for x in a.st.vm if x[0] or x[1] is not None]
        ends.append(a.st.key())
    assert ends[0] == ends[1], ends
    a.e("LF1_done:")
    bias_apply(a)
    stamp(a, 3)
    p2_main(a)
    stamp(a, 5)
    a.e(f"v_mov_b32 v{p3.V_KD}, v30")
    p3.p2_epilogue(a, SRD3, WS_H, SC)
    p3.p3_consts(a)
    a.e(f"s_cmp_lt_u32 s{S_WAVE}, 4")
    a.e("s_cbranch_scc1 LF_nowarm")
    a.flush()
    stt = a.st.copy()
    if 'z' not in OPT:
        late_touch(a, 2)
        late_touch(a, 3)
    a.flush()
    a.st = stt
    a.e("LF_nowarm:")
    if 'L' in OPT:
        a.e(f"s_cmp_eq_u32 s{S_WAVE}, 0")
        a.e(f"s_cselect_b32 s{p3.S_TODO}, 1, 0")
    else:
        import p45 as Q
        p3.TODO_HOOK = Q.todo_hook
        a.e(f"s_mov_b32 s{p3.S_TODO}, 1")
    stamp(a, 6)
    if 'L' in OPT:
        p3.p3_main(a, "LF3", SC, last_hook=a_last_hook, last_wait=4 + NTOUCH, b_hook=b_pre_join, epi_hook=arm_slot)
        stamp(a, 9)
        p45(a)
    else:
        import p45 as Q
        p3.p3_main(a, "LF3", SC, last_hook=Q.a_last_hook, last_wait=None, b_hook=Q.b_pre_join, epi_hook=Q.a_epilogue_hook,
                   iter_hook=Q.a_iter_hook, pre_epi_hook=Q.a_pre_epilogue_hook, wait_hook=Q.a_wait_hook, fin_hook=Q.a_fin_hook,
                   join_hook=Q.a_join_wait)
        stamp(a, 9)
        Q.main(a)
    kernel_tail(a, label)
    return label
```

```python
from common import *
import os

V_LANE, V_L16 = 1, 14
V_QD, V_HD = 2, 3
V_QA = 4
V_XO = 12
V_HA = 16
BR = 32
AF = 64
QACC, HACC = 160, 224
S_Q0 = 76
S_QSO = 64
S_HSO = 66
S_QM0, S_HM0 = 67, 68
S_16K = 69
LDS_Q, LDS_H = 0, 65536
QSCALE = 0.08838834764831845 * 1.4426950408889634


def fhex(x):
    import struct
    return hex(struct.unpack("<I", struct.pack("<f", x))[0])


def q0_setup(a):
    a.e(f"s_sub_u32 s60, 15, s{S_P}")
    a.e(f"s_cmp_lt_u32 s{S_WAVE}, 4")
    a.e(f"s_cselect_b32 s60, s{S_P}, s60")
    a.e(f"s_lshl_b32 s60, s60, 2")
    a.e(f"s_add_u32 s60, s60, s{S_W3}")
    a.e(f"s_lshl_b32 s{S_Q0}, s60, 5")


def q0_setup2(a):
    a.e(f"s_sub_u32 s62, 15, s{S_P}")
    a.e(f"s_cmp_lt_u32 s{S_WAVE}, 4")
    a.e(f"s_cselect_b32 s62, s{S_P}, s62")
    a.e(f"s_lshl_b32 s62, s62, 2")
    a.e(f"s_add_u32 s62, s62, s{S_W3}")
    a.e(f"s_lshl_b32 s{S_Q0}, s62, 5")


def p2_setup(a):
    L = V_LANE
    srd(a, SRD0, P_WQ, 0x400000)
    srd(a, SRD1, P_W1, 512 * 1792 * 2)
    a.e(f"s_cmp_lt_u32 s{S_H}, 28")
    a.e(f"s_cselect_b32 s{SRD1+2}, s{SRD1+2}, 0")
    a.e(f"s_and_b32 s62, s{S_WAVE}, 1")
    a.e(f"s_lshl_b32 s63, s62, 3")
    a.e(f"v_lshrrev_b32 v21, 4, v{L}")
    a.e(f"v_lshlrev_b32 v22, 1, v21")
    a.e(f"v_and_b32 v20, 15, v{L}")
    a.e(f"v_xor_b32 v20, v20, v22")
    a.e(f"v_xor_b32 v20, s63, v20")
    a.e(f"v_lshlrev_b32 v20, 4, v20")
    a.e(f"v_lshl_add_u32 v{V_QD}, v21, 13, v20")
    a.e(f"s_lshl_b32 s63, s{S_H}, 8")
    a.e(f"v_add_u32 v{V_QD}, s63, v{V_QD}")
    a.e(f"s_lshr_b32 s63, s{S_WAVE}, 1")
    a.e(f"s_lshl_b32 s63, s63, 2")
    a.e(f"s_lshl_b32 s74, s62, 1")
    a.e(f"s_add_u32 s63, s63, s74")
    a.e(f"s_lshl_b32 s{S_QSO}, s63, 15")
    a.e(f"s_add_u32 s{S_QSO+1}, s{S_QSO}, 32768")
    a.e(f"s_lshl_b32 s{S_QM0}, s63, 10")
    a.e(f"s_add_u32 s{S_QM0}, s{S_QM0}, {LDS_Q}")
    a.e(f"s_lshl_b32 s63, s62, 2")
    a.e(f"v_and_b32 v22, 2, v22")
    a.e(f"v_and_b32 v20, 7, v{L}")
    a.e(f"v_xor_b32 v20, v20, v22")
    a.e(f"v_xor_b32 v20, s63, v20")
    a.e(f"v_lshlrev_b32 v20, 4, v20")
    a.e(f"v_lshrrev_b32 v21, 3, v{L}")
    a.e(f"v_mul_u32_u24 v21, 3584, v21")
    a.e(f"v_add_u32 v{V_HD}, v21, v20")
    a.e(f"s_lshl_b32 s63, s{S_H}, 7")
    a.e(f"v_add_u32 v{V_HD}, s63, v{V_HD}")
    a.e(f"s_mul_i32 s{S_HSO}, s{S_WAVE}, {8*3584}")
    a.e(f"s_lshl_b32 s{S_HM0}, s{S_WAVE}, 10")
    a.e(f"s_add_u32 s{S_HM0}, s{S_HM0}, {LDS_H}")


def p2_setup_reads(a):
    L = V_LANE
    a.e(f"v_and_b32 v20, 15, v{L}")
    a.e(f"v_lshrrev_b32 v21, 4, v{L}")
    a.e(f"v_lshrrev_b32 v22, 2, v20")
    a.e(f"v_and_b32 v23, 1, v21")
    a.e(f"v_lshl_add_u32 v24, v23, 2, v22")
    a.e(f"v_lshrrev_b32 v25, 1, v22")
    a.e(f"v_lshl_add_u32 v25, v23, 1, v25")
    a.e(f"v_lshl_add_u32 v22, v21, 3, v22")
    a.e(f"v_and_b32 v26, 3, v{L}")
    a.e(f"v_lshlrev_b32 v26, 3, v26")
    a.e(f"v_lshl_add_u32 v27, v22, 8, v26")
    a.e(f"v_lshl_add_u32 v28, v22, 7, v26")
    if LDS_Q:
        a.e(f"v_add_u32 v27, {LDS_Q}, v27")
    a.e(f"v_add_u32 v28, {LDS_H}, v28")
    for d in range(8):
        a.e(f"v_xor_b32 v20, {d}, v24")
        a.e(f"v_lshl_add_u32 v{V_QA+d}, v20, 5, v27")
    for f in range(4):
        a.e(f"v_xor_b32 v20, {f}, v25")
        a.e(f"v_lshl_add_u32 v{V_HA+f}, v20, 5, v28")
    a.e(f"s_lshl_b32 s63, s{S_Q0}, 10")
    a.e(f"v_add_u32 v{V_XO}, s63, v{V_L16}")
    a.e(f"s_mov_b32 s{S_16K}, 16384")


def p2_dma(stage):
    sl = stage & 3
    g = []
    for j in range(2):
        g.append([f"s_add_u32 m0, s{S_QM0}, {sl*16384 + j*1024}",
                  I(f"buffer_load_dwordx4 v{V_QD}, s[{SRD0}:{SRD0+3}], s{S_QSO+j} offen lds", tag=("p2", stage))])
    g.append([f"s_add_u32 m0, s{S_HM0}, {sl*8192}",
              I(f"buffer_load_dwordx4 v{V_HD}, s[{SRD1}:{SRD1+3}], s{S_HSO} offen lds", tag=("p2", stage))])
    adv = [f"v_add_u32 v{V_QD}, 0x80000, v{V_QD}", f"v_add_u32 v{V_HD}, {64*3584}, v{V_HD}"]
    return g, adv


def p2_xload(stage, xsrd, sc=""):
    r = []
    for ks in range(2):
        for qb in range(2):
            k = 2 * stage + ks
            dst = BR + 4 * ((k & 3) * 2 + qb)
            so = f"s{S_16K}" if qb else "0"
            r.append(f"buffer_load_dwordx4 {v(dst,4)}, v{V_XO}, s[{xsrd}:{xsrd+3}], {so} offen offset:{ks*1024}{sc}")
    r.append(f"v_add_u32 v{V_XO}, 2048, v{V_XO}")
    return r


def p2_reads(stage, ks, fb):
    sl = stage & 3
    r = []
    for d in range(8):
        for e in range(2):
            r.append(f"ds_read_b64_tr_b16 {v(fb+4*d+2*e,2)}, v{V_QA+d} offset:{sl*16384 + ks*8192 + e*1024}")
    for f in range(4):
        for e in range(2):
            r.append(f"ds_read_b64_tr_b16 {v(fb+32+4*f+2*e,2)}, v{V_HA+f} offset:{sl*8192 + ks*4096 + e*512}")
    return r


def p2_mfmas(k, fb):
    m = []
    for d in range(12):
        for qb in ((0, 1) if d % 2 == 0 else (1, 0)):
            acc = QACC + 4 * (d * 2 + qb)
            c = None if (k == 0 and d < 8) else acc
            m.append(mfma(acc, fb + 4 * d, BR + 4 * ((k & 3) * 2 + qb), c))
    return m


def p2_stage(st, xsrd, sc=""):
    FA, FB = AF, AF + 48
    k = 2 * st
    out = [Need([v(FA, 48), v(BR + 8 * (k & 3), 8)])]
    out += weave(p2_mfmas(k, FA), [(max(i - 1, 0), 0, x) for i, x in enumerate(p2_reads(st, 1, FB))])
    if st < 7:
        out += [WaitTag(lambda t, st=st: t == ("p2", st + 1), lg0=True), "s_barrier"]
    out += [Need([v(FB, 48), v(BR + 8 * ((k + 1) & 3), 8)])]
    fl = []
    if st < 7:
        fl += [(max(i - 1, 0), 0, x) for i, x in enumerate(p2_reads(st + 1, 0, FA))]
    if st + 4 < 8:
        g, adv = p2_dma(st + 4)
        for j, (m0, ld) in enumerate(g):
            fl.append((4 * j + 1, 2, m0))
            fl.append((4 * j + 2, 1, ld))
        fl.append((14, 2, adv[0]))
        fl.append((15, 2, adv[1]))
    out += weave(p2_mfmas(k + 1, FB), fl)
    if st + 2 < 8:
        out += p2_xload(st + 2, xsrd, sc)
    return out


def p2_bias(a):
    L = V_LANE
    srd(a, SRD2, P_B1, 1792 * 2)
    a.e(f"v_lshrrev_b32 v20, 4, v{L}")
    a.e(f"v_lshlrev_b32 v20, 3, v20")
    a.e(f"s_lshl_b32 s63, s{S_H}, 7")
    for f in range(4):
        a.e(f"buffer_load_dwordx2 {v(22+2*f,2)}, v20, s[{SRD2}:{SRD2+3}], s63 offen offset:{f*32}")


def p2_bias_apply(a):
    for f in range(4):
        for qb in range(2):
            b = HACC + 4 * (f * 2 + qb)
            a.e(f"v_lshlrev_b32 v{b}, 16, v{22+2*f}")
            a.e(f"v_and_b32 v{b+1}, 0xffff0000, v{22+2*f}")
            a.e(f"v_lshlrev_b32 v{b+2}, 16, v{23+2*f}")
            a.e(f"v_and_b32 v{b+3}, 0xffff0000, v{23+2*f}")


QF = 32


def p2_epilogue(a, hsrd, hoff, sc=""):
    a.e(f"s_mov_b32 s63, {fhex(QSCALE)}")
    a.e(f"s_mov_b32 s62, s63")
    for qb in range(2):
        for t in range(4):
            for b in range(2):
                r = QACC + 4 * ((2 * t + b) * 2 + qb)
                for i in (0, 2):
                    a.e(f"v_pk_mul_f32 {v(r+i,2)}, {v(r+i,2)}, s[62:63]")
                a.e(f"v_cvt_pk_bf16_f32 v{QF+16*qb+4*t+2*b}, v{r}, v{r+1}")
                a.e(f"v_cvt_pk_bf16_f32 v{QF+16*qb+4*t+2*b+1}, v{r+2}, v{r+3}")
    a.e(f"s_cmp_ge_u32 s{S_H}, 28")
    a.e(f"s_cbranch_scc1 L_p2_noh")
    a.e(f"s_lshr_b32 s60, s{S_Q0}, 4")
    a.e(f"s_mul_i32 s60, s60, {56*1024}")
    a.e(f"s_lshl_b32 s61, s{S_H}, 11")
    a.e(f"s_add_u32 s60, s60, s61")
    a.e(f"s_add_u32 s60, s60, {hex(hoff)}")
    for qb in range(2):
        for t in range(2):
            d = AF + 4 * (qb * 2 + t)
            for b in range(2):
                r = HACC + 4 * ((2 * t + b) * 2 + qb)
                for i in range(4):
                    a.e(f"v_max_f32 v{r+i}, 0, v{r+i}")
                for i in (0, 2):
                    a.e(f"v_pk_mul_f32 {v(r+i,2)}, {v(r+i,2)}, {v(r+i,2)}")
                a.e(f"v_cvt_pk_bf16_f32 v{d+2*b}, v{r}, v{r+1}")
                a.e(f"v_cvt_pk_bf16_f32 v{d+2*b+1}, v{r+2}, v{r+3}")
            a.e(f"buffer_store_dwordx4 {v(d,4)}, v{V_L16}, s[{hsrd}:{hsrd+3}], s60 offen offset:{t*1024}{sc}", tag="h")
        if qb == 0:
            a.e(f"s_add_u32 s60, s60, {56*1024}")
    a.e("s_nop 1")
    a.flush()
    a.e("L_p2_noh:")


O_, L_, S_, P_, M_, ONES = 64, 128, 136, 152, 168, 176
KA, KB, VF = 180, 196, 212
V_KA, V_VA, V_KD = 2, 3, 4
V_MX = 5
V_NINF = 7
T0 = 16
S_T, S_CNT, S_KM, S_DM, S_DX, S_TO, S_MODE, S_REM, S_UD = 64, 65, 66, 67, 68, 69, 70, 71, 72
S_MK = 80
LDS_FLAG = 131072
SRD_KV, SRD_CTX = SRD4, SRD5
KVSC = ""
STB = 0
BVM = 0
S_TODO, S_EPI = 73, 77
TODO_HOOK = None


def sblk(b, qb):
    return S_ + 4 * (b * 2 + qb)


CH = [(0, 0), (0, 1), (1, 0), (1, 1)]


def qk(ch, zero):
    b, qb = ch
    kf = KA if b == 0 else KB
    return [mfma(sblk(b, qb), kf + 4 * ks, QF + 16 * qb + 4 * ks,
                 (None if zero else M_ + 4 * qb) if ks == 0 else sblk(b, qb)) for ks in range(4)]


def pv(par):
    m = [mfma(L_ + 4 * qb, ONES, P_ + 8 * par + 4 * qb, L_ + 4 * qb) for qb in range(2)]
    for d in range(8):
        for qb in ((0, 1) if d % 2 == 0 else (1, 0)):
            o = O_ + 4 * (d * 2 + qb)
            m.append(mfma(o, VF + 4 * d, P_ + 8 * par + 4 * qb, o))
    return m


def kread(ul, b, ks):
    return f"ds_read_b128 {v((KA if b == 0 else KB)+4*ks,4)}, v{V_KA} offset:{(ul*8+b*4+ks)*1024}"


def vread(ul, d):
    return f"ds_read_b128 {v(VF+4*d,4)}, v{V_VA} offset:{16384+((2*ul+(d&1))*4+(d>>1))*1024}"


def exp_(ch, i):
    r = sblk(*ch) + i
    return f"v_exp_f32 v{r}, v{r}"


def cvt_(ch, half, par):
    b, qb = ch
    r = sblk(b, qb) + 2 * half
    return f"v_cvt_pk_bf16_f32 v{P_+8*par+4*qb+2*b+half}, v{r}, v{r+1}"


def carry(par):
    return [exp_(CH[3], 1), cvt_(CH[3], 0, par), exp_(CH[3], 2), exp_(CH[3], 3), cvt_(CH[3], 1, par)]


def kv_dma(V_KD=V_KD):
    g = []
    for half in range(2):
        g.append(f"s_mov_b32 m0, s{S_DM}" if half == 0 else f"s_add_u32 m0, s{S_DM}, 4096")
        for j in range(4):
            g.append(I(f"buffer_load_dwordx4 v{V_KD}, s[{SRD_KV}:{SRD_KV+3}], s{S_TO} offen offset:{j*1024}{KVSC} lds", tag="kv"))
        g.append(f"s_add_u32 s{S_TO}, s{S_TO}, {4096 if half == 0 else 32768-4096}")
    g.append(f"s_xor_b32 s{S_DM}, s{S_DM}, s{S_DX}")
    g.append(f"s_xor_b32 s{S_DX}, s{S_DX}, 0x18000")
    return g


def body(par, isA, diag=False, pfx="", cnt=True):
    chains = [c for c in CH if not (diag and c == (1, 0))]
    prim = []
    for c in chains:
        prim += qk(c, False)
    nq = len(prim)
    prim += pv(1 - par)
    n = len(prim)
    sh = nq - 16
    fl = []
    cy = carry(1 - par)
    fl += [(1, 1, cy[0]), (2, 2, cy[1]), (3, 1, cy[2]), (5, 1, cy[3]), (6, 2, cy[4])]
    for d in range(8):
        fl += [(2 * d if not diag else d, 0, vread(1 - par, d))]
    fl += [(4, 9, Need([v(KB, 16)]))]
    fl += [(16 + sh, 7, Need([v(VF, 24)])), (24 + sh, 9, Need([v(VF + 24, 8)]))]
    if not diag:
        pos = {CH[0]: [7, 9, 11, 13], CH[1]: [15, 17, 19, 21], CH[2]: [23, 25, 27, 29], CH[3]: [31]}
        for c in CH:
            for i, p in enumerate(pos[c]):
                fl.append((p, 1, exp_(c, i)))
            if c != CH[3]:
                fl.append((pos[c][1] + 1, 2, cvt_(c, 0, par)))
                fl.append((pos[c][3] + 1, 2, cvt_(c, 1, par)))
    else:
        pos = {CH[0]: [8, 9, 11, 13], CH[1]: [15, 17, 19, 21], CH[3]: [27]}
        for c in chains:
            if c[0] == c[1]:
                for i in range(4):
                    r = sblk(*c) + i
                    fl.append((pos[c][0] - 1, 5 + i, f"v_cndmask_b32 v{r}, v{r}, v{V_NINF}, s[{S_MK+2*i}:{S_MK+2*i+1}]"))
            for i, p in enumerate(pos[c]):
                fl.append((p, 1, exp_(c, i)))
            if c != CH[3]:
                fl.append((pos[c][1] + 1, 2, cvt_(c, 0, par)))
                fl.append((pos[c][3] + 1, 2, cvt_(c, 1, par)))
        fl.append((23, 2, f"v_mov_b32 v{P_+8*par+2}, 0"))
        fl.append((24, 2, f"v_mov_b32 v{P_+8*par+3}, 0"))
    if par == 1:
        bar = []
        if isA:
            bar += ["s_waitcnt vmcnt(8)", "s_barrier"]
            if TODO_HOOK and not diag:
                bar += [f"s_cmp_lg_u32 s{S_TODO}, 0", f"s_cbranch_scc1 {pfx}_todo", f"{pfx}_todo_ret:"]
        elif not diag:
            bar += [f"s_waitcnt vmcnt({BVM})", "s_barrier"]
        else:
            bar += [f"s_waitcnt vmcnt({BVM})", f"s_cmp_eq_u32 s{S_W3}, 3", f"s_cbranch_scc1 {pfx}_nobar", "s_barrier", f"{pfx}_nobar:"]
        fl.append((16 + sh, 8, bar))
        if not diag:
            fl.append((8, 3, f"v_xor_b32 v{V_KA}, s{S_KM}, v{V_KA}"))
            fl.append((12, 3, f"s_xor_b32 s{S_KM}, s{S_KM}, 0x18000"))
        if isA:
            g = kv_dma()
            for i, x in enumerate(g):
                fl.append((min(17 + sh + (i * 11) // len(g), n - 1), 4, x))
    else:
        fl.append((n - 2, 3, f"v_mov_b32 v{V_VA}, v{V_KA}"))
    if not diag:
        nl = 1 - par
        for i in range(8):
            fl.append((18 + 2 * i, 0, kread(nl, i // 4, i % 4)))
        fl.append((28, 9, f"s_sub_u32 s{S_CNT}, s{S_CNT}, 1"))
        fl.append((33, 1, Need([v(KA, 16)])))
    return weave(prim, fl)


def drain(par):
    out = []
    out += [vread(par, d) for d in range(8)]
    out += carry(par)
    out += pv(par)
    return out


def xmax(a, r, t):
    a.e(f"v_mov_b32 v{t}, v{r}")
    a.e(f"v_permlane16_swap_b32 v{r}, v{t}")
    a.e(f"v_max_f32 v{r}, v{r}, v{t}")
    a.e(f"v_mov_b32 v{t}, v{r}")
    a.e(f"v_permlane32_swap_b32 v{r}, v{t}")
    a.e(f"v_max_f32 v{r}, v{r}, v{t}")


def diag_mask(a):
    for c in (CH[0], CH[3]):
        for i in range(4):
            r = sblk(*c) + i
            a.e(f"v_cndmask_b32 v{r}, v{r}, v{V_NINF}, s[{S_MK+2*i}:{S_MK+2*i+1}]")
    for i in range(4):
        a.e(f"v_mov_b32 v{sblk(1,0)+i}, v{V_NINF}")


def p3_setup_once(a, V_KD=V_KD):
    L = V_LANE
    a.e(f"s_sub_u32 s{S_T}, 16, s{S_P}")
    a.e(f"s_lshl_b32 s{S_T}, s{S_T}, 1")
    a.e(f"s_lshl_b32 s60, s{S_H}, 20")
    a.e(f"s_add_u32 s60, s60, {hex(WS_KV)}")
    a.e(f"s_add_u32 s{SRD_KV}, s{P_WS}, s60")
    a.e(f"s_addc_u32 s{SRD_KV+1}, s{P_WS+1}, 0")
    a.e(f"s_lshl_b32 s{SRD_KV+2}, s{S_T}, 15")
    a.e(f"s_mov_b32 s{SRD_KV+3}, 0x20000")
    srd(a, SRD_CTX, P_WS, 0x1000000, WS_CTX)
    a.e(f"s_lshr_b32 s{S_UD}, s{S_Q0}, 5")
    a.e(f"s_mov_b32 s{S_MODE}, 0")
    a.e(f"s_lshl_b32 s60, s{S_W3}, 13")
    a.e(f"v_add_u32 v{V_KD}, s60, v{V_L16}")


def first_dma_regs(a):
    a.e(f"s_lshl_b32 s{S_DM}, s{S_W3}, 13")
    a.e(f"s_add_u32 s{S_DM}, s{S_DM}, 0x8000")
    a.e(f"s_mov_b32 s{S_DX}, 0x10000")
    a.e(f"s_mov_b32 s{S_TO}, 0")


def p3_first_dma(a, pfx):
    first_dma_regs(a)
    a.e(f"s_cmp_ge_u32 s{S_WAVE}, 4")
    a.e(f"s_cbranch_scc1 {pfx}_nodma")
    a.add(kv_dma())
    a.add(kv_dma())
    a.flush()
    a.e(f"{pfx}_nodma:")


def p3_consts(a):
    L = V_LANE
    a.e(f"v_mov_b32 v{V_NINF}, 0xff800000")
    a.e(f"v_and_b32 v{T0}, 15, v{L}")
    a.e(f"v_lshrrev_b32 v{T0+1}, 4, v{L}")
    a.e(f"v_lshlrev_b32 v{T0+1}, 2, v{T0+1}")
    for i in range(4):
        a.e(f"v_add_u32 v{T0+2}, {i}, v{T0+1}")
        a.e(f"v_cmp_gt_u32 s[{S_MK+2*i}:{S_MK+2*i+1}], v{T0+2}, v{T0}")
    a.e(f"v_and_b32 v{T0}, 3, v{L}")
    a.e(f"v_cmp_eq_u32 vcc, 0, v{T0}")
    a.e(f"v_mov_b32 v{T0+1}, 0x3f803f80")
    a.e(f"v_cndmask_b32 v{ONES}, 0, v{T0+1}, vcc")
    for i in range(1, 4):
        a.e(f"v_mov_b32 v{ONES+i}, v{ONES}")


def ovf_check(a):
    a.e(f"v_add_f32 v{T0+1}, v{L_}, v{L_+4}")
    a.e(f"v_mov_b32 v{T0+2}, 0x5f800000")
    a.e(f"v_cmp_nlt_f32 vcc, v{T0+1}, v{T0+2}")
    a.e(f"v_mov_b32 v{T0+3}, {LDS_FLAG}")
    a.e(f"v_mov_b32 v{T0+4}, 1")
    a.e(f"s_and_saveexec_b64 s[62:63], vcc")
    a.e(f"ds_write_b32 v{T0+3}, v{T0+4}")
    a.e(f"s_mov_b64 exec, s[62:63]")


def ctx_store(a, qb, sc=""):
    a.e(f"v_rcp_f32 v{T0}, v{L_+4*qb}")
    a.e(f"v_rcp_f32 v{T0+1}, v{L_+4*qb}")
    a.e(f"s_lshl_b32 s60, s{S_Q0}, 13")
    a.e(f"s_lshl_b32 s61, s{S_H}, 12")
    a.e(f"s_add_u32 s60, s60, s61")
    if qb:
        a.e(f"s_add_u32 s60, s60, {128*1024}")
    for t in range(4):
        d = KA + 4 * (qb * 4 + t)
        for b in range(2):
            r = O_ + 4 * ((2 * t + b) * 2 + qb)
            for i in (0, 2):
                a.e(f"v_pk_mul_f32 {v(r+i,2)}, {v(r+i,2)}, {v(T0,2)}")
            a.e(f"v_cvt_pk_bf16_f32 v{d+2*b}, v{r}, v{r+1}")
            a.e(f"v_cvt_pk_bf16_f32 v{d+2*b+1}, v{r+2}, v{r+3}")
        a.e(f"buffer_store_dwordx4 {v(d,4)}, v{V_L16}, s[{SRD_CTX}:{SRD_CTX+3}], s60 offen offset:{t*1024}{sc}", tag="ctx")


def p3_main(a, pfx, sc="", last_hook=None, last_wait=0, b_hook=None, epi_hook=None, iter_hook=None, pre_epi_hook=None, wait_hook=None, fin_hook=None, join_hook=None):
    a.flush()
    a.e(f"{pfx}_start:")
    for r in range(4):
        a.e(f"v_mov_b32 v{S_+r}, 0")
    for r in range(O_, L_ + 8, 4):
        a.e(mfma(r, S_, S_, None))
    a.e(f"v_add_u32 v{V_KA}, 0x8000, v{V_L16}")
    a.e(f"s_mov_b32 s{S_KM}, 0x10000")
    a.e(f"s_add_u32 s60, s{S_UD}, 1")
    a.e(f"s_lshr_b32 s60, s60, 1")
    a.e(f"s_add_u32 s60, s60, 1")
    a.e(f"s_min_u32 s60, s60, s{S_T}")
    a.e(f"s_sub_u32 s{S_REM}, s{S_T}, s60")
    a.e(f"v_mov_b32 v{T0}, {LDS_FLAG}")
    a.e(f"v_mov_b32 v{T0+1}, 0")
    a.e(f"ds_write_b32 v{T0}, v{T0+1}")
    a.e("s_waitcnt vmcnt(8) lgkmcnt(0)")
    a.e("s_barrier")
    stamp(a, STB + 3)
    for b in range(2):
        for ks in range(4):
            a.e(kread(0, b, ks))
    a.e(f"s_cmp_ge_u32 s{S_WAVE}, 4")
    a.e(f"s_cbranch_scc1 {pfx}_nodma2")
    a.add(kv_dma())
    a.flush()
    a.e(f"{pfx}_nodma2:")
    for c in CH:
        a.add(qk(c, True))
    for b in range(2):
        for ks in range(4):
            a.e(kread(1, b, ks))
    a.e(f"v_mov_b32 v{V_VA}, v{V_KA}")
    a.e("s_nop 7")
    a.e(f"s_cmp_lg_u32 s{S_UD}, 0")
    a.e(f"s_cbranch_scc1 {pfx}_nomask0")
    diag_mask(a)
    a.flush()
    a.e(f"{pfx}_nomask0:")
    for qb in range(2):
        s0, s1 = sblk(0, qb), sblk(1, qb)
        t = T0 + qb
        a.e(f"v_max3_f32 v{t}, v{s0}, v{s0+1}, v{s0+2}")
        a.e(f"v_max3_f32 v{t}, v{t}, v{s0+3}, v{s1}")
        a.e(f"v_max3_f32 v{t}, v{t}, v{s1+1}, v{s1+2}")
        a.e(f"v_max_f32 v{t}, v{t}, v{s1+3}")
        xmax(a, t, T0 + 2)
        a.e(f"v_sub_f32 v{t}, 0, v{t}")
    a.e(f"s_cmp_eq_u32 s{S_MODE}, 0")
    a.e(f"s_cbranch_scc1 {pfx}_standin")
    a.e(f"v_mov_b32 v{T0}, v{V_MX}")
    a.e(f"v_mov_b32 v{T0+1}, v{V_MX+1}")
    a.flush()
    a.e(f"{pfx}_standin:")
    for qb in range(2):
        for i in range(4):
            a.e(f"v_mov_b32 v{M_+4*qb+i}, v{T0+qb}")
    for c in CH:
        for i in (0, 2):
            a.e(f"v_pk_add_f32 {v(sblk(*c)+i,2)}, {v(sblk(*c)+i,2)}, {v(M_+4*c[1],2)}")
    for c in CH:
        for i in range(4 if c != CH[3] else 1):
            a.e(exp_(c, i))
        if c != CH[3]:
            a.e(cvt_(c, 0, 0))
            a.e(cvt_(c, 1, 0))
    a.add(Need([v(KA, 16)]))
    a.e(f"s_sub_u32 s{S_CNT}, s{S_UD}, 1")
    a.e(f"s_cselect_b32 s60, 1, 0")
    a.e(f"s_cmp_ge_u32 s{S_WAVE}, 4")
    a.e(f"s_cbranch_scc1 {pfx}_B")
    a.flush()
    st0 = a.st.copy()
    for isA in (True, False):
        R = pfx + ("_A" if isA else "_B")
        a.st = st0.copy()
        if not isA:
            a.st.vm = []
            a.e(f"{R}:")
        else:
            a.st.vm = [(set(), "kv")] * 16
        a.e("s_cmp_eq_u32 s60, 1")
        a.e(f"s_cbranch_scc1 {R}_drain0")
        a.e(f"s_sub_u32 s{S_CNT}, s{S_CNT}, 1")
        a.e(f"s_cbranch_scc1 {R}_diag1")
        a.e(".p2align 3")
        a.loop(f"{R}_loop",
               lambda: body(1, isA, pfx=R) + [f"s_cbranch_scc1 {R}_diag0"] + body(0, isA),
               [f"s_cbranch_scc0 {R}_loop"])
        stl = a.st.copy()
        a.e(f"{R}_diag1:")
        a.add(body(1, isA, True, R + "_d1"))
        a.add(drain(1))
        a.e(f"s_branch {R}_fin")
        a.flush()
        a.st = stl.copy()
        a.e(f"{R}_diag0:")
        a.add(body(0, isA, True, R + "_d0"))
        a.flush()
        a.st.lg = list(stl.lg)
        a.e(f"{R}_drain0:")
        a.add(drain(0))
        a.flush()
        a.e(f"{R}_fin:")
        a.e("s_waitcnt lgkmcnt(0)")
        if isA:
            a.e(f"s_mov_b32 s{S_EPI}, 1")
            if fin_hook:
                fin_hook(a)
            a.e("s_nop 7")
            stamp(a, STB + 4)
            a.flush()
            a.st.vm = []
            a.e(f"{R}_ld:")
            a.e(f"s_cmp_eq_u32 s{S_REM}, 1")
            a.e(f"s_cbranch_scc1 {R}_last")
            if wait_hook:
                wait_hook(a, R, False)
            else:
                a.e("s_waitcnt vmcnt(8)")
            a.e("s_barrier")
            a.add(kv_dma())
            a.e(f"s_branch {R}_post")
            a.flush()
            a.st.vm = []
            a.e(f"{R}_last:")
            if wait_hook:
                wait_hook(a, R, True)
            else:
                a.e("s_waitcnt vmcnt(0)")
            a.e("s_barrier")
            if last_hook:
                last_hook(a)
            a.flush()
            a.st.vm = []
            a.e(f"{R}_post:")
            a.e(f"s_cmp_eq_u32 s{S_EPI}, 0")
            a.e(f"s_cbranch_scc1 {R}_skip")
            if TODO_HOOK:
                a.e(f"s_cmp_eq_u32 s{S_TODO}, 0")
                a.e(f"s_cbranch_scc1 {R}_notodo")
                TODO_HOOK(a)
                a.e(f"{R}_notodo:")
            if pre_epi_hook:
                pre_epi_hook(a)
            ovf_check(a)
            ctx_store(a, 0, sc)
            ctx_store(a, 1, sc)
            if epi_hook:
                epi_hook(a)
            a.e(f"s_mov_b32 s{S_EPI}, 0")
            if last_wait is not None:
                a.e(f"s_cmp_lg_u32 s{S_REM}, 1")
                a.e(f"s_cbranch_scc1 {R}_skip")
                a.e(f"s_waitcnt vmcnt({last_wait + 8 + (8 if epi_hook else 0)})")
                a.e(f"s_branch {pfx}_join")
            a.flush()
            a.st.vm = []
            a.e(f"{R}_skip:")
            if iter_hook:
                iter_hook(a, R)
            a.e(f"s_sub_u32 s{S_REM}, s{S_REM}, 1")
            a.e(f"s_cmp_lg_u32 s{S_REM}, 0")
            a.e(f"s_cbranch_scc1 {R}_ld")
            if join_hook:
                join_hook(a, R)
            else:
                a.e(f"s_waitcnt vmcnt({last_wait or 0})")
            a.e(f"s_branch {pfx}_join")
            if TODO_HOOK:
                a.e(f"{R}_todo:")
                TODO_HOOK(a)
                a.e(f"s_branch {R}_todo_ret")
            a.flush()
        else:
            a.e("s_waitcnt vmcnt(0)")
            a.e(f"s_cmp_eq_u32 s{S_REM}, 0")
            a.e(f"s_cbranch_scc1 {R}_nob")
            a.e("s_barrier")
            a.e(f"{R}_nob:")
            a.e("s_nop 7")
            stamp(a, STB + 4)
            ovf_check(a)
            if b_hook:
                b_hook(a)
            a.flush()
    a.e(f"{pfx}_join:")
    a.e("s_waitcnt lgkmcnt(0)")
    a.e("s_barrier")
    a.e(f"v_mov_b32 v{T0}, {LDS_FLAG}")
    a.e(f"ds_read_b32 v{T0+1}, v{T0}")
    a.e("s_waitcnt lgkmcnt(0)")
    a.e(f"v_readfirstlane_b32 s60, v{T0+1}")
    a.e("s_nop 3")
    a.e(f"s_andn2_b32 s60, s60, s{S_MODE}")
    a.e("s_cmp_eq_u32 s60, 0")
    a.e(f"s_cbranch_scc1 {pfx}_done")
    a.e("s_waitcnt vmcnt(0)")
    a.e("s_barrier")
    a.e(f"s_mov_b32 s{S_MODE}, 1")
    a.e(f"v_mov_b32 v{V_MX}, v{V_NINF}")
    a.e(f"v_mov_b32 v{V_MX+1}, v{V_NINF}")
    a.e("s_mov_b32 s61, 0")
    a.flush()
    a.e(f"{pfx}_mx:")
    a.e("s_lshr_b32 s62, s61, 1")
    a.e("s_lshl_b32 s62, s62, 15")
    a.e("s_and_b32 s63, s61, 1")
    a.e("s_lshl_b32 s63, s63, 13")
    a.e("s_add_u32 s62, s62, s63")
    a.e("s_add_u32 s63, s62, 4096")
    for b in range(2):
        for ks in range(4):
            a.e(f"buffer_load_dwordx4 {v((KA if b == 0 else KB)+4*ks,4)}, v{V_L16}, s[{SRD_KV}:{SRD_KV+3}], s{62+b} offen offset:{ks*1024}")
    for c in CH:
        a.add(qk(c, True))
    a.e("s_nop 7")
    a.e(f"s_cmp_lg_u32 s61, s{S_UD}")
    a.e(f"s_cbranch_scc1 {pfx}_mx1")
    diag_mask(a)
    a.flush()
    a.e(f"{pfx}_mx1:")
    for qb in range(2):
        s0, s1 = sblk(0, qb), sblk(1, qb)
        t = V_MX + qb
        a.e(f"v_max3_f32 v{t}, v{t}, v{s0}, v{s0+1}")
        a.e(f"v_max3_f32 v{t}, v{t}, v{s0+2}, v{s0+3}")
        a.e(f"v_max3_f32 v{t}, v{t}, v{s1}, v{s1+1}")
        a.e(f"v_max3_f32 v{t}, v{t}, v{s1+2}, v{s1+3}")
    a.e("s_add_u32 s61, s61, 1")
    a.e(f"s_cmp_le_u32 s61, s{S_UD}")
    a.e(f"s_cbranch_scc1 {pfx}_mx")
    for qb in range(2):
        xmax(a, V_MX + qb, T0 + 2)
        a.e(f"v_sub_f32 v{V_MX+qb}, 0, v{V_MX+qb}")
    p3_first_dma(a, pfx + "_redo")
    a.e(f"s_branch {pfx}_start")
    a.flush()
    a.st = WState()
    a.e(f"{pfx}_done:")


def kernel_b(a):
    label = "kb_kernel"
    a.st = WState()
    kernel_head(a, label, 256)
    stamp_init(a, 1)
    stamp(a, 0)
    a.e(f"v_lshlrev_b32 v{V_L16}, 4, v{V_LANE}")
    q0_setup(a)
    p2_setup(a)
    for st in range(4):
        g, adv = p2_dma(st)
        for m0, ld in g:
            a.add([m0, ld])
        a.add(adv)
    p2_setup_reads(a)
    srd(a, SRD3, P_WS, WS_CTX)
    a.add(p2_xload(0, SRD3))
    a.add(p2_xload(1, SRD3))
    p2_bias(a)
    p2_bias_apply(a)
    a.add([WaitTag(lambda t: t == ("p2", 0)), "s_barrier"])
    stamp(a, 1)
    a.add(p2_reads(0, 0, AF))
    for st in range(8):
        a.add(p2_stage(st, SRD3))
    stamp(a, 2)
    a.e("s_barrier")
    p3_setup_once(a)
    a.flush()
    vm = list(a.st.vm)
    p3_first_dma(a, "LB")
    a.st.vm = vm
    sc = os.environ.get("SC", "")
    p2_epilogue(a, SRD3, WS_H, sc)
    a.e("s_waitcnt vmcnt(0)")
    p3_consts(a)
    p3_main(a, "LB", sc)
    a.e(f"s_cmp_lt_u32 s{S_WAVE}, 4")
    a.e(f"s_cbranch_scc1 LB_noepi")
    ctx_store(a, 0, sc)
    ctx_store(a, 1, sc)
    a.flush()
    a.e("LB_noepi:")
    stamp(a, 5)
    kernel_tail(a, label)
    return label
```

```python
from common import *
import p3, p5
from p1 import V_LANE, V_L16
import fused as F
from fused import cap, spread, poll_load, poll_check, set_flag, stamp, SC, SRD_F, F_H, F_CTX, S_SPIN, OPT

V_WD, V_WD2, V_PD, V_PA = 8, 9, 11, 12
V_HO = 9
V_AD = 10
V_WA, V_BA, V_GA = 22, 26, 27
V_XA, V_BB = 10, 13
S_J, S_RB, S_CB, S_TILE = 6, 7, 8, 9
SO = [None, 10, 11, 12, 13, 16, 17, 78]
S_WM0, S_AM0, S_PP, S_XO = 18, 19, 20, 21
S_HC, S_E1, S_E2 = 79, 75, 74
AS = [None, 79, 64, 65]
NG, NS = 7, 16
NT = NG + NS
HF, NPRE = 64, 40
GACC, GR = 240, 32
XR, BR2, GT = 224, 232, 112
FR, SACC, PR = 32, 128, 192
SRD_W2, SRD_WO, SRD_H, SRD_C = SRD0, SRD1, SRD2, SRD5
LDS_OWN = 131072
CTXFLAG = 3 if 'B' in OPT else (2 if 'C' in OPT else 1)
HSTART = 6


def so(i):
    return "0" if i == 0 else f"s{SO[i]}"


def smask(stage):
    return 0x10000 if stage % 2 == 0 else 0x8000


def ringx(stage):
    x = 0
    for s_ in range(stage):
        x ^= smask(s_)
    return x


def hslot(ks):
    return HF + 4 * (ks if ks < NPRE else ks - NPRE)


def ids(a):
    a.e(f"s_and_b32 s60, s2, 7")
    a.e(f"s_lshr_b32 s61, s2, 3")
    a.e(f"s_and_b32 s{S_J}, s60, 3")
    a.e(f"s_lshr_b32 s60, s60, 2")
    a.e(f"s_lshl_b32 s60, s60, 3")
    a.e(f"s_lshr_b32 s{S_RB}, s61, 2")
    a.e(f"s_add_u32 s{S_RB}, s{S_RB}, s60")
    a.e(f"s_and_b32 s{S_CB}, s61, 3")
    a.e(f"s_lshl_b32 s{S_TILE}, s{S_RB}, 2")
    a.e(f"s_add_u32 s{S_TILE}, s{S_TILE}, s{S_CB}")
    a.e(f"s_sub_u32 s60, 15, s{S_RB}")
    a.e(f"s_min_u32 s{S_PP}, s60, s{S_RB}")
    srd(a, SRD_W2, P_W2, 1792 * 1024)
    srd(a, SRD_WO, P_WO, 0x400000)
    srd(a, SRD_H, P_WS, 0x700000, WS_H)


def ring0(a, dst):
    a.e(f"s_and_b32 s{dst}, s{p3.S_T}, 2")
    a.e(f"s_cmp_eq_u32 s{dst}, 0")
    a.e(f"s_mov_b32 s61, 0x10000")
    a.e(f"s_cselect_b32 s{dst}, 0x8000, s61")


def mbase2(a, dst):
    a.e(f"s_and_b32 s{dst}, s{S_J}, 1")
    a.e(f"s_lshl_b32 s{dst}, s{dst}, 7")
    a.e(f"s_lshl_b32 s61, s{S_CB}, 8")
    a.e(f"s_add_u32 s{dst}, s{dst}, s61")


def qbase16(a, dst):
    a.e(f"s_lshr_b32 s{dst}, s{S_J}, 1")
    a.e(f"s_lshl_b32 s{dst}, s{dst}, 2")
    a.e(f"s_lshl_b32 s61, s{S_RB}, 3")
    a.e(f"s_add_u32 s{dst}, s{dst}, s61")


def w2_setup(a, nw, first):
    L = V_LANE
    sh = 16 if nw == 4 else 17
    a.e(f"v_lshrrev_b32 v17, 4, v{L}")
    a.e(f"v_lshlrev_b32 v17, 1, v17")
    a.e(f"v_and_b32 v16, 7, v{L}")
    a.e(f"v_xor_b32 v16, v16, v17")
    a.e(f"v_lshlrev_b32 v16, 4, v16")
    a.e(f"v_lshrrev_b32 v17, 3, v{L}")
    a.e(f"v_lshl_add_u32 v16, v17, 10, v16")
    mbase2(a, 62)
    a.e(f"s_lshl_b32 s63, s{S_W3}, {sh}")
    a.e(f"s_add_u32 s62, s62, s63")
    if first:
        a.e(f"s_add_u32 s62, s62, {first*0x40000}")
    a.e(f"v_add_u32 v{V_WD}, s62, v16")
    if nw == 2:
        a.e(f"v_add_u32 v{V_WD2}, 0x10000, v{V_WD}")
    ring0(a, 60)
    if ringx(first):
        a.e(f"s_xor_b32 s60, s60, {hex(ringx(first))}")
    a.e(f"s_lshl_b32 s{S_WM0}, s{S_W3}, {sh-3}")
    a.e(f"s_add_u32 s{S_WM0}, s{S_WM0}, s60")
    for i in range(1, 8):
        a.e(f"s_mov_b32 s{SO[i]}, {i*8192}")


def w2_dma(stage, nw):
    r = []
    for i in range(32 // nw):
        r.append(f"s_add_u32 m0, s{S_WM0}, {i*1024}")
        r.append(I(f"buffer_load_dwordx4 v{V_WD if i < 8 else V_WD2}, s[{SRD_W2}:{SRD_W2+3}], {so(i&7)} offen lds", tag=("p5", stage)))
    r.append(f"v_add_u32 v{V_WD}, 0x40000, v{V_WD}")
    if nw == 2:
        r.append(f"v_add_u32 v{V_WD2}, 0x40000, v{V_WD2}")
    r.append(f"s_xor_b32 s{S_WM0}, s{S_WM0}, {hex(smask(stage))}")
    return r


def wo_dma(stage):
    L = V_LANE
    r = []
    if stage == NG:
        r += [f"s_lshl_b32 s63, s{S_W3}, 2", f"v_lshrrev_b32 v17, 4, v{L}", f"v_or_b32 v18, s63, v17", f"v_lshlrev_b32 v18, 1, v18",
              f"v_and_b32 v16, 15, v{L}", f"v_xor_b32 v16, v16, v18", f"v_lshlrev_b32 v16, 4, v16", f"v_lshl_add_u32 v16, v17, 10, v16",
              f"s_lshl_b32 s63, s{S_CB}, 8", f"s_lshl_b32 s61, s{S_J}, 20", f"s_add_u32 s63, s63, s61",
              f"s_lshl_b32 s61, s{S_W3}, 12", f"s_add_u32 s63, s63, s61", f"v_add_u32 v{V_WD}, s63, v16",
              f"s_and_b32 s{S_WM0}, s{S_WM0}, 0x18000", f"s_lshl_b32 s63, s{S_W3}, 13", f"s_add_u32 s{S_AM0}, s{S_WM0}, s63",
              f"s_add_u32 s{S_AM0}, s{S_AM0}, 16384",
              f"s_lshl_b32 s63, s{S_W3}, 10", f"s_add_u32 s{S_WM0}, s{S_WM0}, s63"]
    for i in range(8):
        r.append(f"s_add_u32 m0, s{S_WM0}, {i*2048}")
        r.append(I(f"buffer_load_dwordx4 v{V_WD}, s[{SRD_WO}:{SRD_WO+3}], {so(i)} offen lds", tag=("p5", stage)))
    r.append(f"v_add_u32 v{V_WD}, 0x10000, v{V_WD}")
    r.append(f"s_xor_b32 s{S_WM0}, s{S_WM0}, {hex(smask(stage))}")
    return r


def ctx_dma(stage):
    r = []
    if stage == NG:
        r += [f"s_lshl_b32 s63, s{S_RB}, 3", f"s_lshl_b32 s62, s{S_W3}, 2", f"s_add_u32 s63, s63, s62", f"s_lshl_b32 s63, s63, 17",
              f"s_lshl_b32 s62, s{S_J}, 15", f"s_add_u32 s63, s63, s62", f"v_add_u32 v{V_AD}, s63, v{V_L16}"]
        r += [f"s_mov_b32 s{AS[i]}, {hex(i*0x20000)}" for i in range(1, 4)]
    for i in range(4):
        r.append(f"s_add_u32 m0, s{S_AM0}, {i*2048}")
        for ks in range(2):
            r.append(I(f"buffer_load_dwordx4 v{V_AD}, s[{SRD_C}:{SRD_C+3}], {'0' if i == 0 else 's%d' % AS[i]} offen offset:{ks*1024}{SC} lds", tag=("p5", stage)))
    r.append(f"v_add_u32 v{V_AD}, 2048, v{V_AD}")
    r.append(f"s_xor_b32 s{S_AM0}, s{S_AM0}, {hex(smask(stage))}")
    return r


def flag_addr(a, first, n, ftype):
    L = V_LANE
    a.e(f"v_min_u32 v16, {n-1}, v{L}")
    if first is not None:
        a.e(f"v_add_u32 v16, s{first}, v16")
    a.e(f"v_lshrrev_b32 v17, 2, v16")
    a.e(f"v_and_b32 v16, 3, v16")
    a.e(f"v_lshl_add_u32 v16, v16, 3, v17")
    a.e(f"s_lshl_b32 s62, s{S_PP}, 5")
    a.e(f"v_add_u32 v16, s62, v16")
    a.e(f"v_lshlrev_b32 v16, 10, v16")
    a.e(f"v_add_u32 v{V_PA}, {ftype}, v16")


def compute_setup(a):
    L = V_LANE
    ring0(a, 60)
    a.e(f"s_xor_b32 s63, s60, {hex(ringx(NG))}")
    a.e(f"v_and_b32 v16, 15, v{L}")
    a.e(f"v_lshrrev_b32 v17, 4, v{L}")
    a.e(f"v_lshrrev_b32 v18, 2, v16")
    a.e(f"v_lshl_add_u32 v18, v17, 2, v18")
    a.e(f"v_and_b32 v19, 7, v18")
    a.e(f"v_and_b32 v20, 3, v{L}")
    a.e(f"v_lshlrev_b32 v20, 3, v20")
    a.e(f"v_lshl_add_u32 v21, v18, 7, v20")
    a.e(f"v_add_u32 v21, s60, v21")
    a.e(f"v_lshl_add_u32 v18, v18, 8, v20")
    a.e(f"v_add_u32 v18, s63, v18")
    for m in range(4):
        a.e(f"v_lshrrev_b32 v20, 1, v19")
        a.e(f"v_xor_b32 v20, {m}, v20")
        a.e(f"v_lshl_add_u32 v{V_GA+m}, v20, 5, v21")
    a.e(f"s_and_b32 s62, s{S_W3}, 1")
    a.e(f"s_lshl_b32 s62, s62, 2")
    a.e(f"v_xor_b32 v19, s62, v19")
    for m in range(4):
        a.e(f"v_xor_b32 v20, {m}, v19")
        a.e(f"v_lshl_add_u32 v{V_WA+m}, v20, 5, v18")
    a.e(f"s_lshr_b32 s62, s{S_W3}, 1")
    a.e(f"s_lshl_b32 s62, s62, 13")
    a.e(f"s_add_u32 s62, s62, 16384")
    a.e(f"s_add_u32 s62, s62, s63")
    a.e(f"v_add_u32 v{V_BA}, s62, v{V_L16}")
    a.e(f"v_lshlrev_b32 v{V_BB}, 3, v17")
    a.e(f"v_lshl_add_u32 v{V_XA}, v16, 10, v{V_BB}")
    mbase2(a, 62)
    a.e(f"v_add_u32 v{V_BB}, s62, v{V_BB}")
    qbase16(a, 63)
    a.e(f"s_add_u32 s63, s63, s{S_W3}")
    a.e(f"s_lshl_b32 s63, s63, 14")
    a.e(f"s_add_u32 s{S_XO}, s63, s62")


def slot_addr(a):
    a.e(f"s_lshl_b32 s60, s{S_TILE}, 2")
    a.e(f"s_add_u32 s60, s60, s{S_J}")
    a.e(f"s_lshl_b32 s60, s60, 2")
    a.e(f"s_add_u32 s60, s60, s{S_W3}")
    a.e(f"s_lshl_b32 s60, s60, 13")
    a.e(f"s_add_u32 s61, s60, 4096")


def hload(ks):
    return f"buffer_load_dwordx4 {v(hslot(ks),4)}, v{V_HO}, s[{SRD_H}:{SRD_H+3}], 0 offen offset:{(ks&3)*1024}{SC}"


def hloads(lo, hi):
    r = []
    for ks in range(lo, hi):
        r.append(hload(ks))
        if ks & 3 == 3:
            r.append(f"v_add_u32 v{V_HO}, 4096, v{V_HO}")
    return r


def todo_hook(a):
    a.flush()
    st = a.st.copy()
    a.add(set_flag(F_H, p3.T0, 0))
    ids(a)
    srd(a, SRD3, P_WS, 0x800000, WS_SP)
    slot_addr(a)
    for i in range(4):
        a.e(f"v_mov_b32 v{244+i}, -1")
    for h in range(2):
        for i in range(4):
            a.e(f"buffer_store_dwordx4 v[244:247], v{V_L16}, s[{SRD3}:{SRD3+3}], s{60+h} offen offset:{i*1024}{SC}")
    a.e(f"s_mov_b32 s{p3.S_TODO}, 0")
    a.flush()
    a.st = st


def a_pre_epilogue_hook(a):
    pass


def a_epilogue_hook(a):
    qbase16(a, 62)
    a.e(f"s_add_u32 s62, s62, s{S_W3}")
    a.e(f"s_mul_i32 s62, s62, {56*1024}")
    a.e(f"v_add_u32 v{V_HO}, s62, v{V_L16}")
    a.e(f"s_mov_b32 s{S_HC}, 0")
    a.e(f"s_mov_b32 s{S_E1}, 8")


def a_join_wait(a, R):
    a.e("s_mov_b32 s74, 1")
    a.e(f"s_cmp_ge_u32 s{S_E1}, 32")
    a.e(f"s_cbranch_scc1 {R}_j32")
    a.e(f"s_cmp_ge_u32 s{S_E1}, 16")
    a.e(f"s_cbranch_scc1 {R}_j16")
    a.e("s_mov_b32 s74, 0")
    a.e(f"{R}_j16:")
    a.e("s_waitcnt vmcnt(16)")
    a.e(f"{R}_j32:")
    a.e("s_waitcnt vmcnt(32)")


NCH = NPRE // 8


def a_fin_hook(a):
    ids(a)
    flag_addr(a, None, 28, F_H)
    a.e(poll_load(V_PD, V_PA, SRD_F))
    a.flush()
    a.st.vm = []
    a.e(f"s_mov_b32 s{S_E1}, 0")
    a.e(f"s_mov_b32 s{S_E2}, 0")


def a_wait_hook(a, R, last):
    L = R + ("_wl" if last else "_wn")
    if last:
        a.e(f"s_mov_b32 s60, s{S_E1}")
    else:
        a.e(f"s_add_u32 s60, s{S_E1}, s{S_E2}")
    base = 0 if last else 8
    a.e("s_cmp_ge_u32 s60, 16")
    a.e(f"s_cbranch_scc1 {L}16")
    a.e("s_cmp_ge_u32 s60, 8")
    a.e(f"s_cbranch_scc1 {L}8")
    a.e(f"s_waitcnt vmcnt({base})")
    a.e(f"{L}8:")
    a.e(f"s_waitcnt vmcnt({base+8})")
    a.e(f"{L}16:")
    a.e(f"s_waitcnt vmcnt({base+16})")
    a.e(f"s_mov_b32 s{S_E2}, s{S_E1}")
    a.e(f"s_mov_b32 s{S_E1}, 0")


def a_iter_hook(a, R):
    a.e(f"s_cmp_gt_u32 s{S_REM}, {HSTART}")
    a.e(f"s_cbranch_scc1 {R}_hdone")
    a.e(f"s_cmp_lg_u32 s{S_HC}, 0")
    a.e(f"s_cbranch_scc1 {R}_hnext")
    a.flush()
    a.st.vm = []
    a.e("s_waitcnt vmcnt(16)")
    poll_check(a, V_PD, V_PA, SRD_F, 1, on_spin=[f"s_mov_b32 s{S_E1}, 0", f"s_mov_b32 s{S_E2}, 0"])
    a.flush()
    a.e(f"{R}_hnext:")
    for c in range(NCH):
        a.e(f"s_cmp_eq_u32 s{S_HC}, {c}")
        a.e(f"s_cbranch_scc1 {R}_h{c}")
    a.e(f"s_branch {R}_hdone")
    for c in range(NCH):
        a.flush()
        a.st.vm = []
        a.e(f"{R}_h{c}:")
        a.add(hloads(8 * c, 8 * c + 8))
        a.e(f"s_mov_b32 s{S_HC}, {c+1}")
        a.e(f"s_add_u32 s{S_E1}, s{S_E1}, 8")
        a.e(f"s_cmp_lg_u32 s{S_REM}, 1")
        if c < NCH - 1:
            a.e(f"s_cbranch_scc1 {R}_hdone")
    a.flush()
    a.st.vm = []
    a.e(f"{R}_hdone:")


S_REM = p3.S_REM


def a_last_hook(a):
    w2_setup(a, 4, 0)
    a.add(w2_dma(0, 4))
    a.add(w2_dma(1, 4))
    compute_setup(a)
    srd(a, SRD3, P_X, 0x200000)
    for mb in range(4):
        a.e(f"buffer_load_dwordx2 {v(XR+2*mb,2)}, v{V_XA}, s[{SRD3}:{SRD3+3}], s{S_XO} offen offset:{mb*32}")
    srd(a, SRD3, P_B2, 1024)
    for mb in range(4):
        a.e(f"buffer_load_dwordx2 {v(BR2+2*mb,2)}, v{V_BB}, s[{SRD3}:{SRD3+3}], 0 offen offset:{mb*32}")


PRE = 'D' not in OPT


def b_pre_join(a):
    if PRE:
        p3.ctx_store(a, 0, SC)
        p3.ctx_store(a, 1, SC)
    a.e(f"s_cmp_ge_u32 s{S_WAVE}, 6")
    a.e("s_cbranch_scc1 LF_bpre")
    a.flush()
    st = a.st.copy()
    if not PRE:
        p3.ctx_store(a, 0, SC)
        p3.ctx_store(a, 1, SC)
    ids(a)
    w2_setup(a, 2, 4)
    a.flush()
    a.st = st
    a.e("LF_bpre:")


def g_read(f):
    ks, mb = (f >> 2) & 7, f & 3
    d = GR + 4 * (f & 7)
    return [f"ds_read_b64_tr_b16 {v(d+2*e,2)}, v{V_GA+mb} offset:{ks*4096 + e*2048}" for e in range(2)]


def gstage(st, vm=None, extra=()):
    prim, fl = [], list(extra)
    last = st == NG - 1
    for f in range(32):
        ks, mb = 8 * st + (f >> 2), f & 3
        d = GACC + 4 * mb
        prim.append(mfma(d, GR + 4 * (f & 7), hslot(ks), None if ks == 0 else d))
        if f & 3 == 3 and f < 31:
            fl.append((f, 9, Need([v(GR + 16 * (((f + 1) >> 2) & 1), 16)])))
        if f + 8 < 32 or not last:
            r = g_read(f + 8)
            fl += [(f, 1, r[0]), (f, 2, r[1])]
    if not last:
        x = [f"v_xor_b32 v{V_GA+m}, {hex(smask(st))}, v{V_GA+m}" for m in range(4)]
        if vm is not None:
            x.append(vm)
        x.append("s_barrier")
        fl.append((23, 8, x))
        fl.append((31, 9, Need([v(GR, 16)])))
    return weave(prim, fl)


def c_reads(ks, fb):
    r = []
    for q in range(4):
        r.append(f"ds_read_b128 {v(fb+16+4*q,4)}, v{V_BA} offset:{q*2048 + ks*1024}")
    for m in range(4):
        for e in range(2):
            r.append(f"ds_read_b64_tr_b16 {v(fb+4*m+2*e,2)}, v{V_WA+m} offset:{ks*8192 + e*4096}")
    return r


def cstage(stage, first=False):
    FA, FB = FR, FR + 32
    pos = lambda i: i // 2 if i < 4 else i - 2
    fl = [(pos(i), 0, x) for i, x in enumerate(c_reads(1, FB))]
    for i, r in enumerate([V_BA, V_WA, V_WA + 1, V_WA + 2, V_WA + 3]):
        fl.append((10 + i, 1, f"v_xor_b32 v{r}, {hex(smask(stage))}, v{r}"))
    out = weave(p5.mfmas(SACC, FA, first), fl)
    out += ["s_waitcnt lgkmcnt(0)", "s_barrier"]
    fl = [(pos(i), 0, x) for i, x in enumerate(c_reads(0, FA))]
    fl.append((15, 1, Need([v(FA, 32)])))
    out += weave(p5.mfmas(SACC, FB, False), fl)
    return out


def gate_math(a):
    G, T = GACC, GT
    for i in range(16):
        src = BR2 + i // 2
        a.e(f"v_lshlrev_b32 v{T+i}, 16, v{src}" if i % 2 == 0 else f"v_and_b32 v{T+i}, 0xffff0000, v{src}")
    for i in range(16):
        a.e(f"v_add_f32 v{G+i}, v{G+i}, v{T+i}")
        a.e(f"v_mul_f32 v{T+i}, 0xbfb8aa3b, v{G+i}")
        a.e(f"v_exp_f32 v{T+i}, v{T+i}")
    for i in range(16):
        a.e(f"v_add_f32 v{T+i}, 1.0, v{T+i}")
        a.e(f"v_rcp_f32 v{T+i}, v{T+i}")
    for i in range(16):
        a.e(f"v_mul_f32 v{G+i}, v{G+i}, v{T+i}")
        src = XR + i // 2
        a.e(f"v_lshlrev_b32 v{T+i}, 16, v{src}" if i % 2 == 0 else f"v_and_b32 v{T+i}, 0xffff0000, v{src}")


def main(a):
    a.e(f"s_cmp_lt_u32 s{S_WAVE}, 4")
    a.e("s_cbranch_scc1 LF_comp")
    a.e(f"s_cmp_ge_u32 s{S_WAVE}, 6")
    a.e("s_cbranch_scc1 LF_tail")
    a.flush()
    a.st = WState()
    a.e(f"s_lshl_b32 s63, s{S_J}, 3")
    flag_addr(a, 63, 8, F_CTX)
    a.e(f"v_and_b32 v16, 3, v{V_LANE}")
    a.e("s_andn2_b32 s62, s2, 3")
    a.e("v_add_u32 v16, s62, v16")
    a.e("v_lshlrev_b32 v16, 10, v16")
    a.e(f"v_add_u32 v16, {F_CTX}, v16")
    a.e(f"v_cmp_lt_u32 vcc, 31, v{V_LANE}")
    a.e(f"v_cndmask_b32 v{V_PA}, v{V_PA}, v16, vcc")
    a.flush()
    a.st.vm = [(set(), "ctx")] * 8
    def bar(st):
        a.add([WaitTag(lambda t, st=st: t == ("p5", st + 1) or (st == CTXFLAG and t == "ctx")), "s_barrier"])
        if st == CTXFLAG:
            a.add(set_flag(F_CTX, 16, 4))
            stamp(a, 12)
        if st == NG - 1:
            stamp(a, 13)
    for st in range(4):
        bar(st)
        if st == 3:
            a.e(poll_load(V_PD, V_PA, SRD_F))
        if st >= 1:
            a.add(w2_dma(st + 3, 2))
    bar(4)
    EARLY = 'O' not in OPT
    if EARLY:
        a.add(Need([v(V_PD)]))
        a.e(f"v_cmp_gt_u32 vcc, 1, v{V_PD}")
        a.e("s_nop 0")
        a.e("s_cbranch_vccnz LF_late")
        a.flush()
        stl = a.st.copy()
        a.add(wo_dma(NG))
        a.add(ctx_dma(NG))
        bar(5)
        a.add(wo_dma(NG + 1))
        a.add(ctx_dma(NG + 1))
        stamp(a, 10)
        stamp(a, 11)
        a.e("s_branch LF_ctxgo")
        a.flush()
        a.st = stl
        a.e("LF_late:")
    a.add(wo_dma(NG))
    a.e(poll_load(V_PD, V_PA, SRD_F))
    bar(5)
    a.add(wo_dma(NG + 1))
    stamp(a, 10)
    poll_check(a, V_PD, V_PA, SRD_F, 1, sleep=0)
    stamp(a, 11)
    a.add(ctx_dma(NG))
    a.add(ctx_dma(NG + 1))
    a.flush()
    if EARLY:
        a.e("LF_ctxgo:")
    for st in range(NG - 1, NT):
        bar(st)
        for n in ([9, 10] if st == 6 else [st + 4]):
            if n < NT:
                a.add(wo_dma(n))
                a.add(ctx_dma(n))
    for i in (14, 15):
        stamp(a, i)
    a.e("s_endpgm")
    a.flush()
    a.st = WState()
    a.e("LF_tail:")
    if not PRE:
        p3.ctx_store(a, 0, SC)
    for st in range(CTXFLAG + 1):
        if st == CTXFLAG:
            a.e("s_waitcnt vmcnt(0)")
        a.e("s_barrier")
        if st == 0 and not PRE:
            p3.ctx_store(a, 1, SC)
    for i in (10, 11, 12, 13, 14, 15):
        stamp(a, i)
    a.e("s_endpgm")
    a.flush()
    a.st = WState()
    a.e("LF_comp:")
    a.flush()
    a.st.vm = [({("v", r), ("v", r + 1)}, None) for r in range(XR, XR + 16, 2)]
    stamp(a, 10, 'T')
    for f in range(8):
        a.add(g_read(f))
    a.add(Need([v(GR, 16)]))
    for st in range(NG):
        ex = []
        if st == 0:
            ex = spread(w2_dma(2, 4) + w2_dma(3, 4), 0 if 'F' not in OPT else 12, 22, 5)
        if st in (1, 2):
            ex = spread(hloads(NPRE + 8 * (st - 1), NPRE + 8 * st), 0, 20, 5)
        vm = WaitTag(lambda t, st=st: t == ("p5", st + 1)) if st in (1, 2) else None
        if st == 0:
            nst = 2 if (STAMP and 'T' in OPT) else 0
            vm = I(chr(10).join(["s_cmp_eq_u32 s74, 1", "  s_cbranch_scc1 LF_w1", f"  s_waitcnt vmcnt({24})", "LF_w1:"]))
        if 1 <= st < NCH:
            post = 16 + 8 * min(st - 1, 2)
            a.e(f"s_waitcnt vmcnt({8*(NCH-1-st) + post})")
        a.add(gstage(st, vm, ex))
        if st < 5:
            stamp(a, 11 + st, 'T')
    stamp(a, 10)
    gate_math(a)
    srd(a, SRD3, P_WS, 0x800000, WS_SP)
    srd(a, SRD4, P_OUT, 0x200000)
    a.e("s_barrier")
    a.add(c_reads(0, FR))
    a.add(Need([v(FR, 32)]))
    stamp(a, 11)
    a.add(cstage(NG, True))
    a.add(cstage(NG + 1))
    a.e("s_mov_b32 s75, 7")
    a.flush()
    a.st.vm = []
    a.loop("LF_loop", lambda: [cstage(NG + 2), cstage(NG + 3)],
           ["s_sub_u32 s75, s75, 1", "s_cmp_lg_u32 s75, 0", "s_cbranch_scc1 LF_loop"])
    stamp(a, 12)
    a.e("s_waitcnt lgkmcnt(0)")
    a.e(f"s_cmp_eq_u32 s{S_W3}, s{S_J}")
    a.e("s_cbranch_scc1 LF_own")
    slot_addr(a)
    for cw in range(4):
        for q in range(2):
            d = FR + 4 * (2 * cw + q)
            for mb in range(2):
                b = SACC + 4 * (cw * 4 + 2 * q + mb)
                a.e(f"v_cvt_pk_bf16_f32 v{d+2*mb}, v{b}, v{b+1}")
                a.e(f"v_cvt_pk_bf16_f32 v{d+2*mb+1}, v{b+2}, v{b+3}")
            a.e(f"buffer_store_dwordx4 {v(d,4)}, v{V_L16}, s[{SRD3}:{SRD3+3}], s{60 + (cw >> 1)} offen offset:{((cw&1)*2+q)*1024}{SC}")
    a.e("s_branch LF_sent")
    a.flush()
    a.st = WState()
    a.e("LF_own:")
    a.e(f"v_add_u32 v16, {LDS_OWN}, v{V_L16}")
    a.e("s_nop 7")
    for i in range(16):
        a.e(f"ds_write_b128 v16, {v(SACC+4*i,4)} offset:{i*1024}")
    a.e("s_waitcnt lgkmcnt(0)")
    a.flush()
    a.e("LF_sent:")
    for k in range(1, 4):
        a.e(f"s_add_u32 s60, s{S_J}, {k}")
        a.e(f"s_and_b32 s60, s60, 3")
        a.e(f"s_lshl_b32 s61, s{S_TILE}, 2")
        a.e(f"s_add_u32 s60, s60, s61")
        a.e(f"s_lshl_b32 s60, s60, 2")
        a.e(f"s_add_u32 s60, s60, s{S_J}")
        a.e(f"s_lshl_b32 s60, s60, 2")
        a.e(f"s_add_u32 s60, s60, s{S_W3}")
        a.e(f"s_lshl_b32 s{64+k}, s60, 11")

    def fetch():
        for k in range(1, 4):
            for q in range(2):
                a.e(f"buffer_load_dwordx4 {v(PR+8*(k-1)+4*q,4)}, v{V_L16}, s[{SRD3}:{SRD3+3}], s{64+k} offen offset:{q*1024}{SC}")
    fetch()
    a.e(f"s_lshl_b32 s62, s{S_W3}, 12")
    a.e(f"s_add_u32 s62, s62, {LDS_OWN}")
    a.e(f"v_add_u32 v18, s62, v{V_L16}")
    a.e(f"s_mov_b32 s{S_SPIN}, 0x10000")
    a.e("s_barrier")
    stamp(a, 13)
    S_ = 64
    for mb in range(4):
        a.e(f"ds_read_b128 {v(S_+4*mb,4)}, v18 offset:{mb*1024}")
    a.flush()
    a.e("LF_xchk:")
    a.e("s_waitcnt vmcnt(0)")
    a.e(f"v_max3_u32 v16, v{PR}, v{PR+1}, v{PR+2}")
    a.e(f"v_max3_u32 v17, v{PR+3}, v{PR+4}, v{PR+5}")
    for i in range(6, 24, 4):
        a.e(f"v_max3_u32 v16, v16, v{PR+i}, v{PR+i+1}")
        if i + 2 < 24:
            a.e(f"v_max3_u32 v17, v17, v{PR+i+2}, v{PR+i+3}")
    a.e("v_max_u32 v16, v16, v17")
    a.e("v_cmp_eq_u32 vcc, -1, v16")
    a.e(f"s_sub_u32 s{S_SPIN}, s{S_SPIN}, 1")
    a.e("s_cbranch_scc1 LF_xok")
    a.e("s_cbranch_vccz LF_xok")
    fetch()
    a.e("s_branch LF_xchk")
    a.flush()
    a.st.vm = []
    a.e("LF_xok:")
    stamp(a, 14)
    for k in range(3):
        for i in range(16):
            src = PR + 8 * k + i // 2
            a.e(f"v_lshlrev_b32 v{80+i}, 16, v{src}" if i % 2 == 0 else f"v_and_b32 v{80+i}, 0xffff0000, v{src}")
        for i in range(0, 16, 2):
            a.e(f"v_pk_add_f32 {v(S_+i,2)}, {v(S_+i,2)}, {v(80+i,2)}")
    for b in range(4):
        for i in (0, 2):
            a.e(f"v_pk_fma_f32 {v(S_+4*b+i,2)}, {v(S_+4*b+i,2)}, {v(GACC+4*b+i,2)}, {v(GT+4*b+i,2)}")
        a.e(f"v_cvt_pk_bf16_f32 v{XR+2*b}, v{S_+4*b}, v{S_+4*b+1}")
        a.e(f"v_cvt_pk_bf16_f32 v{XR+2*b+1}, v{S_+4*b+2}, v{S_+4*b+3}")
        a.e(f"buffer_store_dwordx2 {v(XR+2*b,2)}, v{V_XA}, s[{SRD4}:{SRD4+3}], s{S_XO} offen offset:{b*32}")
    if STAMP:
        a.e("s_waitcnt vmcnt(0)")
    stamp(a, 15)
```

```python
from common import *
import p1, p3, p5, os
OPT = os.environ.get('OPT', '') + 'gcwzxAC'
from p1 import V_LANE, V_L16

SC = " sc1"
SRD_F = 88
F_KV, F_H, F_CTX, F_XCC, F_S = 0, 128, 256, 384, 512
V_DUM = 31
CODE_LINES = int(os.environ.get('CODE_LINES', '0'))
LDS_H = 131072
S_SPIN = 3
_uid = [0]


_stamp = stamp
def stamp(a, idx, grp=None):
    if 'M' in OPT and (grp or idx not in (0, 5, 9, 15)):
        return
    sel = [c for c in "STUV" if c in OPT]
    if grp in (True, 'S'):
        grp = 'S'
    if grp:
        if grp in OPT:
            _stamp(a, idx)
        return
    if sel and idx >= (10 if 'T' in sel else 8):
        return
    _stamp(a, idx)


def cap(fn, *args):
    t = Asm()
    fn(t, *args)
    return t.cur


def spread(lst, lo, hi, prio=5):
    n = len(lst)
    return [(lo + (i * (hi - lo + 1)) // n, prio, x) for i, x in enumerate(lst)]


def poll_load(dst, addr, srd_, soff="0"):
    return f"buffer_load_dword v{dst}, v{addr}, s[{srd_}:{srd_+3}], {soff} offen sc1"


def poll_check(a, dst, addr, srd_, expect, soff="0", on_spin=(), sleep=2):
    _uid[0] += 1
    L = f"L_poll{_uid[0]}"
    a.add(Need([v(dst)]))
    a.e(f"v_cmp_gt_u32 vcc, {expect}, v{dst}")
    a.e("s_nop 0")
    a.e(f"s_cbranch_vccz {L}_ok")
    a.flush()
    st = a.st.copy()
    a.e(f"s_mov_b32 s{S_SPIN}, 0x10000")
    a.add(list(on_spin))
    a.e(f"{L}:")
    if sleep:
        a.e(f"s_sleep {sleep}")
    a.e(poll_load(dst, addr, srd_, soff))
    a.e("s_waitcnt vmcnt(0)")
    a.e(f"v_cmp_gt_u32 vcc, {expect}, v{dst}")
    a.e(f"s_sub_u32 s{S_SPIN}, s{S_SPIN}, 1")
    a.e(f"s_cbranch_scc1 {L}_ok")
    a.e(f"s_cbranch_vccnz {L}")
    a.flush()
    a.st = st
    a.e(f"{L}_ok:")


def set_flag(ftype, t0, cond_wave, ts=60):
    return [f"v_mov_b32 v{t0}, 1", f"s_lshl_b32 s{ts}, s2, 10", f"s_cmp_eq_u32 s{S_WAVE}, {cond_wave}",
            f"s_cselect_b32 s{ts}, s{ts}, 0x40000",
            f"buffer_store_dword v{t0}, off, s[{SRD_F}:{SRD_F+3}], s{ts} offset:{ftype} sc1"]


V_CD, V_WD1 = 2, 3
S_CSO, S_WSO1, S_CM0, S_WM01 = 64, 72, 80, 81
WSO1 = [72, 73, 78, 79]
SRD_WK, SRD_WV = SRD2, SRD4
S_TC, S_TW = 64, 65


def k_dma_setup(a):
    L = V_LANE
    a.e(f"s_and_b32 s62, s{S_WAVE}, 1")
    a.e(f"s_lshl_b32 s63, s62, 2")
    a.e(f"v_and_b32 v20, 7, v{L}")
    a.e(f"v_lshrrev_b32 v21, 4, v{L}")
    a.e(f"v_xor_b32 v20, v20, v21")
    a.e(f"v_xor_b32 v20, s63, v20")
    a.e(f"v_lshlrev_b32 v20, 4, v20")
    a.e(f"v_lshrrev_b32 v22, 3, v{L}")
    a.e(f"v_lshl_add_u32 v{V_CD}, v22, 10, v20")
    a.e(f"s_lshl_b32 s63, s{S_P}, 18")
    a.e(f"v_add_u32 v{V_CD}, s63, v{V_CD}")
    a.e(f"s_lshr_b32 s63, s{S_WAVE}, 1")
    a.e(f"s_lshl_b32 s74, s63, 4")
    a.e(f"s_add_u32 s74, s74, s62")
    a.e(f"s_lshl_b32 s{S_CM0}, s74, 10")
    a.e(f"s_lshl_b32 s{S_CSO}, s74, 13")
    for j in range(1, 8):
        a.e(f"s_add_u32 s{S_CSO+j}, s{S_CSO}, {j*16384}")
    a.e(f"s_lshl_b32 s74, s62, 3")
    a.e(f"v_lshlrev_b32 v22, 1, v21")
    a.e(f"v_and_b32 v20, 15, v{L}")
    a.e(f"v_xor_b32 v20, v20, v22")
    a.e(f"v_xor_b32 v20, s74, v20")
    a.e(f"v_lshlrev_b32 v20, 4, v20")
    a.e(f"v_lshl_add_u32 v{V_WD1}, v21, 13, v20")
    a.e(f"s_lshl_b32 s74, s{S_H}, 8")
    a.e(f"v_add_u32 v{V_WD1}, s74, v{V_WD1}")
    a.e(f"s_lshl_b32 s63, s63, 3")
    a.e(f"s_lshl_b32 s74, s62, 1")
    a.e(f"s_add_u32 s63, s63, s74")
    a.e(f"s_lshl_b32 s{WSO1[0]}, s63, 15")
    for j in range(1, 4):
        a.e(f"s_add_u32 s{WSO1[j]}, s{WSO1[0]}, {((j&1)+4*(j>>1))*32768}")
    a.e(f"s_lshl_b32 s{S_WM01}, s63, 10")
    a.e(f"s_add_u32 s{S_WM01}, s{S_WM01}, {p1.LDS_W}")


def k_dma(stage):
    par = stage & 1
    g = []
    for j in range(8):
        g.append([f"s_add_u32 m0, s{S_CM0}, {par*32768 + j*2048}",
                  I(f"buffer_load_dwordx4 v{V_CD}, s[{SRD1}:{SRD1+3}], s{S_CSO+j} offen lds", tag=("p1", stage))])
    for mat in range(2):
        sr = SRD_WV if mat else SRD_WK
        for j in range(4):
            g.append([f"s_add_u32 m0, s{S_WM01}, {par*32768 + mat*16384 + ((j&1)+4*(j>>1))*1024}",
                      I(f"buffer_load_dwordx4 v{V_WD1}, s[{sr}:{sr+3}], s{WSO1[j]} offen lds", tag=("p1", stage))])
    g = [x for pair in zip(g[:8], g[8:]) for x in pair]
    adv = [f"v_add_u32 v{V_CD}, 128, v{V_CD}", f"v_add_u32 v{V_WD1}, 0x80000, v{V_WD1}"]
    return g, adv


def touch_setup(a):
    L = V_LANE
    a.e(f"v_lshrrev_b32 v{V_CD}, 2, v{L}")
    a.e(f"v_lshlrev_b32 v{V_CD}, 10, v{V_CD}")
    a.e(f"s_and_b32 s62, s{S_H}, 3")
    a.e(f"s_lshl_b32 s62, s62, 2")
    a.e(f"s_add_u32 s62, s62, s{S_W3}")
    a.e(f"s_lshl_b32 s62, s62, 14")
    a.e(f"s_lshl_b32 s63, s{S_P}, 18")
    a.e(f"s_add_u32 s{S_TC}, s62, s63")
    a.e(f"v_and_b32 v{V_WD1}, 32, v{L}")
    a.e(f"v_lshlrev_b32 v{V_WD1}, 8, v{V_WD1}")
    a.e(f"v_and_b32 v20, 16, v{L}")
    a.e(f"v_lshl_add_u32 v{V_WD1}, v20, 3, v{V_WD1}")
    a.e(f"s_lshl_b32 s62, s{S_P}, 2")
    a.e(f"s_add_u32 s62, s62, s{S_W3}")
    a.e(f"s_lshl_b32 s62, s62, 14")
    a.e(f"s_lshl_b32 s63, s{S_H}, 8")
    a.e(f"s_add_u32 s{S_TW}, s62, s63")


def touch_p1(stage):
    return [f"s_add_u32 s62, s{S_TC}, {stage*128}",
            f"buffer_load_dword v{V_DUM}, v{V_CD}, s[{SRD1}:{SRD1+3}], s62 offen",
            f"s_add_u32 s62, s{S_TW}, {stage*0x80000}",
            f"buffer_load_dword v{V_DUM}, v{V_WD1}, s[{SRD_WK}:{SRD_WK+3}], s62 offen",
            f"buffer_load_dword v{V_DUM}, v{V_WD1}, s[{SRD_WV}:{SRD_WV+3}], s62 offen"]


S_ROW = 77


def start_touch_setup(a):
    L = V_LANE
    a.e(f"s_and_b32 s62, s{S_H}, 3")
    a.e(f"s_lshl_b32 s62, s62, 3")
    a.e(f"s_add_u32 s62, s62, s{S_WAVE}")
    a.e(f"s_lshl_b32 s62, s62, 13")
    a.e(f"s_lshl_b32 s63, s{S_P}, 18")
    a.e(f"s_add_u32 s62, s62, s63")
    a.e(f"v_lshrrev_b32 v16, 2, v{L}")
    a.e(f"v_lshlrev_b32 v16, 10, v16")
    a.e(f"v_and_b32 v17, 2, v{L}")
    a.e(f"v_lshl_add_u32 v16, v17, 6, v16")
    a.e(f"v_add_u32 v16, s62, v16")
    a.e(f"s_lshl_b32 s62, s2, 3")
    a.e(f"s_add_u32 s62, s62, s{S_WAVE}")
    a.e(f"s_lshl_b32 s62, s62, 10")
    a.e(f"v_bfe_u32 v17, v{L}, 2, 3")
    a.e(f"v_max_u32 v17, 2, v17")
    a.e(f"v_lshl_add_u32 v17, v17, 7, s62")
    a.e(f"v_cmp_lt_u32 vcc, 31, v{L}")
    a.e(f"v_and_b32 v18, 32, v{L}")
    a.e(f"v_cndmask_b32 v16, v16, v17, vcc")
    a.e(f"v_lshlrev_b32 v18, 14, v18")
    a.e(f"v_and_b32 v19, 16, v{L}")
    a.e(f"v_lshl_add_u32 v18, v19, 3, v18")
    a.e(f"s_lshl_b32 s62, s{S_P}, 3")
    a.e(f"s_add_u32 s62, s62, s{S_WAVE}")
    a.e(f"s_lshl_b32 s62, s62, 13")
    a.e(f"s_lshl_b32 s63, s{S_H}, 8")
    a.e(f"s_add_u32 s62, s62, s63")
    a.e(f"v_add_u32 v18, s62, v18")


def start_touch(a):
    a.e(f"buffer_load_dword v{V_DUM}, v16, s[{SRD1}:{SRD1+3}], 0 offen")
    a.e(f"buffer_load_dword v{V_DUM}, v18, s[{SRD_WK}:{SRD_WK+3}], 0 offen")
    a.e(f"buffer_load_dword v{V_DUM}, v18, s[{SRD_WV}:{SRD_WV+3}], 0 offen")


LNB = (128, 144)


def ln_issue(a):
    srd(a, SRD0, P_X, 2097152)
    for r, b in enumerate(LNB):
        a.e(f"buffer_load_dwordx4 {v(b,4)}, v{V_L16}, s[{SRD0}:{SRD0+3}], s{S_ROW} offen offset:{r*1024}")


def ln_row(a, b, r):
    F, M, T, V_ = b + 4, b + 12, b + 13, b + 14
    for i in range(4):
        a.e(f"v_lshlrev_b32 v{F+2*i}, 16, v{b+i}")
        a.e(f"v_and_b32 v{F+1+2*i}, 0xffff0000, v{b+i}")
    for i in range(4):
        a.e(f"v_add_f32 v{b+i}, v{F+2*i}, v{F+1+2*i}")
    a.e(f"v_add_f32 v{b}, v{b}, v{b+1}")
    a.e(f"v_add_f32 v{b+2}, v{b+2}, v{b+3}")
    a.e(f"v_add_f32 v{M}, v{b}, v{b+2}")
    wave_sum(a, M, T)
    a.e(f"v_mul_f32 v{M}, 0x3b000000, v{M}")
    for h in range(2):
        for i in range(4):
            a.e(f"v_sub_f32 v{b+i}, v{F+4*h+i}, v{M}")
        if h == 0:
            a.e(f"v_mul_f32 v{V_}, v{b}, v{b}")
            a.e(f"v_mul_f32 v{V_+1}, v{b+1}, v{b+1}")
        else:
            a.e(f"v_fmac_f32 v{V_}, v{b}, v{b}")
            a.e(f"v_fmac_f32 v{V_+1}, v{b+1}, v{b+1}")
        a.e(f"v_fmac_f32 v{V_}, v{b+2}, v{b+2}")
        a.e(f"v_fmac_f32 v{V_+1}, v{b+3}, v{b+3}")
    a.e(f"v_add_f32 v{V_}, v{V_}, v{V_+1}")
    wave_sum(a, V_, T)
    a.e(f"v_mul_f32 v{V_}, 0x3b000000, v{V_}")
    round_bf16(a, M)
    round_bf16(a, V_)
    a.e(f"v_add_f32 v{V_}, 0x3727c5ac, v{V_}")
    round_bf16(a, V_)
    a.e(f"v_sqrt_f32 v{V_}, v{V_}")
    round_bf16(a, V_)
    a.e(f"v_rcp_f32 v{V_}, v{V_}")
    for i in range(8):
        a.e(f"v_sub_f32 v{F+i}, v{F+i}, v{M}")
    for i in range(4):
        a.e(f"v_cvt_pk_bf16_f32 v{b+i}, v{F+2*i}, v{F+1+2*i}")
    for i in range(4):
        a.e(f"v_lshlrev_b32 v{F+2*i}, 16, v{b+i}")
        a.e(f"v_and_b32 v{F+1+2*i}, 0xffff0000, v{b+i}")
    for i in range(8):
        a.e(f"v_mul_f32 v{F+i}, v{F+i}, v{V_}")
    for i in range(4):
        a.e(f"v_cvt_pk_bf16_f32 v{b+i}, v{F+2*i}, v{F+1+2*i}")
    a.e(f"ds_write_b128 v30, {v(b,4)} offset:{16*r}")


def ln_compute(a):
    a.e(f"s_lshl_b32 s60, s{S_W3}, 5")
    a.e(f"s_add_u32 s60, s60, {LDS_H}")
    a.e(f"v_lshlrev_b32 v30, 7, v{V_LANE}")
    a.e("v_add_u32 v30, s60, v30")
    r0, r1 = cap(ln_row, LNB[0], 0), cap(ln_row, LNB[1], 1)
    for x, y in zip(r0, r1):
        a.add([x, y])


def ln_store(a):
    L = V_LANE
    a.e(f"s_lshl_b32 s60, s{S_WAVE}, 10")
    a.e(f"s_add_u32 s60, s60, {LDS_H}")
    a.e(f"v_add_u32 v20, s60, v{V_L16}")
    a.e("ds_read_b128 v[16:19], v20")
    a.e(f"v_lshrrev_b32 v21, 3, v{L}")
    a.e(f"v_lshlrev_b32 v21, 8, v21")
    a.e(f"v_and_b32 v22, 7, v{L}")
    a.e(f"v_lshl_add_u32 v21, v22, 4, v21")
    a.e(f"s_lshr_b32 s61, s2, 1")
    a.e("s_lshl_b32 s61, s61, 14")
    a.e(f"s_and_b32 s60, s2, 1")
    a.e("s_lshl_b32 s60, s60, 7")
    a.e("s_add_u32 s61, s61, s60")
    a.e(f"s_lshl_b32 s60, s{S_WAVE}, 11")
    a.e("s_add_u32 s61, s61, s60")
    a.e(f"buffer_store_dwordx4 v[16:19], v21, s[{SRD3}:{SRD3+3}], s61 offen{SC}", tag="xn")


def setup_reads(a):
    L = V_LANE
    V_CA, V_WA_ = p1.V_CA, p1.V_WA
    a.e(f"v_and_b32 v20, 15, v{L}")
    a.e(f"v_lshrrev_b32 v21, 4, v{L}")
    a.e(f"v_lshrrev_b32 v22, 1, v20")
    a.e(f"v_xor_b32 v22, v22, v21")
    a.e(f"v_lshlrev_b32 v22, 4, v22")
    a.e(f"v_lshl_add_u32 v22, v20, 7, v22")
    a.e(f"s_lshl_b32 s63, s{S_W3}, 13")
    a.e(f"v_add_u32 v{V_CA}, s63, v22")
    a.e(f"v_xor_b32 v{V_CA+1}, 64, v{V_CA}")
    a.e(f"v_lshrrev_b32 v22, 2, v20")
    a.e(f"v_and_b32 v23, 1, v21")
    a.e(f"v_lshl_add_u32 v23, v23, 2, v22")
    a.e(f"v_lshl_add_u32 v22, v21, 3, v22")
    a.e(f"v_lshlrev_b32 v22, 8, v22")
    a.e(f"v_and_b32 v24, 3, v{L}")
    a.e(f"v_lshl_add_u32 v22, v24, 3, v22")
    a.e(f"s_lshr_b32 s74, s{S_WAVE}, 2")
    a.e(f"s_lshl_b32 s74, s74, 14")
    a.e(f"s_add_u32 s74, s74, {p1.LDS_W}")
    a.e(f"v_add_u32 v22, s74, v22")
    for d in range(8):
        a.e(f"v_xor_b32 v24, {d}, v23")
        a.e(f"v_lshl_add_u32 v{V_WA_+d}, v24, 5, v22")


def late_touch(a, which):
    L = V_LANE
    if which < 0:
        k = -which - 1
        if k == 0:
            a.e(f"v_and_b32 v24, 32, v{L}")
            a.e(f"v_lshlrev_b32 v24, 1, v24")
            a.e(f"v_bfe_u32 v25, v{L}, 4, 1")
            a.e(f"v_add_u32 v24, v24, v25")
            a.e(f"s_lshl_b32 s62, s{S_P}, 2")
            a.e(f"s_add_u32 s62, s62, s{S_W3}")
            a.e(f"s_lshl_b32 s62, s62, 1")
            a.e(f"v_add_u32 v24, s62, v24")
            a.e(f"v_mul_u32_u24 v25, 3584, v24")
            a.e(f"s_lshl_b32 s63, s{S_H}, 7")
            a.e(f"v_add_u32 v25, s63, v25")
            a.e(f"v_lshlrev_b32 v24, 13, v24")
            a.e(f"v_and_b32 v20, 8, v{L}")
            a.e(f"v_lshl_add_u32 v24, v20, 4, v24")
            a.e(f"s_lshl_b32 s62, s{S_H}, 8")
            a.e(f"v_add_u32 v24, s62, v24")
            srd(a, SRD5, P_B1, 3584)
            a.e(f"buffer_load_dword v{V_DUM}, off, s[{SRD5}:{SRD5+3}], s63")
            srd(a, SRD5, P_WQ, 0x400000)
            srd(a, 92 if not STAMP else SRD0, P_W1, 512 * 3584)
        w1 = 92 if not STAMP else (SRD0 if (k < 2 or 'y' in OPT) else SRD1)
        a.e(f"s_mov_b32 s62, {k*128*8192}")
        a.e(f"buffer_load_dword v{V_DUM}, v24, s[{SRD5}:{SRD5+3}], s62 offen")
        a.e(f"s_mov_b32 s62, {k*128*3584}")
        a.e(f"buffer_load_dword v{V_DUM}, v25, s[{w1}:{w1+3}], s62 offen")
    elif which == 0:
        srd(a, SRD0, P_WQ, 0x400000)
        a.e(f"v_lshrrev_b32 v21, 2, v{L}")
        a.e(f"v_lshlrev_b32 v21, 13, v21")
        a.e(f"v_and_b32 v20, 2, v{L}")
        a.e(f"v_lshl_add_u32 v20, v20, 6, v21")
        a.e(f"s_lshl_b32 s62, s{S_P}, 19")
        a.e(f"s_lshl_b32 s63, s{S_W3}, 17")
        a.e(f"s_add_u32 s62, s62, s63")
        a.e(f"s_lshl_b32 s63, s{S_H}, 8")
        a.e(f"s_add_u32 s62, s62, s63")
        a.e(f"buffer_load_dword v{V_DUM}, v20, s[{SRD0}:{SRD0+3}], s62 offen")
    elif which == 1:
        srd(a, SRD0, P_W1, 512 * 3584)
        a.e(f"v_lshrrev_b32 v20, 2, v{L}")
        a.e(f"v_mul_u32_u24 v20, 3584, v20")
        a.e(f"s_lshl_b32 s62, s{S_P}, 2")
        a.e(f"s_add_u32 s62, s62, s{S_W3}")
        a.e(f"s_mul_i32 s62, s62, {16*3584}")
        a.e(f"s_lshl_b32 s63, s{S_H}, 7")
        a.e(f"s_add_u32 s62, s62, s63")
        a.e(f"buffer_load_dword v{V_DUM}, v20, s[{SRD0}:{SRD0+3}], s62 offen")
        srd(a, SRD0, P_B1, 3584)
        a.e(f"buffer_load_dword v{V_DUM}, off, s[{SRD0}:{SRD0+3}], s63")
    elif which == 2:
        srd(a, SRD0, P_WO, 0x400000)
        a.e(f"v_lshrrev_b32 v20, 1, v{L}")
        a.e(f"v_lshlrev_b32 v20, 7, v20")
        a.e(f"s_lshl_b32 s62, s2, 2")
        a.e(f"s_add_u32 s62, s62, s{S_W3}")
        a.e(f"s_lshl_b32 s63, s62, 12")
        a.e(f"buffer_load_dword v{V_DUM}, v20, s[{SRD0}:{SRD0+3}], s63 offen")
    else:
        srd(a, SRD0, P_W2, 1792 * 1024)
        a.e(f"v_lshrrev_b32 v20, 2, v{L}")
        a.e(f"v_min_u32 v20, 13, v20")
        a.e(f"v_lshlrev_b32 v20, 7, v20")
        a.e(f"s_lshl_b32 s62, s2, 2")
        a.e(f"s_add_u32 s62, s62, s{S_W3}")
        a.e(f"s_mul_i32 s63, s62, 1792")
        a.e(f"buffer_load_dword v{V_DUM}, v20, s[{SRD0}:{SRD0+3}], s63 offen")


def tlb_warm(a):
    L = V_LANE
    srd(a, SRD0, P_WS, 0x6000000)
    a.e(f"s_lshl_b32 s62, s{S_H}, 20")
    a.e(f"s_lshl_b32 s63, s{S_P}, 17")
    a.e(f"s_add_u32 s62, s62, s63")
    a.e(f"s_add_u32 s62, s62, {hex(WS_KV)}")
    a.e(f"v_mov_b32 v20, s62")
    for lane, (blk, stride, base, hs) in enumerate([("A", 8 * 128 * 1024, WS_CTX, 12), ("B", 8 * 128 * 1024, WS_CTX, 12),
                                                    ("A", 8 * 56 * 1024, WS_H, 11), ("B", 8 * 56 * 1024, WS_H, 11)], 1):
        if blk == "A":
            a.e(f"s_mul_i32 s62, s{S_P}, {stride}")
        else:
            a.e(f"s_sub_u32 s62, 15, s{S_P}")
            a.e(f"s_mul_i32 s62, s62, {stride}")
        a.e(f"s_min_u32 s63, s{S_H}, {31 if hs == 12 else 27}")
        a.e(f"s_lshl_b32 s63, s63, {hs}")
        a.e(f"s_add_u32 s62, s62, s63")
        a.e(f"s_add_u32 s62, s62, {hex(base)}")
        a.e(f"v_writelane_b32 v20, s62, {lane}")
    a.e(f"s_cmp_lt_u32 s{S_H}, 28")
    a.e("s_cselect_b64 exec, 31, 7")
    a.e(f"buffer_load_dword v{V_DUM}, v20, s[{SRD0}:{SRD0+3}], 0 offen sc1")
    a.e("s_mov_b64 exec, -1")
    srd(a, SRD0, P_OUT, 0x200000)
    a.e(f"buffer_load_dword v{V_DUM}, off, s[{SRD0}:{SRD0+3}], 0")
    srd(a, SRD0, P_B2, 1024)
    a.e(f"buffer_load_dword v{V_DUM}, off, s[{SRD0}:{SRD0+3}], 0")


def p1_stage(a, isv, st, fl1=(), pre_bar=None, fl2=(), wait=None):
    par = st & 1
    FA, FB = p1.F0, p1.F0 + 48
    NSP = 16 if 'x' in OPT else 11
    a.add(Need([v(FA, 48)]))
    rd = p1.p1_reads(par, 1, FB)
    fl = [(i + i // 4, 0, x) for i, x in enumerate(rd)] + list(fl1)
    if 1 <= st <= 6 and not isv:
        g, adv = k_dma(st + 1)
        for j, (m0, ld) in enumerate(g[NSP:]):
            fl.append((3 * j, 2, m0))
            fl.append((3 * j + 1, 1, ld))
        fl.append((16, 2, adv[0]))
        fl.append((17, 2, adv[1]))
    a.add(weave(p1.p1_mfmas(isv, FA, st == 0), fl))
    if pre_bar:
        pre_bar()
    a.add([WaitTag(lambda t: t == ("p1", st + 1) or (wait is not None and t == wait), lg0=True), "s_barrier"])
    fl = list(fl2)
    if st < 7:
        rd = p1.p1_reads(1 - par, 0, FA)
        fl += [(i + i // 4, 0, x) for i, x in enumerate(rd)]
    if st < 6 and not isv:
        g, adv = k_dma(st + 2)
        step = 1.5 if NSP == 16 else 2.9
        for j, (m0, ld) in enumerate(g[:NSP]):
            fl.append((int(step * j), 2, m0))
            fl.append((int(step * j) + 1, 1, ld))
    a.add(weave(p1.p1_mfmas(isv, FB, False), fl))


S_KVS = 80
KVST = [0, 0, 1, 1, 2, 2, 3, 3, 4, 4, 5, 5] if 'p' not in OPT else [0, 0, 0, 1, 1, 1, 2, 2, 2, 3, 3, 3]
KVFLAG = 6 if 'p' not in OPT else 5
PK = 112


def p1_pack(a, isv):
    ACC = p1.ACC
    a.e(f"s_lshl_b32 s60, s{S_H}, 20")
    a.e(f"s_lshl_b32 s61, s{S_P}, 2")
    a.e(f"s_add_u32 s61, s61, s{S_W3}")
    a.e(f"s_lshl_b32 s61, s61, 15")
    a.e(f"s_add_u32 s60, s60, s61")
    a.e(f"s_add_u32 s{S_KVS}, s60, {WS_KV + (16384 if isv else 0)}")
    for k in range(1, 4):
        a.e(f"s_add_u32 s{S_KVS+k}, s{S_KVS}, {4096*k}")

    def src(k, t):
        if not isv:
            return ACC + 4 * ((2 * t) * 4 + k), ACC + 4 * ((2 * t + 1) * 4 + k)
        u, d = k >> 1, 2 * t + (k & 1)
        return ACC + 4 * (d * 4 + 2 * u), ACC + 4 * (d * 4 + 2 * u + 1)

    def pk(dst, b0, b1):
        a.e(f"v_cvt_pk_bf16_f32 v{dst}, v{b0}, v{b0+1}")
        a.e(f"v_cvt_pk_bf16_f32 v{dst+1}, v{b0+2}, v{b0+3}")
        a.e(f"v_cvt_pk_bf16_f32 v{dst+2}, v{b1}, v{b1+1}")
        a.e(f"v_cvt_pk_bf16_f32 v{dst+3}, v{b1+2}, v{b1+3}")
    for k in range(4):
        pk(80 + 4 * k, *src(k, 0))
        a.add(kv_store(f"buffer_store_dwordx4 {v(80+4*k,4)}, v{V_L16}, s[{SRD3}:{SRD3+3}], s{S_KVS+k} offen"))
    for t in range(1, 4):
        for k in range(4):
            pk(PK + 4 * ((t - 1) * 4 + k), *src(k, t))


class Sel(I):
    def __init__(self, text):
        I.__init__(self, text + SC, tag="kvst")
        _uid[0] += 1
        L = f"L_sel{_uid[0]}"
        self.t = chr(10).join([f"s_cbranch_vccnz {L}a", f"  {text}{SC}", f"  s_branch {L}b", f"{L}a:", f"  {text}", f"{L}b:"])


def kv_store(text):
    return I(text + SC, tag="kvst") if 'A' in OPT else Sel(text)


def kv_deferred(i):
    t, k = 1 + i // 4, i % 4
    return kv_store(f"buffer_store_dwordx4 {v(PK+4*i,4)}, v{V_L16}, s[{SRD3}:{SRD3+3}], s{S_KVS+k} offen offset:{t*1024}")


def xcc_load():
    return [f"v_and_b32 v27, 7, v{V_LANE}", "v_lshlrev_b32 v27, 15, v27", "s_and_b32 s60, s2, 31", "s_lshl_b32 s60, s60, 10",
            f"buffer_load_dword v26, v27, s[{SRD_F}:{SRD_F+3}], s60 offen offset:{F_XCC} sc1"]


def xcc_check():
    return ["s_getreg_b32 s60, hwreg(HW_REG_XCC_ID, 0, 4)", "v_cmp_ne_u32 vcc, s60, v26", "s_nop 1", "s_cmp_eq_u64 vcc, 0",
            "s_cselect_b64 vcc, -1, 0"]


V_QA2 = 20
AF = 64
QSLOT = [0, 16384, 65536, 81920]


def p2_dma(stage):
    sl = stage & 3
    r = []
    for j in range(2):
        r.append(f"s_add_u32 m0, s{p3.S_QM0}, {QSLOT[sl] + j*1024}")
        r.append(I(f"buffer_load_dwordx4 v{p3.V_QD}, s[{SRD0}:{SRD0+3}], s{p3.S_QSO+j} offen lds", tag=("p2", stage)))
    r.append(f"s_add_u32 m0, s{p3.S_HM0}, {sl*8192}")
    r.append(I(f"buffer_load_dwordx4 v{p3.V_HD}, s[{SRD1}:{SRD1+3}], s{p3.S_HSO} offen lds", tag=("p2", stage)))
    r += [f"v_add_u32 v{p3.V_QD}, 0x80000, v{p3.V_QD}", f"v_add_u32 v{p3.V_HD}, {64*3584}, v{p3.V_HD}"]
    return r


def p2_read(stage, ks, d):
    sl = stage & 3
    r = []
    for e in range(2):
        if d < 8:
            base = (p3.V_QA if sl < 2 else V_QA2) + d
            r.append(f"ds_read_b64_tr_b16 {v(AF+4*d+2*e,2)}, v{base} offset:{(sl&1)*16384 + ks*8192 + e*1024}")
        else:
            r.append(f"ds_read_b64_tr_b16 {v(AF+4*d+2*e,2)}, v{p3.V_HA+d-8} offset:{sl*8192 + ks*4096 + e*512}")
    return r


def p2_part(k, nxt, extra):
    fl = list(extra)
    fl.append((-1, 0, Need([v(AF, 24), v(p3.BR + 8 * (k & 3), 8)])))
    fl.append((11, 9, Need([v(AF + 24, 24)])))
    if nxt:
        for d in range(12):
            r = p2_read(nxt[0], nxt[1], d)
            fl.append((2 * d + 1, 0, r[0]))
            fl.append((min(2 * d + 2, 23), 0, r[1]))
    return weave(p3.p2_mfmas(k, AF), fl)


def p2_setup_reads(a):
    L = V_LANE
    t = 72
    a.e(f"v_and_b32 v{t}, 15, v{L}")
    a.e(f"v_lshrrev_b32 v{t+1}, 4, v{L}")
    a.e(f"v_lshrrev_b32 v{t+2}, 2, v{t}")
    a.e(f"v_and_b32 v{t+3}, 1, v{t+1}")
    a.e(f"v_lshl_add_u32 v{t+4}, v{t+3}, 2, v{t+2}")
    a.e(f"v_lshrrev_b32 v{t+5}, 1, v{t+2}")
    a.e(f"v_lshl_add_u32 v{t+5}, v{t+3}, 1, v{t+5}")
    a.e(f"v_lshl_add_u32 v{t+2}, v{t+1}, 3, v{t+2}")
    a.e(f"v_and_b32 v{t+6}, 3, v{L}")
    a.e(f"v_lshlrev_b32 v{t+6}, 3, v{t+6}")
    a.e(f"v_lshl_add_u32 v{t+7}, v{t+2}, 8, v{t+6}")
    a.e(f"v_lshl_add_u32 v13, v{t+2}, 7, v{t+6}")
    a.e(f"v_add_u32 v13, {LDS_H}, v13")
    for d in range(8):
        a.e(f"v_xor_b32 v{t}, {d}, v{t+4}")
        a.e(f"v_lshl_add_u32 v{p3.V_QA+d}, v{t}, 5, v{t+7}")
        a.e(f"v_add_u32 v{V_QA2+d}, 0x10000, v{p3.V_QA+d}")
    for f in range(4):
        a.e(f"v_xor_b32 v{t}, {f}, v{t+5}")
        a.e(f"v_lshl_add_u32 v{p3.V_HA+f}, v{t}, 5, v13")


BIAS = 64


def bias_load(a):
    L = V_LANE
    srd(a, SRD2, P_B1, 1792 * 2)
    a.e(f"v_lshrrev_b32 v30, 4, v{L}")
    a.e(f"v_lshlrev_b32 v30, 3, v30")
    a.e(f"s_lshl_b32 s63, s{S_H}, 7")
    for f in range(4):
        a.e(f"buffer_load_dwordx2 {v(BIAS+2*f,2)}, v30, s[{SRD2}:{SRD2+3}], s63 offen offset:{f*32}")


def bias_apply(a):
    for f in range(4):
        for qb in range(2):
            b = p3.HACC + 4 * (f * 2 + qb)
            a.e(f"v_lshlrev_b32 v{b}, 16, v{BIAS+2*f}")
            a.e(f"v_and_b32 v{b+1}, 0xffff0000, v{BIAS+2*f}")
            a.e(f"v_lshlrev_b32 v{b+2}, 16, v{BIAS+2*f+1}")
            a.e(f"v_and_b32 v{b+3}, 0xffff0000, v{BIAS+2*f+1}")


def xload(k):
    r = []
    for qb in range(2):
        dst = p3.BR + 4 * ((k & 3) * 2 + qb)
        so = f"s{p3.S_16K}" if qb else "0"
        r.append(f"buffer_load_dwordx4 {v(dst,4)}, v{p3.V_XO}, s[{SRD3}:{SRD3+3}], {so} offen offset:{(k&1)*1024}{SC}")
    if k & 1:
        r.append(f"v_add_u32 v{p3.V_XO}, 2048, v{p3.V_XO}")
    return r


def xn_setup(a):
    a.e(f"s_lshl_b32 s63, s{p3.S_Q0}, 10")
    a.e(f"v_add_u32 v{p3.V_XO}, s63, v{V_L16}")
    a.e(f"s_mov_b32 s{p3.S_16K}, 16384")


def xn_touch(a):
    a.e(f"s_and_b32 s62, s{S_H}, 3")
    a.e(f"s_lshl_b32 s62, s62, 2")
    a.e(f"s_add_u32 s62, s62, s{S_W3}")
    a.e(f"s_sub_u32 s63, 15, s{S_P}")
    a.e(f"s_cmp_lt_u32 s62, 8")
    a.e(f"s_cselect_b32 s63, s{S_P}, s63")
    a.e(f"s_lshl_b32 s63, s63, 3")
    a.e(f"s_and_b32 s62, s62, 7")
    a.e(f"s_add_u32 s62, s62, s63")
    a.e(f"s_lshl_b32 s62, s62, 14")
    a.e(f"v_lshlrev_b32 v30, 7, v{V_LANE}")
    a.e(f"buffer_load_dword v{V_DUM}, v30, s[{SRD3}:{SRD3+3}], s62 offen sc1")
    a.e(f"s_add_u32 s62, s62, 8192")
    a.e(f"buffer_load_dword v{V_DUM}, v30, s[{SRD3}:{SRD3+3}], s62 offen sc1")


V_WD, V_AD, V_PD, V_PA = 8, 9, 11, 12
V_WA, V_BA = 22, 26
V_GA, V_GB = 27, 29
V_XA, V_BB = 10, 13
S_J, S_RB, S_CB, S_TILE = 6, 7, 8, 9
S_WSO, S_ASO, S_WM0, S_AM0 = 10, 16, 18, 19
S_PP, S_XO = 20, 21
FR, GACC, SACC, XR, BR2 = 32, 128, 192, 144, 152
NG, NS = 14, 16
NT = NG + NS
SRD_W2, SRD_WO, SRD_H, SRD_C = SRD0, SRD1, SRD2, SRD5
LDS_OWN = 131072
CTXFLAG = 6


def smask(stage):
    return 0x10000 if stage % 2 == 0 else 0x8000


def p5_ids(a):
    a.e(f"s_and_b32 s60, s2, 7")
    a.e(f"s_lshr_b32 s61, s2, 3")
    a.e(f"s_and_b32 s{S_J}, s60, 3")
    a.e(f"s_lshr_b32 s60, s60, 2")
    a.e(f"s_lshl_b32 s60, s60, 3")
    a.e(f"s_lshr_b32 s{S_RB}, s61, 2")
    a.e(f"s_add_u32 s{S_RB}, s{S_RB}, s60")
    a.e(f"s_and_b32 s{S_CB}, s61, 3")
    a.e(f"s_lshl_b32 s{S_TILE}, s{S_RB}, 2")
    a.e(f"s_add_u32 s{S_TILE}, s{S_TILE}, s{S_CB}")
    a.e(f"s_sub_u32 s60, 15, s{S_RB}")
    a.e(f"s_min_u32 s{S_PP}, s60, s{S_RB}")
    srd(a, SRD_W2, P_W2, 1792 * 1024)
    srd(a, SRD_WO, P_WO, 0x400000)
    srd(a, SRD_H, P_WS, 0x700000, WS_H)


def ring0(a, dst):
    a.e(f"s_and_b32 s{dst}, s{p3.S_T}, 2")
    a.e(f"s_cmp_eq_u32 s{dst}, 0")
    a.e(f"s_mov_b32 s61, 0x10000")
    a.e(f"s_cselect_b32 s{dst}, 0x8000, s61")


def mbase2(a, dst):
    a.e(f"s_and_b32 s{dst}, s{S_J}, 1")
    a.e(f"s_lshl_b32 s{dst}, s{dst}, 7")
    a.e(f"s_lshl_b32 s61, s{S_CB}, 8")
    a.e(f"s_add_u32 s{dst}, s{dst}, s61")


def qbase16(a, dst):
    a.e(f"s_lshr_b32 s{dst}, s{S_J}, 1")
    a.e(f"s_lshl_b32 s{dst}, s{dst}, 2")
    a.e(f"s_lshl_b32 s61, s{S_RB}, 3")
    a.e(f"s_add_u32 s{dst}, s{dst}, s61")


def loader_setup(a, skip):
    L = V_LANE
    a.e(f"v_lshrrev_b32 v17, 4, v{L}")
    a.e(f"v_lshlrev_b32 v17, 1, v17")
    a.e(f"v_and_b32 v16, 7, v{L}")
    a.e(f"v_xor_b32 v16, v16, v17")
    a.e(f"v_lshlrev_b32 v16, 4, v16")
    a.e(f"v_lshrrev_b32 v17, 3, v{L}")
    a.e(f"v_lshl_add_u32 v16, v17, 10, v16")
    mbase2(a, 62)
    if skip:
        a.e(f"s_add_u32 s62, s62, {skip*0x20000}")
    a.e(f"v_add_u32 v{V_WD}, s62, v16")
    a.e(f"s_lshl_b32 s{S_WSO}, s{S_W3}, 15")
    for j in range(1, 4):
        a.e(f"s_add_u32 s{S_WSO+j}, s{S_WSO}, {j*8192}")
    ring0(a, 60)
    if skip:
        assert skip == 2
        a.e("s_xor_b32 s60, s60, 0x18000")
    a.e(f"s_lshl_b32 s{S_WM0}, s{S_W3}, 12")
    a.e(f"s_add_u32 s{S_WM0}, s{S_WM0}, s60")
    a.e(f"s_add_u32 s{S_AM0}, s{S_WM0}, 16384")
    qbase16(a, 62)
    a.e(f"s_add_u32 s62, s62, s{S_W3}")
    a.e(f"s_mul_i32 s62, s62, {56*1024}")
    if skip:
        a.e(f"s_add_u32 s62, s62, {skip*4096}")
    a.e(f"v_add_u32 v{V_AD}, s62, v{V_L16}")


def s_phase_w(a):
    L = V_LANE
    a.e(f"s_and_b32 s62, s{S_W3}, 1")
    a.e(f"s_lshl_b32 s63, s62, 2")
    a.e(f"v_lshrrev_b32 v17, 4, v{L}")
    a.e(f"v_or_b32 v18, s63, v17")
    a.e(f"v_lshlrev_b32 v18, 1, v18")
    a.e(f"v_and_b32 v16, 15, v{L}")
    a.e(f"v_xor_b32 v16, v16, v18")
    a.e(f"v_lshlrev_b32 v16, 4, v16")
    a.e(f"v_lshl_add_u32 v16, v17, 10, v16")
    a.e(f"s_lshl_b32 s63, s{S_CB}, 8")
    a.e(f"s_lshl_b32 s61, s{S_J}, 20")
    a.e(f"s_add_u32 s63, s63, s61")
    a.e(f"v_add_u32 v{V_WD}, s63, v16")
    a.e(f"s_lshr_b32 s63, s{S_W3}, 1")
    a.e(f"s_lshl_b32 s63, s63, 3")
    a.e(f"s_add_u32 s63, s63, s62")
    a.e(f"s_lshl_b32 s{S_WSO}, s63, 12")
    for j in range(1, 4):
        a.e(f"s_add_u32 s{S_WSO+j}, s{S_WSO}, {j*8192}")
    a.e(f"s_and_b32 s{S_WM0}, s{S_WM0}, 0x18000")
    a.e(f"s_lshl_b32 s63, s63, 10")
    a.e(f"s_add_u32 s{S_WM0}, s{S_WM0}, s63")


def s_phase_a(a):
    a.e(f"s_lshl_b32 s63, s{S_RB}, 3")
    a.e(f"s_lshl_b32 s62, s{S_W3}, 1")
    a.e(f"s_add_u32 s63, s63, s62")
    a.e(f"s_lshl_b32 s{S_ASO}, s63, 17")
    a.e(f"s_add_u32 s{S_ASO+1}, s{S_ASO}, 0x20000")
    a.e(f"s_lshl_b32 s63, s{S_J}, 15")
    a.e(f"v_add_u32 v{V_AD}, s63, v{V_L16}")


def dma_w(stage):
    if 'm' in OPT and stage > 3:
        return []
    isg = stage < NG
    ws = SRD_W2 if isg else SRD_WO
    r = cap(s_phase_w) if stage == NG else []
    for j in range(4):
        r.append(f"s_add_u32 m0, s{S_WM0}, {j*(1024 if isg else 2048)}")
        r.append(I(f"buffer_load_dwordx4 v{V_WD}, s[{ws}:{ws+3}], s{S_WSO+j} offen lds", tag=("p5", stage)))
    r.append(f"v_add_u32 v{V_WD}, {hex(0x20000 if isg else 0x10000)}, v{V_WD}")
    r.append(f"s_xor_b32 s{S_WM0}, s{S_WM0}, {hex(smask(stage))}")
    return r


def dma_a(stage):
    if 'm' in OPT and stage > 3:
        return []
    r = []
    if stage < NG:
        r.append(f"s_mov_b32 m0, s{S_AM0}")
        for ks in range(4):
            r.append(I(f"buffer_load_dwordx4 v{V_AD}, s[{SRD_H}:{SRD_H+3}], 0 offen offset:{ks*1024}{SC} lds", tag=("p5", stage)))
        r.append(f"v_add_u32 v{V_AD}, 4096, v{V_AD}")
    else:
        if stage == NG:
            r += cap(s_phase_a)
        for i in range(2):
            r.append(f"s_add_u32 m0, s{S_AM0}, {i*2048}")
            for ks in range(2):
                r.append(I(f"buffer_load_dwordx4 v{V_AD}, s[{SRD_C}:{SRD_C+3}], s{S_ASO+i} offen offset:{ks*1024}{SC} lds", tag=("p5", stage)))
        r.append(f"v_add_u32 v{V_AD}, 2048, v{V_AD}")
    r.append(f"s_xor_b32 s{S_AM0}, s{S_AM0}, {hex(smask(stage))}")
    return r


def flag_addr(a, first, n, ftype):
    L = V_LANE
    a.e(f"v_min_u32 v16, {n-1}, v{L}")
    if first is not None:
        a.e(f"v_add_u32 v16, s{first}, v16")
    a.e(f"v_lshrrev_b32 v17, 2, v16")
    a.e(f"v_and_b32 v16, 3, v16")
    a.e(f"v_lshl_add_u32 v16, v16, 3, v17")
    a.e(f"s_lshl_b32 s62, s{S_PP}, 5")
    a.e(f"v_add_u32 v16, s62, v16")
    a.e(f"v_lshlrev_b32 v16, 10, v16")
    a.e(f"v_add_u32 v{V_PA}, {ftype}, v16")


def compute_setup(a):
    L = V_LANE
    ring0(a, 60)
    if NG % 4 == 2:
        a.e("s_xor_b32 s74, s60, 0x18000")
    else:
        assert NG % 4 == 0
        a.e("s_mov_b32 s74, s60")
    a.e(f"v_and_b32 v16, 15, v{L}")
    a.e(f"v_lshrrev_b32 v17, 4, v{L}")
    a.e(f"v_lshrrev_b32 v18, 2, v16")
    a.e(f"v_lshl_add_u32 v18, v17, 2, v18")
    a.e(f"v_and_b32 v19, 7, v18")
    a.e(f"v_and_b32 v20, 3, v{L}")
    a.e(f"v_lshlrev_b32 v20, 3, v20")
    a.e(f"v_lshl_add_u32 v21, v18, 7, v20")
    a.e(f"v_lshl_add_u32 v18, v18, 8, v20")
    a.e(f"v_add_u32 v18, s74, v18")
    a.e(f"v_add_u32 v21, s60, v21")
    a.e(f"v_lshrrev_b32 v30, 1, v19")
    a.e(f"s_and_b32 s62, s{S_W3}, 1")
    a.e(f"s_lshl_b32 s63, s62, 1")
    a.e(f"s_lshl_b32 s62, s62, 2")
    a.e(f"v_xor_b32 v19, s62, v19")
    a.e(f"v_xor_b32 v30, s63, v30")
    for m in range(4):
        a.e(f"v_xor_b32 v20, {m}, v19")
        a.e(f"v_lshl_add_u32 v{V_WA+m}, v20, 5, v18")
    for m in range(2):
        a.e(f"v_xor_b32 v20, {m}, v30")
        a.e(f"v_lshl_add_u32 v{V_GA+m}, v20, 5, v21")
    a.e(f"s_lshr_b32 s62, s{S_W3}, 1")
    a.e(f"s_lshl_b32 s62, s62, 13")
    a.e(f"s_add_u32 s62, s62, 16384")
    a.e(f"s_add_u32 s63, s62, s74")
    a.e(f"v_add_u32 v{V_BA}, s63, v{V_L16}")
    a.e(f"s_add_u32 s63, s62, s60")
    a.e(f"v_add_u32 v{V_GB}, s63, v{V_L16}")
    a.e(f"v_lshlrev_b32 v{V_BB}, 3, v17")
    a.e(f"v_lshl_add_u32 v{V_XA}, v16, 10, v{V_BB}")
    mbase2(a, 62)
    a.e(f"s_and_b32 s63, s{S_W3}, 1")
    a.e(f"s_lshl_b32 s63, s63, 6")
    a.e(f"s_add_u32 s62, s62, s63")
    a.e(f"v_add_u32 v{V_BB}, s62, v{V_BB}")
    qbase16(a, 63)
    a.e(f"s_lshr_b32 s61, s{S_W3}, 1")
    a.e(f"s_lshl_b32 s61, s61, 1")
    a.e(f"s_add_u32 s63, s63, s61")
    a.e(f"s_lshl_b32 s63, s63, 14")
    a.e(f"s_add_u32 s{S_XO}, s63, s62")


def p4_touch(a):
    L = V_LANE
    qbase16(a, 60)
    a.e(f"s_add_u32 s60, s60, s{S_CB}")
    a.e(f"s_lshl_b32 s60, s60, 2")
    a.e(f"s_add_u32 s60, s60, s{S_W3}")
    a.e(f"s_mul_i32 s60, s60, {14*1024}")
    a.e(f"v_lshlrev_b32 v16, 7, v{L}")
    a.e(f"buffer_load_dword v{V_DUM}, v16, s[{SRD_H}:{SRD_H+3}], s60 offen sc1")
    a.e(f"v_min_u32 v16, 47, v{L}")
    a.e(f"v_lshlrev_b32 v16, 7, v16")
    a.e(f"s_add_u32 s60, s60, 8192")
    a.e(f"buffer_load_dword v{V_DUM}, v16, s[{SRD_H}:{SRD_H+3}], s60 offen sc1")
    a.e(f"s_and_b32 s60, s{S_RB}, 7")
    a.e(f"s_lshl_b32 s60, s60, 2")
    a.e(f"s_add_u32 s60, s60, s{S_W3}")
    mbase2(a, 62)
    a.e(f"s_mul_i32 s61, s60, {56*1024}")
    a.e(f"s_add_u32 s61, s61, s62")
    a.e(f"v_min_u32 v16, 55, v{L}")
    a.e(f"v_lshlrev_b32 v16, 10, v16")
    a.e(f"buffer_load_dword v{V_DUM}, v16, s[{SRD_W2}:{SRD_W2+3}], s61 offen")
    a.e(f"v_lshrrev_b32 v17, 1, v{L}")
    a.e(f"v_and_b32 v18, 1, v{L}")
    a.e(f"v_lshlrev_b32 v18, 7, v18")
    a.e(f"v_lshl_add_u32 v17, v17, 10, v18")
    a.e(f"s_lshl_b32 s61, s{S_J}, 5")
    a.e(f"s_add_u32 s60, s60, s61")
    a.e(f"s_lshl_b32 s61, s60, 15")
    a.e(f"s_lshl_b32 s62, s{S_CB}, 8")
    a.e(f"s_add_u32 s61, s61, s62")
    a.e(f"buffer_load_dword v{V_DUM}, v17, s[{SRD_WO}:{SRD_WO+3}], s61 offen")


NTOUCH = 0 if 'f' in OPT else 8


def ctx_touch(a):
    a.e(f"s_lshl_b32 s60, s{S_RB}, 3")
    a.e(f"s_lshl_b32 s61, s{S_CB}, 1")
    a.e(f"s_add_u32 s60, s60, s61")
    a.e(f"s_lshr_b32 s61, s{S_W3}, 1")
    a.e(f"s_add_u32 s60, s60, s61")
    a.e(f"s_lshl_b32 s60, s60, 17")
    a.e(f"s_lshl_b32 s61, s{S_J}, 15")
    a.e(f"s_add_u32 s60, s60, s61")
    a.e(f"s_and_b32 s61, s{S_W3}, 1")
    a.e(f"s_lshl_b32 s61, s61, 14")
    a.e(f"s_add_u32 s60, s60, s61")
    a.e(f"v_lshlrev_b32 v16, 7, v{V_LANE}")
    a.e(f"buffer_load_dword v{V_DUM}, v16, s[{SRD_C}:{SRD_C+3}], s60 offen sc1")
    a.e(f"s_add_u32 s60, s60, 8192")
    a.e(f"buffer_load_dword v{V_DUM}, v16, s[{SRD_C}:{SRD_C+3}], s60 offen sc1")


V_P8, V_PG, V_PS = 5, 6, 21
S_TA, S_TG, S_TX, S_TO_ = 78, 79, 68, 69


def ltouch_setup(a, nw):
    L = V_LANE
    lg = 2 if nw == 4 else 1
    k = 3 - (2 - lg)
    a.e(f"s_and_b32 s74, s{S_W3}, {nw-1}")
    a.e(f"v_lshrrev_b32 v{V_P8}, {k}, v{L}")
    a.e(f"v_lshlrev_b32 v{V_P8}, 7, v{V_P8}")
    a.e(f"v_lshrrev_b32 v{V_PG}, {k+1}, v{L}")
    a.e(f"v_lshlrev_b32 v{V_PG}, 10, v{V_PG}")
    a.e(f"v_lshrrev_b32 v{V_PS}, {k+2}, v{L}")
    a.e(f"v_lshlrev_b32 v{V_PS}, 10, v{V_PS}")
    a.e(f"v_and_b32 v16, {1 << (k+1)}, v{L}")
    a.e(f"v_lshl_add_u32 v{V_PS}, v16, {7-(k+1)}, v{V_PS}")
    qbase16(a, 60)
    a.e(f"s_add_u32 s60, s60, s{S_CB}")
    a.e(f"s_mul_i32 s60, s60, {56*1024}")
    a.e(f"s_lshl_b32 s62, s74, {12-lg}")
    a.e(f"s_add_u32 s{S_TA}, s60, s62")
    a.e(f"s_and_b32 s63, s{S_RB}, 7")
    a.e(f"s_lshl_b32 s63, s63, {lg}")
    a.e(f"s_add_u32 s63, s63, s74")
    mbase2(a, 60)
    a.e(f"s_lshl_b32 s62, s63, {14-lg}")
    a.e(f"s_add_u32 s{S_TG}, s60, s62")
    if nw == 4:
        return
    a.e(f"s_lshl_b32 s62, s63, {13-lg}")
    a.e(f"s_lshl_b32 s60, s{S_J}, 20")
    a.e(f"s_add_u32 s62, s62, s60")
    a.e(f"s_lshl_b32 s60, s{S_CB}, 8")
    a.e(f"s_add_u32 s{S_TO_}, s62, s60")
    a.e(f"s_lshl_b32 s60, s{S_RB}, 3")
    a.e(f"s_lshl_b32 s61, s{S_CB}, 1")
    a.e(f"s_add_u32 s60, s60, s61")
    a.e(f"s_add_u32 s60, s60, s74")
    a.e(f"s_lshl_b32 s60, s60, 17")
    a.e(f"s_lshl_b32 s61, s{S_J}, 15")
    a.e(f"s_add_u32 s{S_TX}, s60, s61")


def ltouch_w(m):
    if m >= NT:
        return []
    if m < NG:
        return [f"s_add_u32 s60, s{S_TG}, {m*0x20000}", f"buffer_load_dword v{V_DUM}, v{V_PG}, s[{SRD_W2}:{SRD_W2+3}], s60 offen"]
    return [f"s_add_u32 s60, s{S_TO_}, {(m-NG)*0x10000}", f"buffer_load_dword v{V_DUM}, v{V_PS}, s[{SRD_WO}:{SRD_WO+3}], s60 offen"]


def ltouch_a(m):
    if m >= NT:
        return []
    if m < NG:
        return [f"s_add_u32 s60, s{S_TA}, {m*4096}", f"buffer_load_dword v{V_DUM}, v{V_P8}, s[{SRD_H}:{SRD_H+3}], s60 offen sc1"]
    return [f"s_add_u32 s60, s{S_TX}, {(m-NG)*2048}", f"buffer_load_dword v{V_DUM}, v{V_P8}, s[{SRD_C}:{SRD_C+3}], s60 offen sc1"]


def dma2_setup(a):
    L = V_LANE
    a.e(f"v_lshrrev_b32 v17, 4, v{L}")
    a.e(f"v_lshlrev_b32 v17, 1, v17")
    a.e(f"v_and_b32 v16, 7, v{L}")
    a.e(f"v_xor_b32 v16, v16, v17")
    a.e(f"v_lshlrev_b32 v16, 4, v16")
    a.e(f"v_lshrrev_b32 v17, 3, v{L}")
    a.e(f"v_lshl_add_u32 v16, v17, 10, v16")
    mbase2(a, 62)
    a.e(f"s_lshl_b32 s63, s{S_W3}, 16")
    a.e(f"s_add_u32 s62, s62, s63")
    a.e(f"s_add_u32 s62, s62, {4*0x20000}")
    a.e(f"v_add_u32 v{V_WD}, s62, v16")
    ring0(a, 60)
    a.e(f"s_lshl_b32 s{S_WM0}, s{S_W3}, 13")
    a.e(f"s_add_u32 s{S_WM0}, s{S_WM0}, s60")
    a.e(f"s_add_u32 s{S_AM0}, s{S_WM0}, 16384")
    qbase16(a, 62)
    a.e(f"s_lshl_b32 s63, s{S_W3}, 1")
    a.e(f"s_add_u32 s62, s62, s63")
    a.e(f"s_mul_i32 s62, s62, {56*1024}")
    a.e(f"s_add_u32 s62, s62, {4*4096}")
    a.e(f"v_add_u32 v{V_AD}, s62, v{V_L16}")
    for i in range(1, 8):
        a.e(f"s_mov_b32 s{SO[i]}, {i*8192}")
    a.e(f"s_mov_b32 s{S_ASO}, {56*1024}")


SO = [None, 10, 11, 12, 13, 21, 78, 79]


def so(i):
    return "0" if i == 0 else f"s{SO[i]}"


def dma2_w(stage):
    if 'm' in OPT and stage > 3:
        return []
    L = V_LANE
    isg = stage < NG
    ws = SRD_W2 if isg else SRD_WO
    r = []
    if stage == NG:
        r += [f"s_lshl_b32 s63, s{S_W3}, 2", f"v_lshrrev_b32 v17, 4, v{L}", f"v_or_b32 v18, s63, v17", f"v_lshlrev_b32 v18, 1, v18",
              f"v_and_b32 v16, 15, v{L}", f"v_xor_b32 v16, v16, v18", f"v_lshlrev_b32 v16, 4, v16", f"v_lshl_add_u32 v16, v17, 10, v16",
              f"s_lshl_b32 s63, s{S_CB}, 8", f"s_lshl_b32 s61, s{S_J}, 20", f"s_add_u32 s63, s63, s61",
              f"s_lshl_b32 s61, s{S_W3}, 12", f"s_add_u32 s63, s63, s61", f"v_add_u32 v{V_WD}, s63, v16",
              f"s_and_b32 s{S_WM0}, s{S_WM0}, 0x18000", f"s_lshl_b32 s63, s{S_W3}, 10", f"s_add_u32 s{S_WM0}, s{S_WM0}, s63"]
    for i in range(8):
        r.append(f"s_add_u32 m0, s{S_WM0}, {i*(1024 if isg else 2048)}")
        r.append(I(f"buffer_load_dwordx4 v{V_WD}, s[{ws}:{ws+3}], {so(i)} offen lds", tag=("p5", stage)))
    r.append(f"v_add_u32 v{V_WD}, {hex(0x20000 if isg else 0x10000)}, v{V_WD}")
    r.append(f"s_xor_b32 s{S_WM0}, s{S_WM0}, {hex(smask(stage))}")
    return r


def dma2_a(stage):
    if 'm' in OPT and stage > 3:
        return []
    r = []
    if stage < NG:
        for i in range(2):
            r.append(f"s_add_u32 m0, s{S_AM0}, {i*4096}")
            for ks in range(4):
                r.append(I(f"buffer_load_dwordx4 v{V_AD}, s[{SRD_H}:{SRD_H+3}], {'0' if i == 0 else 's%d' % S_ASO} offen offset:{ks*1024}{SC} lds", tag=("p5", stage)))
        r.append(f"v_add_u32 v{V_AD}, 4096, v{V_AD}")
    else:
        if stage == NG:
            r += [f"s_lshl_b32 s63, s{S_RB}, 3", f"s_lshl_b32 s62, s{S_W3}, 2", f"s_add_u32 s63, s63, s62", f"s_lshl_b32 s63, s63, 17",
                  f"s_lshl_b32 s62, s{S_J}, 15", f"s_add_u32 s63, s63, s62", f"v_add_u32 v{V_AD}, s63, v{V_L16}",
                  f"s_mov_b32 s{S_ASO}, 0x20000", f"s_mov_b32 s{S_ASO+1}, 0x40000", f"s_mov_b32 s64, 0x60000"]
        for i in range(4):
            r.append(f"s_add_u32 m0, s{S_AM0}, {i*2048}")
            sreg = ["0", f"s{S_ASO}", f"s{S_ASO+1}", "s64"][i]
            for ks in range(2):
                r.append(I(f"buffer_load_dwordx4 v{V_AD}, s[{SRD_C}:{SRD_C+3}], {sreg} offen offset:{ks*1024}{SC} lds", tag=("p5", stage)))
        r.append(f"v_add_u32 v{V_AD}, 2048, v{V_AD}")
    r.append(f"s_xor_b32 s{S_AM0}, s{S_AM0}, {hex(smask(stage))}")
    return r


def a_last_hook(a):
    p5_ids(a)
    flag_addr(a, None, 28, F_H)
    a.e(poll_load(V_PD, V_PA, SRD_F))
    loader_setup(a, 0)
    a.add(dma_w(0))
    a.add(dma_w(1))
    compute_setup(a)
    poll_check(a, V_PD, V_PA, SRD_F, 1)
    a.add(dma_a(0))
    a.add(dma_a(1))
    if NTOUCH:
        ltouch_setup(a, 4)
        for m in range(2, 2 + NTOUCH // 2):
            a.add(ltouch_w(m) + ltouch_a(m))


def b_pre_join(a):
    a.e(f"s_cmp_ge_u32 s{S_WAVE}, 6")
    a.e("s_cbranch_scc1 LF_bpre")
    a.flush()
    st = a.st.copy()
    p3.ctx_store(a, 0, SC)
    p3.ctx_store(a, 1, SC)
    p5_ids(a)
    dma2_setup(a)
    a.flush()
    a.st = st
    a.e("LF_bpre:")


def h_flag_hook(a):
    a.flush()
    st = a.st.copy()
    a.e(f"v_mov_b32 v{p3.T0}, 1")
    a.e(f"s_lshl_b32 s60, s2, 10")
    a.e(f"buffer_store_dword v{p3.T0}, off, s[{SRD_F}:{SRD_F+3}], s60 offset:{F_H} sc1")
    a.e(f"s_mov_b32 s{p3.S_TODO}, 0")
    a.flush()
    a.st = st


def c_reads(ks, fb):
    r = []
    for q in range(4):
        r.append(f"ds_read_b128 {v(fb+16+4*q,4)}, v{V_BA} offset:{q*2048 + ks*1024}")
    for m in range(4):
        for e in range(2):
            r.append(f"ds_read_b64_tr_b16 {v(fb+4*m+2*e,2)}, v{V_WA+m} offset:{ks*8192 + e*4096}")
    return r


def g_reads(half, fb):
    r = []
    for k in range(2):
        ks = 2 * half + k
        for q in range(2):
            r.append(f"ds_read_b128 {v(fb+16+4*(2*k+q),4)}, v{V_GB} offset:{q*4096 + ks*1024}")
        for m in range(2):
            for e in range(2):
                r.append(f"ds_read_b64_tr_b16 {v(fb+4*(2*k+m)+2*e,2)}, v{V_GA+m} offset:{ks*4096 + e*2048}")
    return r


def g_mfmas(fb, first):
    m = []
    for k in range(2):
        for mb, q in ((0, 0), (0, 1), (1, 1), (1, 0)):
            d = GACC + 4 * (q * 2 + mb)
            m.append(mfma(d, fb + 4 * (2 * k + mb), fb + 16 + 4 * (2 * k + q), None if (first and k == 0) else d))
    return m


def barw(vm0):
    return [f"s_waitcnt vmcnt({vm0}) lgkmcnt(0)" if vm0 is not None else "s_waitcnt lgkmcnt(0)", "s_barrier"]


def gstage(stage, first=False, vm0=None):
    if 'n' in OPT:
        return barw(vm0)
    FA, FB = FR, FR + 32
    fl = [(i // 2, 0, x) for i, x in enumerate(g_reads(1, FB))]
    for i, r in enumerate([V_GB, V_GA, V_GA + 1]):
        fl.append((6 + i // 2, 1, f"v_xor_b32 v{r}, {hex(smask(stage))}, v{r}"))
    out = weave(g_mfmas(FA, first), fl)
    out += barw(vm0)
    nx = g_reads(0, FA) if stage + 1 < NG else c_reads(0, FA)
    fl = [(i // 2, 0, x) for i, x in enumerate(nx)]
    fl.append((7, 1, Need([v(FA, 32)])))
    out += weave(g_mfmas(FB, False), fl)
    return out


def cstage(stage, first=False, vm0=None):
    if 'n' in OPT:
        return barw(vm0)
    FA, FB = FR, FR + 32
    pos = lambda i: i // 2 if i < 4 else i - 2
    fl = [(pos(i), 0, x) for i, x in enumerate(c_reads(1, FB))]
    for i, r in enumerate([V_BA, V_WA, V_WA + 1, V_WA + 2, V_WA + 3]):
        fl.append((10 + i, 1, f"v_xor_b32 v{r}, {hex(smask(stage))}, v{r}"))
    out = weave(p5.mfmas(SACC, FA, first), fl)
    out += barw(vm0)
    fl = [(pos(i), 0, x) for i, x in enumerate(c_reads(0, FA))]
    fl.append((15, 1, Need([v(FA, 32)])))
    out += weave(p5.mfmas(SACC, FB, False), fl)
    return out


def gate_math(a):
    G, T = GACC, GACC + 32
    for i in range(16):
        mb, r = (i >> 2) & 1, i & 3
        src = BR2 + 2 * mb + r // 2
        a.e(f"v_lshlrev_b32 v{T+i}, 16, v{src}" if r % 2 == 0 else f"v_and_b32 v{T+i}, 0xffff0000, v{src}")
        a.e(f"v_add_f32 v{G+i}, v{G+i}, v{T+i}")
        a.e(f"v_mul_f32 v{T+i}, 0xbfb8aa3b, v{G+i}")
        a.e(f"v_exp_f32 v{T+i}, v{T+i}")
    for i in range(16):
        a.e(f"v_add_f32 v{T+i}, 1.0, v{T+i}")
        a.e(f"v_rcp_f32 v{T+i}, v{T+i}")
    for i in range(16):
        a.e(f"v_mul_f32 v{G+i}, v{G+i}, v{T+i}")
        src = XR + i // 2
        a.e(f"v_lshlrev_b32 v{T+i}, 16, v{src}" if i % 2 == 0 else f"v_and_b32 v{T+i}, 0xffff0000, v{src}")


def slot_addr(a):
    a.e(f"s_lshl_b32 s60, s{S_TILE}, 2")
    a.e(f"s_add_u32 s60, s60, s{S_J}")
    a.e(f"s_lshl_b32 s60, s60, 2")
    a.e(f"s_add_u32 s60, s60, s{S_W3}")
    a.e(f"s_lshl_b32 s60, s60, 13")
    a.e(f"s_add_u32 s61, s60, 4096")


def arm_slot(a):
    p5_ids(a)
    srd(a, SRD3, P_WS, 0x800000, WS_SP)
    slot_addr(a)
    for i in range(4):
        a.e(f"v_mov_b32 v{136+i}, -1")
    for h in range(2):
        for i in range(4):
            a.e(f"buffer_store_dwordx4 v[136:139], v{V_L16}, s[{SRD3}:{SRD3+3}], s{60+h} offen offset:{i*1024}{SC}")


def p45(a):
    a.e(f"s_cmp_lt_u32 s{S_WAVE}, 4")
    a.e("s_cbranch_scc1 LF_comp")
    a.flush()
    a.st = WState()
    a.e(f"s_cmp_ge_u32 s{S_WAVE}, 6")
    a.e("s_cbranch_scc1 LF_touch")
    a.flush()
    LEAD = 4

    def it(st, act=True):
        a.add([WaitTag(lambda t, st=st: t == ("p5", st + 1)), "s_barrier"])
        if st == CTXFLAG:
            a.add(set_flag(F_CTX, 16, 4))
        n = st + LEAD
        if n < NT:
            a.add(dma2_w(n))
            if act:
                a.add(dma2_a(n))
    for st in range(NG - LEAD):
        it(st)
        if st == NG - LEAD - 3:
            a.e(f"s_lshl_b32 s63, s{S_J}, 3")
            flag_addr(a, 63, 8, F_CTX)
            a.e(f"v_and_b32 v16, 3, v{V_LANE}")
            a.e("s_andn2_b32 s62, s2, 3")
            a.e("v_add_u32 v16, s62, v16")
            a.e("v_lshlrev_b32 v16, 10, v16")
            a.e(f"v_add_u32 v16, {F_CTX}, v16")
            a.e(f"v_cmp_lt_u32 vcc, 31, v{V_LANE}")
            a.e(f"v_cndmask_b32 v{V_PA}, v{V_PA}, v16, vcc")
        if st == NG - LEAD - 2 and 'O' not in OPT:
            a.e(poll_load(V_PD, V_PA, SRD_F))
    if 'O' not in OPT:
        a.add(Need([v(V_PD)]))
        a.e(f"v_cmp_gt_u32 vcc, 1, v{V_PD}")
        a.e("s_nop 0")
        a.e("s_cbranch_vccnz LF_late")
        a.flush()
        stl = a.st.copy()
        for st in range(NG - LEAD, NG - 1):
            it(st)
        stamp(a, 10)
        stamp(a, 11)
        a.e("s_branch LF_ctxgo")
        a.flush()
        ste = a.st.copy()
        a.st = stl
        a.e("LF_late:")
    for st in range(NG - LEAD, NG - 1):
        it(st, False)
        if st == NG - 3:
            a.e(poll_load(V_PD, V_PA, SRD_F))
    stamp(a, 10)
    poll_check(a, V_PD, V_PA, SRD_F, 1)
    stamp(a, 11)
    for k in range(LEAD - 1):
        a.add(dma2_a(NG + k))
    a.flush()
    if 'O' not in OPT:
        def young(vm, tag):
            idx = [i for i, x in enumerate(vm) if x[1] == tag]
            return len(vm) - 1 - idx[-1] if idx else None
        for k in range(LEAD - 1):
            ye, yl = young(ste.vm, ("p5", NG + k)), young(a.st.vm, ("p5", NG + k))
            assert yl is not None and (ye is None or yl <= ye), (k, ye, yl)
        a.e("LF_ctxgo:")
    for st in range(NG - 1, NT):
        it(st)
    for i in (12, 13, 14, 15):
        stamp(a, i)
    a.e("s_endpgm")
    a.flush()
    a.st = WState()
    a.e("LF_touch:")
    DT = 10
    LT = 'h' in OPT
    first = 4
    quarters = []
    for qb in range(2):
        x = cap(p3.ctx_store, qb, SC)
        cut = [i for i, y in enumerate(x) if y.k == "vst"][1] + 1
        quarters += [x[:cut], x[cut:]]
    a.add(quarters[0])
    early = [NG - 7, NG - 5]
    a.e("s_mov_b32 s77, 0")
    for st in range(NT):
        a.add([WaitTag(lambda t, st=st: st == CTXFLAG and t == "ctx"), "s_barrier"])
        if st < 3:
            a.add(quarters[st + 1])
        if not LT:
            if st == CTXFLAG:
                break
            continue
        if st == 3:
            p5_ids(a)
            a.e(f"s_lshl_b32 s63, s{S_J}, 3")
            flag_addr(a, 63, 8, F_CTX)
            ltouch_setup(a, 2)
            for m in range(8, DT + 3):
                a.add(ltouch_w(m) + ltouch_a(m))
        if st < 3:
            continue
        if st in early:
            a.add(Need([v(V_PD)]))
            a.e(f"v_cmp_ne_u32 vcc, 1, v{V_PD}")
            a.e("s_cmp_lg_u32 s77, 0")
            a.e(f"s_cbranch_scc1 LF_te{st}")
            a.e(f"s_cbranch_vccnz LF_te{st}")
            a.flush()
            stt = a.st.copy()
            for m in range(NG, NG + 8):
                a.add(ltouch_a(m))
            a.e("s_mov_b32 s77, 1")
            a.flush()
            a.st = stt
            a.e(f"LF_te{st}:")
        if st == NG - 2:
            poll_check(a, V_PD, V_PA, SRD_F, 1)
            a.e("s_cmp_lg_u32 s77, 0")
            a.e(f"s_cbranch_scc1 LF_te{st}")
            a.flush()
            stt = a.st.copy()
            for m in range(NG + 2, NG + 8):
                a.add(ltouch_a(m))
            a.flush()
            a.st = stt
            a.e(f"LF_te{st}:")
        if st + 2 in early or st + 2 == NG - 2:
            a.e(poll_load(V_PD, V_PA, SRD_F))
        a.add(ltouch_w(st + DT))
        if st + DT < NG or st + DT >= NG + 8:
            a.add(ltouch_a(st + DT))
        if len(a.st.vm) > 40:
            a.flush()
            a.st.vm = a.st.vm[-20:]
    for i in (10, 11, 12, 13, 14, 15):
        stamp(a, i)
    a.e("s_endpgm")
    a.flush()
    a.st = WState()
    a.e("LF_comp:")
    a.add(g_reads(0, FR))
    for st in (2, 3):
        a.add(dma_w(st))
        a.add(dma_a(st))
    srd(a, SRD3, P_X, 0x200000)
    srd(a, SRD4, P_B2, 1024)
    a.add(Need([v(FR, 32)]))
    stamp(a, 10, 'T')
    a.flush()
    ns = 2 if (STAMP and 'T' in OPT) else 0
    a.add(gstage(0, True, 16 + ns))
    stamp(a, 11, 'T')
    a.e(f"s_add_u32 s60, s{S_XO}, 16384")
    for q in range(2):
        for mb in range(2):
            a.e(f"buffer_load_dwordx2 {v(XR+2*(2*q+mb),2)}, v{V_XA}, s[{SRD3}:{SRD3+3}], s{60 if q else S_XO} offen offset:{mb*32}")
    for mb in range(2):
        a.e(f"buffer_load_dwordx2 {v(BR2+2*mb,2)}, v{V_BB}, s[{SRD4}:{SRD4+3}], 0 offen offset:{mb*32}")
    a.add(gstage(1, vm0=14 + 2 * ns))
    a.add(gstage(2, vm0=6 + 2 * ns))
    stamp(a, 12, 'T')
    a.add(gstage(3))
    stamp(a, 13, 'T')
    a.add(gstage(4))
    a.add(gstage(5))
    stamp(a, 14, 'T')
    a.e("s_mov_b32 s75, 3")
    a.e("s_waitcnt vmcnt(0)")
    a.loop("LF_gloop", lambda: [gstage(4), gstage(5)],
           ["s_sub_u32 s75, s75, 1", "s_cmp_lg_u32 s75, 0", "s_cbranch_scc1 LF_gloop"])
    a.add(gstage(12))
    FA, FB = FR, FR + 32
    a.add(weave(g_mfmas(FA, False), [(i // 2, 0, x) for i, x in enumerate(g_reads(1, FB))]))
    a.add(g_mfmas(FB, False))
    stamp(a, 15, 'T')
    stamp(a, 10)
    gate_math(a)
    srd(a, SRD3, P_WS, 0x800000, WS_SP)
    srd(a, SRD4, P_OUT, 0x200000)
    a.e("s_barrier")
    a.add(c_reads(0, FA))
    a.add(Need([v(FA, 32)]))
    stamp(a, 11)
    a.add(cstage(NG, True))
    a.add(cstage(NG + 1))
    a.e("s_mov_b32 s75, 7")
    a.loop("LF_loop", lambda: [cstage(NG + 2), cstage(NG + 3)],
           ["s_sub_u32 s75, s75, 1", "s_cmp_lg_u32 s75, 0", "s_cbranch_scc1 LF_loop"])
    stamp(a, 12)
    a.e("s_waitcnt lgkmcnt(0)")
    a.e(f"s_cmp_eq_u32 s{S_W3}, s{S_J}")
    a.e("s_cbranch_scc1 LF_own")
    slot_addr(a)
    for cw in range(4):
        for q in range(2):
            d = FR + 4 * (2 * cw + q)
            for mb in range(2):
                b = SACC + 4 * ((2 * (cw >> 1) + q) * 4 + 2 * (cw & 1) + mb)
                a.e(f"v_cvt_pk_bf16_f32 v{d+2*mb}, v{b}, v{b+1}")
                a.e(f"v_cvt_pk_bf16_f32 v{d+2*mb+1}, v{b+2}, v{b+3}")
            a.e(f"buffer_store_dwordx4 {v(d,4)}, v{V_L16}, s[{SRD3}:{SRD3+3}], s{60 + (cw >> 1)} offen offset:{((cw&1)*2+q)*1024}{SC}")
    a.e("s_branch LF_sent")
    a.flush()
    a.st = WState()
    a.e("LF_own:")
    a.e(f"v_add_u32 v16, {LDS_OWN}, v{V_L16}")
    a.e("s_nop 7")
    for i in range(16):
        a.e(f"ds_write_b128 v16, {v(SACC+4*i,4)} offset:{i*1024}")
    a.e("s_waitcnt lgkmcnt(0)")
    a.flush()
    a.e("LF_sent:")
    PR = 96
    for k in range(1, 4):
        a.e(f"s_add_u32 s60, s{S_J}, {k}")
        a.e(f"s_and_b32 s60, s60, 3")
        a.e(f"s_lshl_b32 s61, s{S_TILE}, 2")
        a.e(f"s_add_u32 s60, s60, s61")
        a.e(f"s_lshl_b32 s60, s60, 2")
        a.e(f"s_add_u32 s60, s60, s{S_J}")
        a.e(f"s_lshl_b32 s60, s60, 2")
        a.e(f"s_add_u32 s60, s60, s{S_W3}")
        a.e(f"s_lshl_b32 s{64+k}, s60, 11")

    def fetch():
        for k in range(1, 4):
            for q in range(2):
                a.e(f"buffer_load_dwordx4 {v(PR+8*(k-1)+4*q,4)}, v{V_L16}, s[{SRD3}:{SRD3+3}], s{64+k} offen offset:{q*1024}{SC}")
    fetch()
    a.e(f"s_lshr_b32 s62, s{S_W3}, 1")
    a.e(f"s_lshl_b32 s62, s62, 13")
    a.e(f"s_and_b32 s63, s{S_W3}, 1")
    a.e(f"s_lshl_b32 s63, s63, 11")
    a.e(f"s_add_u32 s62, s62, s63")
    a.e(f"s_add_u32 s62, s62, {LDS_OWN}")
    a.e(f"v_add_u32 v18, s62, v{V_L16}")
    a.e(f"s_mov_b32 s{S_SPIN}, 0x10000")
    a.e("s_barrier")
    stamp(a, 13)
    S_ = 64
    for q in range(2):
        for mb in range(2):
            a.e(f"ds_read_b128 {v(S_+4*(2*q+mb),4)}, v18 offset:{q*4096+mb*1024}")
    a.flush()
    a.e("LF_xchk:")
    a.e("s_waitcnt vmcnt(0)")
    a.e(f"v_max3_u32 v16, v{PR}, v{PR+1}, v{PR+2}")
    a.e(f"v_max3_u32 v17, v{PR+3}, v{PR+4}, v{PR+5}")
    for i in range(6, 24, 4):
        a.e(f"v_max3_u32 v16, v16, v{PR+i}, v{PR+i+1}")
        if i + 2 < 24:
            a.e(f"v_max3_u32 v17, v17, v{PR+i+2}, v{PR+i+3}")
    a.e("v_max_u32 v16, v16, v17")
    a.e("v_cmp_eq_u32 vcc, -1, v16")
    a.e(f"s_sub_u32 s{S_SPIN}, s{S_SPIN}, 1")
    a.e("s_cbranch_scc1 LF_xok")
    a.e("s_cbranch_vccz LF_xok")
    fetch()
    a.e("s_branch LF_xchk")
    a.flush()
    a.st.vm = []
    a.e("LF_xok:")
    stamp(a, 14)
    for k in range(3):
        for i in range(16):
            src = PR + 8 * k + i // 2
            t = 80 + i
            a.e(f"v_lshlrev_b32 v{t}, 16, v{src}" if i % 2 == 0 else f"v_and_b32 v{t}, 0xffff0000, v{src}")
        for i in range(16):
            a.e(f"v_add_f32 v{S_+i}, v{S_+i}, v{80+i}")
    a.e(f"s_add_u32 s60, s{S_XO}, 16384")
    for b in range(4):
        for i in range(4):
            a.e(f"v_fma_f32 v{S_+4*b+i}, v{S_+4*b+i}, v{GACC+4*b+i}, v{GACC+32+4*b+i}")
        a.e(f"v_cvt_pk_bf16_f32 v{XR+2*b}, v{S_+4*b}, v{S_+4*b+1}")
        a.e(f"v_cvt_pk_bf16_f32 v{XR+2*b+1}, v{S_+4*b+2}, v{S_+4*b+3}")
        a.e(f"buffer_store_dwordx2 {v(XR+2*b,2)}, v{V_XA}, s[{SRD4}:{SRD4+3}], s{60 if b >= 2 else S_XO} offen offset:{(b&1)*32}")
    if STAMP:
        a.e("s_waitcnt vmcnt(0)")
    stamp(a, 15)


def p2_main(a):
    if 'E' in OPT:
        a.add([WaitTag(lambda t: t == ("p2", 0)), "s_barrier"])
    for d in range(12):
        a.add(p2_read(0, 0, d))
    stamp(a, 4)
    for st in range(8):
        ex = xload(2 * st + 3) if st < 7 else []
        if True:
            ex += [kv_deferred(i) for i in range(12) if KVST[i] == st]
        a.add(p2_part(2 * st, (st, 1), spread(ex, 1, 22) if ex else []))
        if st < 7:
            a.add([WaitTag(lambda t, st=st: t == ("p2", st + 1) or (st == KVFLAG and t == "kvst")), "s_barrier"])
        if st == KVFLAG:
            a.add(set_flag(F_KV, 30, 0))
        ex = (p2_dma(2) if st == 0 else []) + (p2_dma(st + 3) if st <= 4 else []) + (xload(2 * st + 4) if st < 6 else [])
        if st == 7:
            a.add(Need([v(p3.BR, 32)]))
            ex = cap(p3.p3_setup_once, 30) + [f"v_and_b32 v29, 7, v{V_LANE}", "v_lshlrev_b32 v29, 15, v29", "s_and_b32 s74, s2, 31",
                                              "s_lshl_b32 s74, s74, 10", f"s_cmp_lt_u32 s{S_WAVE}, 4", "s_cselect_b32 s74, s74, 0x40000",
                                              poll_load(28, 29, SRD_F, "s74")] + cap(p3.first_dma_regs)
            a.add(p2_part(2 * st + 1, None, spread(ex, 0, 12)))
        else:
            a.add(p2_part(2 * st + 1, (st + 1, 0), spread(ex, 1, 22) if ex else []))
        stamp(a, 8 + st, 'U')
    a.e(f"s_cmp_ge_u32 s{S_WAVE}, 4")
    a.e("s_cbranch_scc1 LF_nokv")
    a.flush()
    stt = a.st.copy()
    poll_check(a, 28, 29, SRD_F, 1, "s74")
    a.add(p3.kv_dma(30))
    a.add(p3.kv_dma(30))
    a.flush()
    a.st = stt
    a.e("LF_nokv:")


def kernel_f(a, label):
    p3.KVSC = SC
    p3.TODO_HOOK = h_flag_hook
    p3.STB = 4
    p3.BVM = (2 if 'z' not in OPT else 0) + (4 if STAMP and 'M' not in OPT else 0)
    p3.stamp = stamp
    p3.LDS_H = LDS_H
    a.st = WState()
    kernel_head(a, label, 256, 0 if 'q' in OPT else CODE_LINES, wait=False)
    a.e(f"v_lshlrev_b32 v{V_L16}, 4, v{V_LANE}")
    a.e(f"s_lshl_b32 s{S_ROW}, s2, 3")
    a.e(f"s_lshl_b32 s61, s{S_W3}, 1")
    a.e(f"s_add_u32 s{S_ROW}, s{S_ROW}, s61")
    a.e(f"s_lshl_b32 s{S_ROW}, s{S_ROW}, 10")
    if 'u' in OPT:
        start_touch_setup(a)
    a.e(f"s_cmp_ge_u32 s{S_WAVE}, 4")
    a.e(f"s_cbranch_scc0 LF0_K")
    a.flush()
    st0 = a.st.copy()

    def srds_touch():
        srd(a, SRD1, P_CKV, 2097152)
        srd(a, SRD_WK, P_WUK, 0x400000)
        srd(a, SRD_WV, P_WUV, 0x400000)
        if 'u' in OPT:
            start_touch(a)
    a.e("s_waitcnt lgkmcnt(0)")
    ln_issue(a)
    srds_touch()
    a.e("s_branch LF0_V")
    a.flush()
    stv = a.st.copy()
    pro = {}
    a.st = st0
    a.e(f"LF0_K:")
    k_dma_setup(a)
    a.e("s_waitcnt lgkmcnt(0)")
    srds_touch()
    for st in range(2):
        g, adv = k_dma(st)
        for m0, ld in g:
            a.add([m0, ld])
        a.add(adv)
    a.e("s_branch LF1_K")
    a.flush()
    pro[0] = a.st.copy()
    a.st = stv
    a.e(f"LF0_V:")
    touch_setup(a)
    order = (1, 0)
    ends = []
    for isv in order:
        if not isv:
            a.st = pro[0]
            a.e("LF1_K:")
        stamp_init(a, 0)
        p3.q0_setup2(a)
        setup_reads(a)
        srd(a, SRD3, P_WS, WS_CTX)
        srd(a, SRD_F, P_WS, 0x40000, WS_FLAG)
        if isv:
            ln_compute(a)
            stamp(a, 11, 'V')
            if 'a' not in OPT:
                a.add(touch_p1(2))
            a.e(f"v_min_u32 v20, 7, v{V_LANE}")
            a.e("v_lshlrev_b32 v20, 7, v20")
            a.e("v_mov_b32 v21, 0")
            a.e("s_lshl_b32 s62, s2, 10")
            a.e(f"s_cmp_eq_u32 s{S_WAVE}, 4")
            a.e("s_cselect_b32 s62, s62, 0x40000")
            a.e(f"buffer_store_dword v21, v20, s[{SRD_F}:{SRD_F+3}], s62 offen sc1")
        stamp(a, 0)
        stamp(a, 10, 'V')
        a.add([WaitTag(lambda t: t == ("p1", 0), lg0=True), "s_barrier"])
        stamp(a, 1)
        a.add(p1.p1_reads(0, 0, p1.F0))

        def tl(st):
            x = []
            if isv and 'a' not in OPT:
                if 'r' in OPT:
                    for m in {0: (3, 4), 1: (5, 6), 2: (7,)}.get(st, ()):
                        x += touch_p1(m)
                elif st + 3 < 8:
                    x += touch_p1(st + 3)
            if isv and 'w' in OPT:
                if st in (1, 2):
                    x += cap(late_touch, st - 1)
            elif isv and 'y' in OPT:
                if st in (2, 3, 4, 5):
                    x += cap(late_touch, -(st - 2) - 1)
            elif isv and st in (4, 5):
                x += cap(late_touch, -(st - 4) - 1)
            if isv and 'z' in OPT and st in (3, 4):
                x += cap(late_touch, st - 1)
            return spread(x, 10, 31) if x else []
        for st in range(6):
            fl1, fl2 = tl(st), []
            if st == 0:
                x = cap(ln_store)
                fl1 = fl1 + spread(x[:-1], 2, 8, 8) + [(14, 8, x[-1])]
            if st == 2 and isv:
                t = Asm()
                srd(t, 84, P_DBG, 256)
                t.e(f"s_cmp_eq_u32 s{S_WAVE}, 4")
                t.e("s_cselect_b32 s86, s86, 0")
                t.e("s_and_b32 s60, s2, 15")
                t.e("s_lshl_b32 s60, s60, 2")
                t.e("v_mov_b32 v22, 1")
                t.e("s_mov_b64 exec, 1")
                t.e(f"buffer_atomic_add v22, off, s[84:87], s60 sc1")
                t.e("s_mov_b64 exec, -1")
                fl2 = [(0, 7, t.cur)] + fl2
            if st == 5 and isv and 'G' in OPT:
                x = cap(tlb_warm)
                k = [i for i, y in enumerate(x) if "exec, 31" in y.t][0] - 1
                fl1 = fl1 + spread(x[:k], 6, 24) + [(25, 7, x[k:k + 4])] + spread(x[k + 4:], 26, 31)
            if st == 5 and isv:
                fl1 = fl1 + [(4, 7, [f"v_and_b32 v29, 15, v{V_LANE}", "v_lshlrev_b32 v29, 2, v29", poll_load(28, 29, 84)])]
            p1_stage(a, isv, st, fl1=fl1, fl2=fl2, wait="xn" if st == 2 else None)
            stamp(a, 8 + st, True)
        def init_check():
            if isv:
                a.add(Need([v(28)]))
                a.e(f"s_cmp_lg_u32 s{S_WAVE}, 4")
                a.e("s_cbranch_scc1 LF_noinitchk")
                poll_check(a, 28, 29, 84, 16)
                a.flush()
                a.e("LF_noinitchk:")
        f1 = spread(cap(p3.p2_setup), 0 if isv else 18, 30)
        if isv and 'w' not in OPT and 'y' not in OPT:
            f1 += [(31, 8, cap(late_touch, -3))]
        p1_stage(a, isv, 6, fl1=f1, pre_bar=init_check, fl2=spread((xcc_load() if 'A' not in OPT else []) + p2_dma(0) + p2_dma(1), 0, 31))
        stamp(a, 14, True)
        x = cap(bias_load)
        y = xload(0) + xload(1) + xload(2)
        f1 = []
        if isv:
            f1 = (cap(xn_touch) if 'c' not in OPT else []) + (cap(late_touch, -4) if 'w' not in OPT and 'y' not in OPT else [])
            f1 = spread(f1, 2, 30) if f1 else []
        p1_stage(a, isv, 7, fl1=f1, wait=("p2", 0) if 'E' not in OPT else None,
                 fl2=([(0, 2, xcc_check())] if 'A' not in OPT else []) + spread(cap(xn_setup), 0, 1, 3) + spread(y, 2, 22, 4) + spread(x, 23, 31, 4) + spread(cap(p2_setup_reads), 1, 31))
        stamp(a, 15, True)
        stamp(a, 2)
        p1_pack(a, isv)
        if isv == order[0]:
            a.e(f"s_branch LF1_done")
        a.flush()
        a.st.vm = [x for x in a.st.vm if x[0] or x[1] is not None]
        ends.append(a.st.key())
    assert ends[0] == ends[1], ends
    a.e("LF1_done:")
    bias_apply(a)
    stamp(a, 3)
    p2_main(a)
    stamp(a, 5)
    a.e(f"v_mov_b32 v{p3.V_KD}, v30")
    p3.p2_epilogue(a, SRD3, WS_H, SC)
    p3.p3_consts(a)
    a.e(f"s_cmp_lt_u32 s{S_WAVE}, 4")
    a.e("s_cbranch_scc1 LF_nowarm")
    a.flush()
    stt = a.st.copy()
    if 'z' not in OPT:
        late_touch(a, 2)
        late_touch(a, 3)
    a.flush()
    a.st = stt
    a.e("LF_nowarm:")
    if 'L' in OPT:
        a.e(f"s_cmp_eq_u32 s{S_WAVE}, 0")
        a.e(f"s_cselect_b32 s{p3.S_TODO}, 1, 0")
    else:
        import p45 as Q
        p3.TODO_HOOK = Q.todo_hook
        a.e(f"s_mov_b32 s{p3.S_TODO}, 1")
    stamp(a, 6)
    if 'L' in OPT:
        p3.p3_main(a, "LF3", SC, last_hook=a_last_hook, last_wait=4 + NTOUCH, b_hook=b_pre_join, epi_hook=arm_slot)
        stamp(a, 9)
        p45(a)
    else:
        import p45 as Q
        p3.p3_main(a, "LF3", SC, last_hook=Q.a_last_hook, last_wait=None, b_hook=Q.b_pre_join, epi_hook=Q.a_epilogue_hook,
                   iter_hook=Q.a_iter_hook, pre_epi_hook=Q.a_pre_epilogue_hook, wait_hook=Q.a_wait_hook, fin_hook=Q.a_fin_hook,
                   join_hook=Q.a_join_wait)
        stamp(a, 9)
        Q.main(a)
    kernel_tail(a, label)
    return label
```
